```python
import torch

def _softmax(x, axis=-1):
    return torch.softmax(x, dim=axis)
def _gelu(x):
    return torch.nn.functional.gelu(x, approximate="tanh")
def _silu(x):
    return torch.nn.functional.silu(x)
def _sigmoid(x):
    return torch.sigmoid(x)
def _layernorm(x, axis=-1, eps=1e-5):
    m = x.mean(dim=axis, keepdim=True)
    v = x.var(dim=axis, keepdim=True, unbiased=False)
    return (x - m) / torch.sqrt(v + eps)
def _scatter_add(tgt, idx, src, axis=0):
    return tgt.clone().index_add_(axis, idx, src)
def _segment_sum(src, seg, n):
    out = torch.zeros((n,) + src.shape[1:], dtype=src.dtype)
    return out.index_add_(0, seg, src)
def _pad(x, pw):
    flat = tuple(v for pair in reversed(pw) for v in pair)
    return torch.nn.functional.pad(x, flat)

kernel_name = 'concat_heads__sliding_local_dilated__linear_attn_block__prompt'

def setup_inputs():

    _w = (lambda a: (lambda t: t.to(torch.bfloat16) if t.is_floating_point() else t)(torch.as_tensor(a)))
    def _A_setup():
        B, S, D = 1, 2048, 512
        return {
            "x": _w((lambda *s: torch.randn(*s, dtype=torch.bfloat16) * 0.2)(B, S, D)),
            "wqkv": _w((lambda *s: torch.randn(*s, dtype=torch.bfloat16) * 0.2)(D, 3 * D)),
            "wo": _w((lambda *s: torch.randn(*s, dtype=torch.bfloat16) * 0.05)(D, D)),
        }
    _A_in = _A_setup()

    def _B_setup():
        B, S, D = 1, 2048, 512
        return {
            "x": _w((lambda *s: torch.randn(*s, dtype=torch.bfloat16) * 0.05)(B, S, D)),
            "wqkv": _w((lambda *s: torch.randn(*s, dtype=torch.bfloat16) * 1.6)(D, 3 * D)),
            "wo": _w((lambda *s: torch.randn(*s, dtype=torch.bfloat16) * 0.8)(D, D)),
        }
    _B_in = _B_setup()

    return {
        "A_x": _A_in["x"],
        "A_wqkv": _A_in["wqkv"],
        "A_wo": _A_in["wo"],
        "B_x": _B_in["x"],
        "B_wqkv": _B_in["wqkv"],
        "B_wo": _B_in["wo"],
    }

def reference(A_x, A_wqkv, A_wo, B_x, B_wqkv, B_wo):
    def _A_ref(x, wqkv, wo):
        B, S, D = x.shape
        H = 32; Dh = D // H
        W, dil = 8, 2
        qkv = (lambda x, *d: x.permute(*d))((x @ wqkv).reshape(B, S, 3, H, Dh), 2, 0, 3, 1, 4)
        q, k, v = qkv[0], qkv[1], qkv[2]
        scale = Dh ** -0.5
        pos = torch.arange(S)
        off = torch.arange(W) * dil
        idx = pos[:, None] - off[None, :]
        mask = idx >= 0
        idx_c = torch.where(mask, idx, 0).reshape(-1)
        kg = k[:, :, idx_c, :].reshape(B, H, S, W, Dh)
        vg = v[:, :, idx_c, :].reshape(B, H, S, W, Dh)
        logits = torch.einsum("bhsd,bhswd->bhsw", q, kg) * scale
        logits = torch.where(mask[None, None, :, :], logits, -1e9)
        attn = _softmax(logits, axis=-1)
        o = torch.einsum("bhsw,bhswd->bhsd", attn, vg)
        return (lambda x, *d: x.permute(*d))(o, 0, 2, 1, 3).reshape(B, S, D) @ wo

    def _B_ref(x, wqkv, wo):
        B, S, D = x.shape
        H = 32; Dh = D // H
        qkv = (lambda x, *d: x.permute(*d))((x @ wqkv).reshape(B, S, 3, H, Dh), 2, 0, 3, 1, 4)
        q, k, v = qkv[0], qkv[1], qkv[2]
        phi = lambda t: torch.where(t > 0, t + 1, torch.exp(t)) + 1e-6
        pq, pk = phi(q), phi(k)
        kv = torch.einsum("bhsd,bhse->bhde", pk, v)
        z = torch.einsum("bhsd->bhd", pk)
        num = torch.einsum("bhqd,bhde->bhqe", pq, kv)
        den = torch.einsum("bhqd,bhd->bhq", pq, z)[..., None] + 1e-6
        o = num / den
        return (lambda x, *d: x.permute(*d))(o, 0, 2, 1, 3).reshape(B, S, D) @ wo

    a = _A_ref(A_x, A_wqkv, A_wo)
    b = _B_ref(B_x, B_wqkv, B_wo)
    return torch.concatenate([a, b], axis=-1)
```

```python
import sys, argparse
ap = argparse.ArgumentParser()
ap.add_argument("--stamps", type=int, default=0)
ap.add_argument("--order", type=str, default="plain")
ap.add_argument("--dbg", type=str, default="")
ap.add_argument("--steps", action="store_true")
ap.add_argument("--touch", type=int, default=9)
ap.add_argument("--psleep", type=int, default=2)
ap.add_argument("--depth", type=int, default=2)
ap.add_argument("--initstep", type=int, default=3)
args = ap.parse_args()
NAME = "concat_heads__sliding_local_dilated__linear_attn_block__prompt_kernel"
out = []
def A(s): out.append(s)
def C(s): out.append("  ; " + s)

XSLOT = 18432; NXS = 4
WBASE = XSLOT * NXS
WSLOT = 12288; NWS = 7
FLG = WBASE + WSLOT * NWS
F_READY = FLG
F_PROG = FLG + 256
F_ISS = FLG + 80
F_DONE = FLG + 84
F_INIT = FLG + 88
LDS_TOTAL = 163840
WS_O = 0
WS_KV = 4 << 20
KVH = 1152
WS_FLG = (4 << 20) + 65536
STAMP_OFF = 128 << 20
NSTAMP = args.stamps

S_PTR = 4
S_WS = 20
SRD_X = 24; SRD_W = 28; SRD_WO = 32; SRD_OUT = 36; SRD_WS = 40
S_DBG = 44
S_BR = 46; S_RB = 47; S_HG = 48; S_RB2 = 49; S_CB = 50; S_WV = 51; S_J = 52; S_XQ = 53
S_XB = 54
S_XH = 55
S_WB = 56
S_T0 = 57; S_T1 = 58; S_T2 = 59; S_T3 = 60
S_ORD = 61
S_M0 = 62; S_M1 = 64; S_M2 = 66
S_C0 = 68; S_C1 = 69; S_C2 = 70; S_C3 = 71
S_OB = 72
S_SPIN = 73
S_FLG = 22
S_FI = 23
S_INITN = 3
S_ST = 76
S_STB = 74

def stamp(i):
    if i < min(NSTAMP, 12) and not (args.steps and i == 11):
        A(f"  s_memrealtime s[{S_ST+2*(i%12)}:{S_ST+2*(i%12)+1}]")
def stamp_flush(idxs, vtmp):
    if not NSTAMP: return
    A("  s_waitcnt lgkmcnt(0)")
    A("  s_mov_b64 exec, 1")
    A(f"  v_mov_b32 v{vtmp+2}, 0")
    for i in idxs:
        if i < NSTAMP:
            A(f"  v_mov_b32 v{vtmp}, s{S_ST+2*(i%12)}\n  v_mov_b32 v{vtmp+1}, s{S_ST+2*(i%12)+1}")
            A(f"  global_store_dwordx2 v{vtmp+2}, v[{vtmp}:{vtmp+1}], s[{S_STB}:{S_STB+1}] offset:{8*i}")
            A("  s_nop 1")
    A("  s_mov_b64 exec, -1")
    if args.steps and 0 in idxs:
        A(f"  v_lshlrev_b32 v{vtmp}, 2, v0\n  s_mov_b32 exec_hi, 0\n  global_store_dword v{vtmp}, v255, s[{S_STB}:{S_STB+1}] offset:96\n  s_mov_b64 exec, -1")

A(f"; @launch grid=(256,1,1) block=(512,1,1) lds={LDS_TOTAL}")
A('.amdgcn_target "amdgcn-amd-amdhsa--gfx950"\n.text\n.globl %s\n.p2align 8\n.type %s,@function\n%s:' % (NAME, NAME, NAME))
A("  s_cmp_ge_u32 s2, 256\n  s_cbranch_scc1 L_end")
A(f"  s_load_dwordx16 s[{S_PTR}:{S_PTR+15}], s[0:1], 0")
A(f"  s_load_dwordx2 s[{S_WS}:{S_WS+1}], s[0:1], 64")
stamp(0)
A(f"""  v_lshrrev_b32 v1, 6, v0
  v_and_b32 v0, 63, v0
  v_readfirstlane_b32 s{S_WV}, v1
  s_and_b32 s{S_T0}, s2, 7
  s_lshr_b32 s{S_J}, s2, 3
  s_lshr_b32 s{S_BR}, s{S_T0}, 2
  s_and_b32 s{S_XQ}, s{S_T0}, 3
  s_lshr_b32 s{S_T1}, s{S_XQ}, 1
  s_lshl_b32 s{S_T1}, s{S_T1}, 3
  s_lshr_b32 s{S_T2}, s{S_J}, 2
  s_add_u32 s{S_RB}, s{S_T1}, s{S_T2}
  s_and_b32 s{S_T1}, s{S_XQ}, 1
  s_lshl_b32 s{S_T1}, s{S_T1}, 2
  s_and_b32 s{S_CB}, s{S_J}, 3
  {"s_xor_b32 s%d, s%d, 1" % (S_CB, S_CB) if args.dbg == "x1" else ""}
  s_add_u32 s{S_HG}, s{S_T1}, s{S_CB}
  s_lshl_b32 s{S_T1}, s{S_XQ}, 3
  s_add_u32 s{S_RB2}, s{S_T1}, s{S_T2}
  s_lshl_b32 s{S_XB}, s{S_RB}, 17
  s_sub_u32 s{S_XH}, s{S_XB}, 16384
  s_max_i32 s{S_XH}, s{S_XH}, 0
  s_lshl_b32 s{S_WB}, s{S_HG}, 7
  s_mov_b32 s{S_SPIN}, 0
  s_lshl_b32 s{S_FI}, s{S_BR}, 7
  s_lshl_b32 s{S_T1}, s{S_RB}, 3
  s_add_u32 s{S_FI}, s{S_FI}, s{S_T1}
  s_add_u32 s{S_FI}, s{S_FI}, s{S_HG}
  s_lshl_b32 s{S_FLG}, s{S_FI}, 7
  s_add_u32 s{S_FLG}, s{S_FLG}, {WS_FLG}
  s_lshr_b32 s{S_T1}, s{S_FI}, 3
  s_cmp_eq_u32 s{S_T1}, 16
  s_cselect_b32 s{S_INITN}, 4, 0""")
if args.order == "plain":
    A(f"  s_mov_b32 s{S_ORD}, 0")
elif args.order == "rot8":
    A(f"  s_lshl_b32 s{S_T1}, s{S_CB}, 1\n  s_add_u32 s{S_ORD}, s{S_T2}, s{S_T1}\n  s_and_b32 s{S_ORD}, s{S_ORD}, 7")
elif args.order.startswith("g2"):
    A(f"  s_add_u32 s{S_ORD}, s{S_T2}, s{S_CB}\n  s_and_b32 s{S_ORD}, s{S_ORD}, 1")
elif args.order.startswith("g4"):
    A(f"  s_add_u32 s{S_ORD}, s{S_T2}, s{S_CB}\n  s_and_b32 s{S_ORD}, s{S_ORD}, 3")
A(f"""  s_cmp_lg_u32 s{S_WV}, 0
  s_cbranch_scc1 L_noinit
  v_lshlrev_b32 v1, 3, v0
  v_add_u32 v1, {FLG}, v1
  v_mov_b32 v2, 0
  v_mov_b32 v3, 0
  ds_write_b64 v1, v[2:3]
L_noinit:
  s_waitcnt lgkmcnt(0)
  s_cmp_eq_u32 s{S_BR}, 0
  s_cselect_b32 s{SRD_X}, s{S_PTR+0}, s{S_PTR+6}
  s_cselect_b32 s{SRD_X+1}, s{S_PTR+1}, s{S_PTR+7}
  s_cselect_b32 s{SRD_W}, s{S_PTR+2}, s{S_PTR+8}
  s_cselect_b32 s{SRD_W+1}, s{S_PTR+3}, s{S_PTR+9}
  s_cselect_b32 s{SRD_WO}, s{S_PTR+4}, s{S_PTR+10}
  s_cselect_b32 s{SRD_WO+1}, s{S_PTR+5}, s{S_PTR+11}
  s_mov_b32 s{SRD_X+2}, 0x200000
  s_mov_b32 s{SRD_X+3}, 0x20000
  s_mov_b32 s{SRD_W+2}, 0x180000
  s_mov_b32 s{SRD_W+3}, 0x20000
  s_mov_b32 s{SRD_WO+2}, 0x80000
  s_mov_b32 s{SRD_WO+3}, 0x20000
  s_mov_b32 s{SRD_OUT}, s{S_PTR+12}
  s_mov_b32 s{SRD_OUT+1}, s{S_PTR+13}
  s_mov_b32 s{SRD_OUT+2}, 0x400000
  s_mov_b32 s{SRD_OUT+3}, 0x20000
  s_mov_b32 s{SRD_WS}, s{S_WS}
  s_mov_b32 s{SRD_WS+1}, s{S_WS+1}
  s_mov_b32 s{SRD_WS+2}, 0x500000
  s_mov_b32 s{SRD_WS+3}, 0x20000
  s_mov_b32 s{S_DBG}, s{S_PTR+14}
  s_mov_b32 s{S_DBG+1}, s{S_PTR+15}""")
if NSTAMP:
    A(f"""  s_add_u32 s{S_STB}, s{S_WS}, {STAMP_OFF}
  s_addc_u32 s{S_STB+1}, s{S_WS+1}, 0
  s_mul_i32 s{S_T1}, s2, {8*NSTAMP}
  s_add_u32 s{S_STB}, s{S_STB}, s{S_T1}
  s_addc_u32 s{S_STB+1}, s{S_STB+1}, 0""")
A("  s_barrier")
A(f"  s_cmp_ge_u32 s{S_WV}, 4\n  s_cbranch_scc1 L_loader")

def stage_expr(t):
    o = args.order
    if o == "plain":
        A(f"  s_mov_b32 s{S_T0}, {t}")
    elif o == "rot8":
        A(f"  s_add_u32 s{S_T0}, s{S_ORD}, {t}\n  s_and_b32 s{S_T0}, s{S_T0}, 7")
    elif o.startswith("g2"):
        seqs = {"g2a": "a0 a1 b0 a2 b1 a3 b2 b3", "g2b": "a0 a1 a2 a3 b0 b1 b2 b3", "g2c": "a0 b0 a1 b1 a2 b2 a3 b3", "g2d": "a0 a1 a2 b0 b1 a3 b2 b3"}
        k, p = seqs[o].split()[t][0], int(seqs[o].split()[t][1])
        A(f"  s_xor_b32 s{S_T0}, s{S_ORD}, {2*p + (1 if k == 'b' else 0)}")
    elif o.startswith("g4"):
        seqs = {"g4a": "00 01 02 10 03 11 12 13", "g4b": "00 10 01 02 03 11 12 13", "g4c": "00 01 10 02 03 11 12 13", "g4d": "00 01 02 03 10 11 12 13"}
        g, r = int(seqs[o].split()[t][0]), int(seqs[o].split()[t][1])
        A(f"  s_add_u32 s{S_T0}, s{S_ORD}, {r}\n  s_and_b32 s{S_T0}, s{S_T0}, 3\n  s_add_u32 s{S_T0}, s{S_T0}, {4*g}")

V_LANE = 0
V_XA = 1
V_WA = 2
V_FL = 3
V_ONE = 4
V_PA = 5
V_RA = 6
V_T = 7
ACC = 16
AQ = lambda b: ACC + 4 * b
AK = lambda b: ACC + 32 + 4 * b
AV = lambda b: ACC + 68 + 4 * b
FR = 120
FX = lambda buf, b: FR + 48 * buf + 4 * b
FW = lambda buf, seg: FR + 48 * buf + 36 + 4 * seg
V_EPS = 216
V_MISC = 220

A("L_comp:")
A(f"""  v_and_b32 v7, 15, v0
  v_lshrrev_b32 v8, 4, v0
  v_lshrrev_b32 v9, 1, v7
  v_xor_b32 v9, v9, v8
  v_lshlrev_b32 v9, 4, v9
  v_lshl_add_u32 v{V_XA}, v7, 7, v9
  v_xor_b32 v{V_MISC}, 64, v{V_XA}""")
V_XA1 = V_MISC
A(f"""  v_lshrrev_b32 v9, 2, v7
  v_lshl_add_u32 v9, v8, 3, v9          ; row = 8g + (i>>2)
  v_lshrrev_b32 v10, 1, v9
  v_and_b32 v10, 1, v10
  v_and_b32 v11, 1, v8
  v_lshl_or_b32 v10, v11, 1, v10        ; f
  v_xor_b32 v10, s{S_WV}, v10           ; pair'
  v_lshlrev_b32 v10, 5, v10
  v_lshl_add_u32 v10, v9, 7, v10
  v_and_b32 v11, 3, v7
  v_lshl_add_u32 v{V_WA}, v11, 3, v10
  v_add_u32 v{V_WA}, {WBASE}, v{V_WA}
  v_mov_b32 v{V_ONE}, 1
  s_lshl_b32 s{S_T0}, s{S_WV}, 2
  s_add_u32 s{S_T0}, s{S_T0}, {F_PROG}
  v_lshlrev_b32 v{V_PA}, 4, v0
  v_add_u32 v{V_PA}, s{S_T0}, v{V_PA}
  v_mov_b32 v{V_RA}, {F_READY}""")
A(f"""  s_lshl_b32 s{S_T0}, s{S_HG}, 2
  s_add_u32 s{S_T0}, s{S_T0}, s{S_WV}     ; head
  s_lshl_b32 s{S_OB}, s{S_T0}, 9
  s_lshl_b32 s{S_T1}, s{S_RB}, 17
  s_add_u32 s{S_OB}, s{S_OB}, s{S_T1}
  s_lshl_b32 s{S_T1}, s{S_BR}, 21
  s_add_u32 s{S_OB}, s{S_OB}, s{S_T1}
  s_mul_i32 s{S_C3}, s{S_T0}, {KVH}
  s_add_u32 s{S_C3}, s{S_C3}, {WS_KV}""")
V_OA = V_MISC + 1
A(f"""  v_and_b32 v9, 1, v8
  v_lshlrev_b32 v9, 14, v9
  v_lshrrev_b32 v10, 1, v8
  v_lshl_add_u32 v9, v10, 8, v9
  v_lshl_add_u32 v{V_OA}, v7, 4, v9""")
A(f"""  s_cmp_lg_u32 s{S_WV}, 0
  s_cbranch_scc1 L_nfz
  v_mov_b32 v9, 0
  s_mov_b64 exec, 1
  buffer_store_dword v9, v9, s[{SRD_WS}:{SRD_WS+3}], s{S_FLG} offen sc1
  s_mov_b64 exec, -1
L_nfz:""")
A(f"  s_cmp_eq_u32 s{S_BR}, 0\n  s_cbranch_scc0 L_compB")

def reads(s, isA):
    buf = s & 1; t = s // 2; kk = s & 1
    xb = (t % NXS) * XSLOT
    va = V_XA if kk == 0 else V_XA1
    r = []
    wb = (s % NWS) * WSLOT
    for seg in range(3):
        d = FW(buf, seg)
        r.append(f"  ds_read_b64_tr_b16 v[{d}:{d+1}], v{V_WA} offset:{wb + seg*4096}")
        r.append(f"  ds_read_b64_tr_b16 v[{d+2}:{d+3}], v{V_WA} offset:{wb + seg*4096 + 512}")
    for b in range(8):
        d = FX(buf, b)
        r.append(f"  ds_read_b128 v[{d}:{d+3}], v{va} offset:{xb + 2048 + b*2048}")
    if isA:
        d = FX(buf, 8)
        r.append(f"  ds_read_b128 v[{d}:{d+3}], v{va} offset:{xb}")
    return r
def mfmas(s, isA):
    buf = s & 1
    m = []
    def mm(acc, a, b, cinit):
        c = f"v[{acc}:{acc+3}]" if s > 0 else cinit
        m.append(f"  v_mfma_f32_16x16x32_bf16 v[{acc}:{acc+3}], v[{a}:{a+3}], v[{b}:{b+3}], {c}")
    eps = "0" if isA else f"v[{V_EPS}:{V_EPS+3}]"
    blocks = list(range(8))
    for b in blocks:
        x = FX(buf, b)
        if isA:
            mm(AK(b), FW(buf, 1), x, "0")
        else:
            mm(AK(b), x, FW(buf, 1), eps)
        mm(AV(b), x, FW(buf, 2), "0")
        mm(AQ(b), FW(buf, 0), x, eps)
    if isA:
        x = FX(buf, 8)
        mm(AK(8), FW(buf, 1), x, "0")
        mm(AV(8), x, FW(buf, 2), "0")
    return m
def interleave(m, r, start=2):
    o = []; ri = 0
    for i, x in enumerate(m):
        o.append(x)
        if i >= start and ri < len(r):
            o.append(r[ri]); ri += 1
    o += r[ri:]
    return o

V_WA2 = V_MISC + 2
def fix_w(line):
    import re
    m = re.match(r"(.*), v%d offset:(\d+)$" % V_WA, line)
    if m and int(m.group(2)) >= 49152:
        return f"{m.group(1)}, v{V_WA2} offset:{int(m.group(2)) - 49152}"
    return line
V_XB0 = V_MISC + 3; V_XB1 = V_MISC + 4
def fix_x(line):
    import re
    for v, v2 in ((V_XA, V_XB0), (V_XA1, V_XB1)):
        m = re.match(r"(.*), v%d offset:(\d+)$" % v, line)
        if m and int(m.group(2)) >= 36864:
            return f"{m.group(1)}, v{v2} offset:{int(m.group(2)) - 36864}"
    return line

def arrive(counter, target, tag, vone, store):
    A(f"""  v_mov_b32 v11, {counter}
  s_mov_b64 exec, 1
  ds_add_rtn_u32 v12, v11, v{vone}
  s_waitcnt lgkmcnt(0)
  v_readfirstlane_b32 s{S_T0}, v12
  s_nop 3
  s_cmp_lg_u32 s{S_T0}, {target}
  s_cbranch_scc1 L_nf{tag}
{store}
L_nf{tag}:
  s_mov_b64 exec, -1""")
def init_arrive(tag, vone=8):
    arrive(F_INIT, 3, tag, vone, f"  v_mov_b32 v11, s{S_FI}\n  global_store_byte v11, v{vone}, s[{S_DBG}:{S_DBG+1}] sc1")
def signal_done(tag):
    A("  s_waitcnt vmcnt(0)")
    arrive(F_DONE, 3, tag, V_ONE, f"  v_mov_b32 v11, 0\n  buffer_store_dword v{V_ONE}, v11, s[{SRD_WS}:{SRD_WS+3}], s{S_FLG} offen sc1")

def mainloop(isA):
    tag = "A" if isA else "B"
    A(f"  v_add_u32 v{V_WA2}, 49152, v{V_WA}\n  v_add_u32 v{V_XB0}, 36864, v{V_XA}\n  v_add_u32 v{V_XB1}, 36864, v{V_XA1}")
    A(f"""L_p0{tag}:
  ds_read_b32 v{V_FL}, v{V_RA}
  s_waitcnt lgkmcnt(0)
  v_readfirstlane_b32 s{S_T0}, v{V_FL}
  s_nop 3
  s_cmp_eq_u32 s{S_T0}, 4
  s_cbranch_scc1 L_g0{tag}
  s_add_u32 s{S_SPIN}, s{S_SPIN}, 1
  s_cmp_gt_u32 s{S_SPIN}, 0x40000
  s_cbranch_scc1 L_g0{tag}
  s_sleep 1
  s_branch L_p0{tag}
L_g0{tag}:""")
    stamp(1)
    for x in reads(0, isA): A(fix_x(fix_w(x)))
    A(f"  ds_read_b32 v{V_FL}, v{V_RA} offset:4")
    slow = []
    for s in range(16):
        A(f"L_s{s}{tag}:")
        if args.steps: A("  s_memrealtime s[98:99]")
        A("  s_waitcnt lgkmcnt(0)")
        if args.steps: A(f"  v_writelane_b32 v255, s98, {2*s}\n  v_writelane_b32 v255, s99, {2*s+1}")
        A(f"  ds_add_u32 v{V_PA}, v{V_ONE}")
        if s == args.initstep:
            A("  s_waitcnt vmcnt(0)")
            init_arrive("I" + tag, V_ONE)
        m = mfmas(s, isA)
        if s == 15:
            for x in m: A(x)
            break
        r = [fix_x(fix_w(x)) for x in reads(s + 1, isA)]
        if s + 2 < 16: r.append(f"  ds_read_b32 v{V_FL}, v{V_RA} offset:{4*(s+2)}")
        A(f"  v_readfirstlane_b32 s{S_T0}, v{V_FL}")
        A(m[0]); A(m[1])
        A(f"  s_cmp_eq_u32 s{S_T0}, 4\n  s_cbranch_scc0 L_slow{s}{tag}")
        for x in interleave(m[2:], r, start=0): A(x)
        sl = [f"L_slow{s}{tag}:"] + m[2:]
        sl.append(f"""L_sp{s}{tag}:
  ds_read_b32 v{V_FL}, v{V_RA} offset:{4*(s+1)}
  s_waitcnt lgkmcnt(0)
  v_readfirstlane_b32 s{S_T0}, v{V_FL}
  s_nop 3
  s_cmp_eq_u32 s{S_T0}, 4
  s_cbranch_scc1 L_sg{s}{tag}
  s_add_u32 s{S_SPIN}, s{S_SPIN}, 1
  s_cmp_gt_u32 s{S_SPIN}, 0x40000
  s_cbranch_scc1 L_sg{s}{tag}
  s_sleep 1
  s_branch L_sp{s}{tag}
L_sg{s}{tag}:""")
        sl += r
        sl.append(f"  s_branch L_s{s+1}{tag}")
        slow.append("\n".join(sl))
    return slow

slowA = mainloop(True)
stamp(2)
C("---- epilogue A: attention in registers ----")
MK = V_MISC + 6
MK0 = V_MISC + 10
V_HI = V_MISC + 14
V_PV = V_MISC + 15
V_ONES = V_MISC + 16
A(f"""  v_and_b32 v7, 15, v0
  v_lshrrev_b32 v8, 4, v0
  v_lshlrev_b32 v9, 2, v8
  v_sub_u32 v9, v7, v9                   ; u - 4g
  s_mov_b32 s{S_C0}, 0xf149f2ca
  v_mov_b32 v10, s{S_C0}""")
for r in range(4):
    A(f"""  v_subrev_u32 v11, {r}, v9
  v_and_b32 v12, 15, v11
  v_cmp_gt_u32 vcc, 8, v12
  s_nop 1
  v_cndmask_b32 v{MK+r}, v10, 0, vcc
  v_cmp_gt_u32 vcc, 8, v11
  s_nop 1
  v_cndmask_b32 v{MK0+r}, v10, 0, vcc""")
A(f"""  s_cmp_eq_u32 s{S_RB}, 0
  s_cbranch_scc1 L_m0
  v_mov_b32 v{MK0}, v{MK}
  v_mov_b32 v{MK0+1}, v{MK+1}
  v_mov_b32 v{MK0+2}, v{MK+2}
  v_mov_b32 v{MK0+3}, v{MK+3}
L_m0:
  v_cmp_lt_u32 s[{S_M0}:{S_M0+1}], 7, v7     ; u>=8
  v_cmp_lt_u32 vcc, 1, v8                 ; g>=2
  s_nop 1
  v_cndmask_b32 v{V_HI}, 0, -1, s[{S_M0}:{S_M0+1}]
  s_andn2_b64 s[{S_M1}:{S_M1+1}], vcc, s[{S_M0}:{S_M0+1}]
  v_mov_b32 v{V_ONES}, 0x3f803f80
  v_mov_b32 v{V_ONES+1}, 0x3f803f80
  v_cndmask_b32 v{V_PV}, 0, -1, s[{S_M1}:{S_M1+1}]
  v_mov_b32 v{V_ONES+2}, 0x3f803f80
  v_mov_b32 v{V_ONES+3}, 0x3f803f80""")
K4 = lambda b: 120 + 4 * b
Q4 = lambda b: 152 + 4 * b
VP = lambda p, i: 184 + 10 * p + 2 * i
KH = 204; KH2 = 206; TT = 208
blk = lambda t, p: 2 * t + p
def cvt(d, a):
    A(f"  v_cvt_pk_bf16_f32 v{d}, v{a}, v{a+1}\n  v_cvt_pk_bf16_f32 v{d+1}, v{a+2}, v{a+3}")
for b in range(8):
    cvt(K4(b), AK(b))
    cvt(VP(b & 1, (b >> 1) + 1), AV(b))
    cvt(TT, AQ(b))
    A(f"  v_and_b32 v{Q4(b)}, v{TT}, v{V_HI}\n  v_and_b32 v{Q4(b)+1}, v{TT+1}, v{V_HI}")
    A(f"  v_xor_b32 v{Q4(b)+2}, v{TT}, v{Q4(b)}\n  v_xor_b32 v{Q4(b)+3}, v{TT+1}, v{Q4(b)+1}")
cvt(KH, AK(8))
cvt(VP(1, 0), AV(8))
A(f"""  s_nop 1
  v_mov_b32_dpp v{KH2}, v{KH} row_ror:8 row_mask:0xf bank_mask:0xf
  v_mov_b32_dpp v{KH2+1}, v{KH+1} row_ror:8 row_mask:0xf bank_mask:0xf
  v_mov_b32 v{VP(0,0)}, v{VP(1,0)}
  v_mov_b32 v{VP(0,0)+1}, v{VP(1,0)+1}
  v_mov_b32 v{TT}, v{VP(1,0)}
  v_mov_b32 v{TT+1}, v{VP(1,0)+1}
  s_nop 1
  v_permlane32_swap_b32 v{VP(0,0)}, v{TT}
  v_permlane32_swap_b32 v{VP(0,0)+1}, v{TT+1}""")
for b in range(8):
    t, p = b >> 1, b & 1
    prev = (KH2 if p == 0 else KH) if t == 0 else K4(blk(t - 1, p))
    A(f"  v_cndmask_b32 v{K4(b)+2}, v{K4(b)}, v{prev}, s[{S_M0}:{S_M0+1}]\n  v_cndmask_b32 v{K4(b)+3}, v{K4(b)+1}, v{prev+1}, s[{S_M0}:{S_M0+1}]")
A("  s_nop 1")
SS = lambda b: ACC + 4 * b
for b in range(8):
    mk = MK0 if b < 2 else MK
    A(f"  v_mfma_f32_16x16x32_bf16 v[{SS(b)}:{SS(b)+3}], v[{K4(b)}:{K4(b)+3}], v[{Q4(b)}:{Q4(b)+3}], v[{mk}:{mk+3}]")
A(f"  s_mov_b32 s{S_C0}, 0x3eb8aa3b")
MX = lambda b: 48 + b
MT = lambda b: 56 + b
A("  s_nop 4")
for b in range(8):
    A(f"  v_max3_f32 v{MX(b)}, v{SS(b)}, v{SS(b)+1}, v{SS(b)+2}")
for b in range(8):
    A(f"  v_max_f32 v{MX(b)}, v{MX(b)}, v{SS(b)+3}")
for swp in ("v_permlane16_swap_b32", "v_permlane32_swap_b32"):
    for b in range(8): A(f"  v_mov_b32 v{MT(b)}, v{MX(b)}")
    for b in range(8): A(f"  {swp} v{MX(b)}, v{MT(b)}")
    for b in range(8): A(f"  v_max_f32 v{MX(b)}, v{MX(b)}, v{MT(b)}")
for b in range(8): A(f"  v_mul_f32 v{MX(b)}, s{S_C0}, v{MX(b)}")
for b in range(8):
    for r in range(4): A(f"  v_fma_f32 v{SS(b)+r}, v{SS(b)+r}, s{S_C0}, -v{MX(b)}")
for b in range(8):
    for r in range(4): A(f"  v_exp_f32 v{SS(b)+r}, v{SS(b)+r}")
P4 = lambda b: 64 + 4 * b
for b in range(8):
    cvt(MT(0) + 2 * (b & 1), SS(b))
    tt = MT(0) + 2 * (b & 1)
    A(f"  v_and_b32 v{P4(b)}, v{tt}, v{V_PV}\n  v_and_b32 v{P4(b)+1}, v{tt+1}, v{V_PV}")
    A(f"  v_xor_b32 v{P4(b)+2}, v{tt}, v{P4(b)}\n  v_xor_b32 v{P4(b)+3}, v{tt+1}, v{P4(b)+1}")
A("  s_nop 1")
OO = lambda b: 120 + 4 * b
SM = lambda b: 152 + 4 * b
for b in range(8):
    t, p = b >> 1, b & 1
    A(f"  v_mfma_f32_16x16x32_bf16 v[{SM(b)}:{SM(b)+3}], v[{V_ONES}:{V_ONES+3}], v[{P4(b)}:{P4(b)+3}], 0")
    A(f"  v_mfma_f32_16x16x32_bf16 v[{OO(b)}:{OO(b)+3}], v[{VP(p,t)}:{VP(p,t)+3}], v[{P4(b)}:{P4(b)+3}], 0")
A("  s_nop 2")
for b in range(8): A(f"  v_rcp_f32 v{SM(b)}, v{SM(b)}")
for b in range(8):
    for r in range(4): A(f"  v_mul_f32 v{OO(b)+r}, v{OO(b)+r}, v{SM(b)}")
def store_frags(src):
    for t in range(4):
        d = ACC + 4 * t
        cvt(d, src(2 * t)); cvt(d + 2, src(2 * t + 1))
    A("  s_nop 0")
    for t in range(4):
        d = ACC + 4 * t
        A(f"  v_permlane16_swap_b32 v{d}, v{d+2}\n  v_permlane16_swap_b32 v{d+1}, v{d+3}")
    for t in range(4):
        d = ACC + 4 * t
        A(f"  s_add_u32 s{S_T0}, s{S_OB}, {t*32768}")
        A(f"  buffer_store_dwordx4 v[{d}:{d+3}], v{V_OA}, s[{SRD_WS}:{SRD_WS+3}], s{S_T0} offen sc1")
store_frags(OO)
stamp(3)
signal_done("A")
stamp(4)
A(f"  s_cmp_lg_u32 s{S_WV}, 0\n  s_cbranch_scc1 L_end")
stamp_flush([0, 1, 2, 3, 4], 8)
A("  s_endpgm")
for s in slowA: A(s)

A("L_compB:")
A(f"""  s_mov_b32 s{S_C0}, 0x358637bd
  v_mov_b32 v{V_EPS}, s{S_C0}
  v_mov_b32 v{V_EPS+1}, s{S_C0}
  v_mov_b32 v{V_EPS+2}, s{S_C0}
  v_mov_b32 v{V_EPS+3}, s{S_C0}
  s_cmp_lg_u32 s{S_RB}, 0
  s_cbranch_scc1 L_nozero
  v_mov_b32 v8, 0
  v_mov_b32 v9, 0
  v_mov_b32 v10, 0
  v_mov_b32 v11, 0
  v_lshlrev_b32 v7, 4, v0
  buffer_store_dwordx4 v[8:11], v7, s[{SRD_WS}:{SRD_WS+3}], s{S_C3} offen sc1
  s_mov_b64 exec, 0xff
  buffer_store_dwordx4 v[8:11], v7, s[{SRD_WS}:{SRD_WS+3}], s{S_C3} offen offset:1024 sc1
  s_mov_b64 exec, -1""")
A("L_nozero:")
slowB = mainloop(False)
stamp(2)
C("---- epilogue B ----")
V_IF = V_MISC + 6
A(f"""  s_add_u32 s{S_T0}, s{S_HG}, 128
  v_mov_b32 v{V_IF+1}, s{S_T0}
  global_load_ubyte v{V_IF}, v{V_IF+1}, s[{S_DBG}:{S_DBG+1}] sc1
  s_mov_b32 s{S_C1}, 0x3fb8aa3b
  s_mov_b32 s{S_C2}, 0xb5c1a2a0""")
import struct
def f2u(x): return struct.unpack("<I", struct.pack("<f", x))[0]
out[-1] = out[-1].replace("0xb5c1a2a0", hex(f2u(-1e-6 * 1.4426950408889634)))
A(f"  v_mov_b32 v{V_IF+2}, s{S_C2}")
V_NC = V_IF + 2
PK = lambda b: 120 + 2 * b
VV = lambda b: 136 + 2 * b
ET = 152
def phi(acc, n, et):
    for i in range(n): A(f"  v_fma_f32 v{et+i}, v{acc+i}, s{S_C1}, v{V_NC}")
    for i in range(n): A(f"  v_exp_f32 v{et+i}, v{et+i} clamp")
    for i in range(n): A(f"  v_max_f32 v{acc+i}, s{S_C0}, v{acc+i}")
    for i in range(n): A(f"  v_add_f32 v{acc+i}, v{acc+i}, v{et+i}")
V_ONES = V_MISC + 16
A(f"  v_mov_b32 v{V_ONES}, 0x3f803f80\n  v_mov_b32 v{V_ONES+1}, 0x3f803f80\n  v_mov_b32 v{V_ONES+2}, 0x3f803f80\n  v_mov_b32 v{V_ONES+3}, 0x3f803f80")
for b in range(8): cvt(VV(b), AV(b))
phi(AK(0), 32, ET)
for b in range(8): cvt(PK(b), AK(b))
KVA = 184; ZA = 188
A("  s_nop 1")
for i in range(4):
    c = "0" if i == 0 else f"v[{KVA}:{KVA+3}]"
    A(f"  v_mfma_f32_16x16x32_bf16 v[{KVA}:{KVA+3}], v[{VV(2*i)}:{VV(2*i)+3}], v[{PK(2*i)}:{PK(2*i)+3}], {c}")
    c = "0" if i == 0 else f"v[{ZA}:{ZA+3}]"
    A(f"  v_mfma_f32_16x16x32_bf16 v[{ZA}:{ZA+3}], v[{V_ONES}:{V_ONES+3}], v[{PK(2*i)}:{PK(2*i)+3}], {c}")
A(f"""  v_lshlrev_b32 v7, 2, v0
  s_mov_b32 s{S_SPIN}, 0
L_ipoll:
  s_waitcnt vmcnt(0)
  v_readfirstlane_b32 s{S_T0}, v{V_IF}
  s_nop 3
  s_cmp_lg_u32 s{S_T0}, 0
  s_cbranch_scc1 L_iok
  s_add_u32 s{S_SPIN}, s{S_SPIN}, 1
  s_cmp_gt_u32 s{S_SPIN}, 0x40000
  s_cbranch_scc1 L_iok
  s_sleep 1
  global_load_ubyte v{V_IF}, v{V_IF+1}, s[{S_DBG}:{S_DBG+1}] sc1
  s_branch L_ipoll
L_iok:
  s_nop 4""")
for r in range(4):
    A(f"  buffer_atomic_add_f32 v{KVA+r}, v7, s[{SRD_WS}:{SRD_WS+3}], s{S_C3} offen offset:{256*r}")
A(f"""  s_mov_b64 exec, 0xffff
  buffer_atomic_add_f32 v{ZA}, v7, s[{SRD_WS}:{SRD_WS+3}], s{S_C3} offen offset:1024
  s_mov_b64 exec, -1""")
phi(AQ(0), 32, ET)
store_frags(AQ)
stamp(3)
signal_done("B")
stamp(4)
C("---- phase 2 producer (B) ----")
A(f"""  s_cmp_lg_u32 s{S_WV}, 0
  s_cbranch_scc1 L_bwait
  v_lshlrev_b32 v7, 2, v0
  v_add_u32 v7, 128, v7
  s_mov_b32 s{S_T1}, 0x01010101
  s_mov_b32 exec_hi, 0
L_bipoll:
  global_load_dword v8, v7, s[{S_DBG}:{S_DBG+1}] sc1
  s_waitcnt vmcnt(0)
  v_cmp_eq_u32 vcc, s{S_T1}, v8
  s_nop 3
  s_cmp_eq_u32 vcc_lo, -1
  s_cbranch_scc1 L_biok
  s_add_u32 s{S_SPIN}, s{S_SPIN}, 1
  s_cmp_gt_u32 s{S_SPIN}, 0x40000
  s_cbranch_scc1 L_biok
  s_sleep 4
  s_branch L_bipoll
L_biok:
  s_mov_b64 exec, -1
  v_lshlrev_b32 v7, 7, v0
  s_mov_b32 s{S_T1}, {WS_FLG + 128*128}
  s_mov_b32 s{S_T2}, {WS_FLG + 192*128}
L_bpoll:
  buffer_load_dword v8, v7, s[{SRD_WS}:{SRD_WS+3}], s{S_T1} offen sc1
  buffer_load_dword v9, v7, s[{SRD_WS}:{SRD_WS+3}], s{S_T2} offen sc1
  s_waitcnt vmcnt(0)
  v_and_b32 v8, v8, v9
  v_cmp_ne_u32 vcc, 1, v8
  s_and_b64 exec, exec, vcc
  s_cbranch_execz L_bok
  s_add_u32 s{S_SPIN}, s{S_SPIN}, 1
  s_cmp_gt_u32 s{S_SPIN}, 0x40000
  s_cbranch_scc1 L_bok
  s_sleep {args.psleep}
  s_branch L_bpoll
L_bok:
  s_mov_b64 exec, -1
L_bwait:
  s_barrier""")
stamp(5)
A(f"""  v_and_b32 v7, 31, v0
  v_lshrrev_b32 v8, 5, v0
  v_lshrrev_b32 v9, 4, v7
  v_lshlrev_b32 v9, 14, v9
  v_lshl_add_u32 v9, v8, 8, v9
  v_and_b32 v10, 15, v7
  v_lshl_add_u32 v1, v10, 4, v9
  v_and_b32 v9, 3, v7                      ; e&3
  v_lshrrev_b32 v10, 2, v7
  v_and_b32 v11, 1, v10
  v_lshrrev_b32 v10, 1, v10
  v_and_b32 v10, 1, v10
  v_lshl_or_b32 v10, v11, 1, v10           ; e>>2
  v_lshl_add_u32 v9, v9, 2, v10            ; row'
  v_cmp_lt_u32 vcc, 15, v7
  s_nop 1
  v_cndmask_b32 v9, v9, 16, vcc
  v_lshlrev_b32 v9, 6, v9
  v_lshl_add_u32 v2, v8, 5, v9
  s_lshl_b32 s{S_C1}, s{S_RB2}, 16
  s_add_u32 s{S_C1}, s{S_C1}, 0x200000""")
PQR = lambda i, hh, rg: 16 + ((i * 2 + hh) * 2 + rg) * 4
KVR = lambda i, hh: 80 + (i * 2 + hh) * 8
KVP = lambda i, hh: 144 + (i * 2 + hh) * 4
for i in range(4):
    A(f"""  s_add_u32 s{S_T0}, s{S_CB}, {i}
  s_and_b32 s{S_T0}, s{S_T0}, 3
  s_lshl_b32 s{S_T0}, s{S_T0}, 2
  s_add_u32 s{S_T0}, s{S_T0}, s{S_WV}        ; hp
  s_mul_i32 s{S_T1}, s{S_T0}, {2*KVH}
  s_add_u32 s{S_T1}, s{S_T1}, {WS_KV}
  s_lshl_b32 s{S_T2}, s{S_T0}, 10
  s_add_u32 s{S_T2}, s{S_T2}, s{S_C1}
  s_add_u32 s{S_T3}, s{S_T2}, 32768""")
    for hh in range(2):
        k = KVR(i, hh)
        A(f"  buffer_load_dwordx4 v[{k}:{k+3}], v2, s[{SRD_WS}:{SRD_WS+3}], s{S_T1} offen offset:{hh*KVH} sc1")
        A(f"  buffer_load_dwordx4 v[{k+4}:{k+7}], v2, s[{SRD_WS}:{SRD_WS+3}], s{S_T1} offen offset:{hh*KVH+16} sc1")
        for rg in range(2):
            d = PQR(i, hh, rg)
            so = S_T2 if rg == 0 else S_T3
            A(f"  buffer_load_dwordx4 v[{d}:{d+3}], v1, s[{SRD_WS}:{SRD_WS+3}], s{so} offen offset:{hh*512} sc1")
DD = lambda u: 176 + 16 * u
for i in range(4):
    A(f"  s_waitcnt vmcnt({8*(3-i)})")
    for hh in range(2):
        k = KVR(i, hh); p = KVP(i, hh)
        cvt(p, k); cvt(p + 2, k + 4)
    A("  s_nop 1")
    for hh in range(2):
        for rg in range(2):
            u = hh * 2 + rg; d = DD(u); p = KVP(i, hh); q = PQR(i, hh, rg)
            A(f"  v_mfma_f32_32x32x16_bf16 v[{d}:{d+15}], v[{p}:{p+3}], v[{q}:{q+3}], 0")
    A(f"""  s_add_u32 s{S_T0}, s{S_CB}, {i}
  s_and_b32 s{S_T0}, s{S_T0}, 3
  s_lshl_b32 s{S_T0}, s{S_T0}, 2
  s_add_u32 s{S_T0}, s{S_T0}, s{S_WV}
  s_lshl_b32 s{S_T0}, s{S_T0}, 10
  v_add_u32 v3, s{S_T0}, v1
  s_nop 7""")
    for u in range(4):
        d = DD(u)
        if u == 3: A("  s_nop 3")
        A(f"  v_add_f32 v{d+8}, s{S_C0}, v{d+8}\n  v_rcp_f32 v{d+8}, v{d+8}")
    for u in range(4):
        d = DD(u)
        for r in range(8): A(f"  v_mul_f32 v{d+r}, v{d+r}, v{d+8}")
        cvt(d + 12, d); cvt(d + 14, d + 4)
        hh, rg = u >> 1, u & 1
        A(f"  ds_write_b128 v3, v[{d+12}:{d+15}] offset:{rg*32768 + hh*512}")
    A("  s_waitcnt lgkmcnt(0)\n  s_barrier")
A(f"  s_cmp_lg_u32 s{S_WV}, 0\n  s_cbranch_scc1 L_end")
stamp_flush([0, 1, 2, 3, 4, 5], 8)
A("  s_endpgm")
for s in slowB: A(s)

A("L_loader:")
VX0 = 1; VX1 = 2; VW0 = 3; VW1 = 4; VWO = 5; VFA = 6; VTW = 9; VZ = 10; VONE = 8
A(f"""  v_lshrrev_b32 v11, 3, v0
  v_and_b32 v12, 7, v0
  v_lshrrev_b32 v13, 4, v0
  v_xor_b32 v14, v12, v13
  v_lshlrev_b32 v14, 4, v14
  v_lshl_add_u32 v{VX0}, v11, 11, v14
  v_xor_b32 v{VX1}, 64, v{VX0}
  v_and_b32 v13, 1, v13
  v_lshlrev_b32 v13, 1, v13
  v_xor_b32 v14, v12, v13
  v_lshlrev_b32 v14, 4, v14
  v_mul_u32_u24 v{VW0}, 3072, v11
  v_add_u32 v{VW0}, v{VW0}, v14
  v_xor_b32 v{VW1}, 64, v{VW0}
  v_lshrrev_b32 v11, 2, v0
  v_and_b32 v12, 3, v0
  v_lshrrev_b32 v13, 5, v0
  v_lshlrev_b32 v13, 1, v13
  v_xor_b32 v12, v12, v13
  v_lshlrev_b32 v12, 4, v12
  v_lshl_add_u32 v{VWO}, v11, 10, v12
  v_mov_b32 v{VFA}, {FLG}
  v_lshlrev_b32 v{VTW}, 7, v0
  v_mov_b32 v{VZ}, 0
  v_mov_b32 v{VONE}, 1
  s_sub_u32 s{S_WV}, s{S_WV}, 4""")
for w in range(4):
    A(f"  s_cmp_eq_u32 s{S_WV}, {w}\n  s_cbranch_scc1 L_ld{w}")
lbl = [0]
def wait_prog(n):
    if n <= 0: return
    lbl[0] += 1; L = lbl[0]
    A(f"""L_wp{L}:
  ds_read_b128 v[12:15], v{VFA} offset:{F_PROG-FLG}
  s_waitcnt lgkmcnt(0)
  v_min_u32 v12, v12, v13
  v_min_u32 v14, v14, v15
  v_min_u32 v12, v12, v14
  s_nop 0
  v_readfirstlane_b32 s{S_T0}, v12
  s_nop 3
  s_cmp_ge_u32 s{S_T0}, {n}
  s_cbranch_scc1 L_wq{L}
  s_add_u32 s{S_SPIN}, s{S_SPIN}, 1
  s_cmp_gt_u32 s{S_SPIN}, 0x40000
  s_cbranch_scc1 L_wq{L}
  s_sleep 1
  s_branch L_wp{L}
L_wq{L}:""")
def wait_iss(n):
    if n <= 0: return
    lbl[0] += 1; L = lbl[0]
    A(f"""L_wi{L}:
  ds_read_b32 v12, v{VFA} offset:{F_ISS-FLG}
  s_waitcnt lgkmcnt(0)
  v_readfirstlane_b32 s{S_T0}, v12
  s_nop 3
  s_cmp_ge_u32 s{S_T0}, {n}
  s_cbranch_scc1 L_wj{L}
  s_add_u32 s{S_SPIN}, s{S_SPIN}, 1
  s_cmp_gt_u32 s{S_SPIN}, 0x40000
  s_cbranch_scc1 L_wj{L}
  s_branch L_wi{L}
L_wj{L}:""")
def dma(vo, srd, soff_reg, imm, lds, extra=""):
    A(f"  s_add_u32 s{S_T1}, s{soff_reg}, {imm}\n  s_mov_b32 m0, {lds}\n  s_nop 0\n  buffer_load_dwordx4 v{vo}, s[{srd}:{srd+3}], s{S_T1} offen{extra} lds")
cells = []
for i in range(NXS):
    for c in range(18): cells.append((2 * (4 + i) + 1, i * XSLOT + c * 1024))
for s in range(9, 16):
    for c in range(12): cells.append((s, WBASE + (s % NWS) * WSLOT + c * 1024))
cells.sort()
cells = cells[:128]
wcell = [[cells[k * 4 + w] for k in range(32)] for w in range(4)]
TOUCH_STEP = args.touch
DEPTH = args.depth
def group_ops(s):
    t = s // 2
    wb = WBASE + (s % NWS) * WSLOT
    ops = []
    for seg in range(3):
        for m in range(4):
            ops.append(("W", VW0 if m % 2 == 0 else VW1, ((s & 1) * 32 + m * 8) * 3072 + seg * 1024, wb + seg * 4096 + m * 1024))
    if s % 2 == 0:
        xb = (t % NXS) * XSLOT
        for b in range(8):
            for m in range(2):
                ops.append(("X", VX0 if m == 0 else VX1, (32 * (b >> 1) + (b & 1) + 16 * m) * 1024, xb + 2048 + b * 2048 + m * 1024))
        for m in range(2):
            ops.append(("H", VX0 if m == 0 else VX1, m * 1024, xb + m * 1024))
    return ops
def sig_ready(s):
    A(f"  s_mov_b64 exec, 1\n  ds_add_u32 v{VFA}, v{VONE} offset:{4*s}\n  s_mov_b64 exec, -1")
    if args.steps and w == 0:
        A(f"  s_memrealtime s[98:99]\n  s_waitcnt lgkmcnt(0)\n  v_writelane_b32 v31, s98, {2*s}\n  v_writelane_b32 v31, s99, {2*s+1}")
        if s == 15:
            A(f"  v_lshlrev_b32 v11, 2, v0\n  s_mov_b32 exec_hi, 0\n  global_store_dword v11, v31, s[{S_STB}:{S_STB+1}] offset:224\n  s_mov_b64 exec, -1")
for w in range(4):
    A(f"L_ld{w}:")
    cnt = []
    for s in range(16):
        wait_prog(s - 6)
        t = s // 2
        stage_expr(t)
        n = 0
        if s == TOUCH_STEP and w < 2:
            A(f"  s_lshl_b32 s{S_T1}, s{S_J}, 14\n  s_add_u32 s{S_T1}, s{S_T1}, {8192*w}\n  buffer_load_dword v7, v{VTW}, s[{SRD_WO}:{SRD_WO+3}], s{S_T1} offen")
            n += 1
        A(f"  s_mul_i32 s{S_T2}, s{S_T0}, 196608\n  s_add_u32 s{S_T2}, s{S_T2}, s{S_WB}")
        if s % 2 == 0:
            A(f"  s_lshl_b32 s{S_T3}, s{S_T0}, 7\n  s_add_u32 s{S_C0}, s{S_T3}, s{S_XB}\n  s_add_u32 s{S_C1}, s{S_T3}, s{S_XH}")
        for i, (kind, vo, imm, lds) in enumerate(group_ops(s)):
            if (i + (t & 1) * 2) % 4 != w: continue
            dma(vo, SRD_W if kind == "W" else SRD_X, {"W": S_T2, "X": S_C0, "H": S_C1}[kind], imm, lds)
            n += 1
        cnt.append(n)
        if s >= DEPTH:
            A(f"  s_waitcnt vmcnt({sum(cnt[s-DEPTH+1:])})")
            sig_ready(s - DEPTH)
    for s in range(16 - DEPTH, 16):
        A(f"  s_waitcnt vmcnt({sum(cnt[s+1:])})")
        sig_ready(s)
    A(f"  s_lshl_b32 s{S_C0}, s{S_CB}, 8\n  s_add_u32 s{S_C0}, s{S_C0}, {w*64}")
    last = -1
    for k, (fs, addr) in enumerate(wcell[w]):
        if fs != last:
            wait_prog(fs + 1); last = fs
        dma(VWO, SRD_WO, S_C0, k * 16384, addr)
    if w == 0: stamp(6)
    A(f"""  v_and_b32 v11, 15, v0
  v_lshrrev_b32 v12, 4, v0
  v_and_b32 v13, 1, v12
  v_lshrrev_b32 v14, 2, v11
  v_lshl_add_u32 v14, v13, 3, v14          ; r
  v_and_b32 v15, 3, v11
  v_lshlrev_b32 v13, 1, v13
  v_xor_b32 v15, v15, v13
  v_lshlrev_b32 v15, 4, v15
  v_lshl_add_u32 v7, v14, 6, v15
  v_cmp_lt_u32 s[{S_M0}:{S_M0+1}], 1, v12
  s_waitcnt vmcnt(0)""")
    WF = lambda ks, c: 128 + ks * 8 + c * 4
    for ks in range(16):
        a0 = wcell[w][2 * ks][1]; a1 = wcell[w][2 * ks + 1][1]
        A(f"  v_mov_b32 v11, {a0}\n  v_mov_b32 v12, {a1}\n  v_cndmask_b32 v11, v11, v12, s[{S_M0}:{S_M0+1}]\n  v_add_u32 v{16+ks}, v11, v7")
    for ks in range(16):
        for c in range(2):
            d = WF(ks, c)
            A(f"  ds_read_b64_tr_b16 v[{d}:{d+1}], v{16+ks} offset:{8*c}\n  ds_read_b64_tr_b16 v[{d+2}:{d+3}], v{16+ks} offset:{8*c+256}")
        if ks % 3 == 2: A("  s_waitcnt lgkmcnt(4)")
    A("  s_waitcnt lgkmcnt(0)")
    if w == 0: stamp(7)
    A("  s_branch L_p2")
A("L_p2:")
A(f"""  v_and_b32 v11, 15, v0
  v_lshrrev_b32 v12, 4, v0
  v_lshlrev_b32 v11, 12, v11
  v_lshl_add_u32 v8, v12, 4, v11           ; v8 = s*2*2048 + g*16
  v_lshlrev_b32 v9, 4, v0
  s_lshl_b32 s{S_C2}, s{S_RB2}, 17
  s_lshl_b32 s{S_T0}, s{S_BR}, 10
  s_add_u32 s{S_C2}, s{S_C2}, s{S_T0}
  s_lshl_b32 s{S_T0}, s{S_CB}, 8
  s_add_u32 s{S_C2}, s{S_C2}, s{S_T0}
  s_lshl_b32 s{S_T0}, s{S_WV}, 6
  s_add_u32 s{S_C2}, s{S_C2}, s{S_T0}
  s_cmp_lg_u32 s{S_BR}, 0
  s_cbranch_scc1 L_p2B""")
OA = lambda b, c: 32 + (b * 2 + c) * 4
OF = lambda buf, b: 64 + buf * 16 + b * 4
WF = lambda ks, c: 128 + ks * 8 + c * 4
def gemm_quarter(i, first):
    raise NotImplementedError
def p2_variant(cb, isA):
    tag = f"{'A' if isA else 'B'}{cb}"
    A(f"L_p2v{tag}:")
    def loads(q):
        A(f"  s_lshl_b32 s{S_T2}, s{S_WV}, 14\n  s_add_u32 s{S_T3}, s{S_T2}, s{S_C1}")
        for h in range(4):
            hp = 4 * q + h
            A(f"  s_add_u32 s{S_T1}, s{S_T3}, {hp*1024}\n  s_add_u32 s{S_T0}, s{S_T2}, {hp*1024}\n  s_mov_b32 m0, s{S_T0}\n  s_nop 0\n  buffer_load_dwordx4 v9, s[{SRD_WS}:{SRD_WS+3}], s{S_T1} offen sc1 lds")
    qs = [(cb + i) & 3 for i in range(4)]
    if isA:
        loads(qs[0])
        A("  s_waitcnt vmcnt(0)")
        for q in qs[1:]: loads(q)
    for i, q in enumerate(qs):
        if isA:
            A(f"  s_waitcnt vmcnt({4*(3-i)})")
        A("  s_barrier")
        if i == 0: stamp(9)
        for h in range(4):
            for b in range(4):
                d = OF(h & 1, b) if h < 2 else None
        for h in range(4):
            for b in range(4):
                d = 64 + (h * 4 + b) * 4
                A(f"  ds_read_b128 v[{d}:{d+3}], v9 offset:{b*16384 + (4*q+h)*1024}")
        for h in range(4):
            A(f"  s_waitcnt lgkmcnt({4*(3-h)})")
            ks = 4 * q + h
            for b in range(4):
                d = 64 + (h * 4 + b) * 4
                for c in range(2):
                    acc = OA(b, c); wf = WF(ks, c)
                    cin = "0" if (i == 0 and h == 0) else f"v[{acc}:{acc+3}]"
                    A(f"  v_mfma_f32_16x16x32_bf16 v[{acc}:{acc+3}], v[{wf}:{wf+3}], v[{d}:{d+3}], {cin}")
    A("  s_branch L_fin")
A(f"""  s_lshl_b32 s{S_C1}, s{S_RB2}, 16
  s_cmp_lg_u32 s{S_WV}, 0
  s_cbranch_scc1 L_await
  s_lshr_b32 s{S_T2}, s{S_RB2}, 1
  s_lshl_b32 s{S_T0}, s{S_T2}, 3
  v_mov_b32 v11, s{S_T0}
L_aipoll:
  global_load_dwordx2 v[12:13], v11, s[{S_DBG}:{S_DBG+1}] sc1
  s_waitcnt vmcnt(0)
  v_and_b32 v12, v12, v13
  s_nop 0
  v_readfirstlane_b32 s{S_T0}, v12
  s_nop 3
  s_cmp_eq_u32 s{S_T0}, 0x01010101
  s_cbranch_scc1 L_aiok
  s_add_u32 s{S_SPIN}, s{S_SPIN}, 1
  s_cmp_gt_u32 s{S_SPIN}, 0x40000
  s_cbranch_scc1 L_aiok
  s_sleep 4
  s_branch L_aipoll
L_aiok:
  s_lshl_b32 s{S_T2}, s{S_T2}, 10
  s_add_u32 s{S_T2}, s{S_T2}, {WS_FLG}
  v_lshlrev_b32 v11, 7, v0
  s_mov_b64 exec, 0xff
L_apoll:
  buffer_load_dword v12, v11, s[{SRD_WS}:{SRD_WS+3}], s{S_T2} offen sc1
  s_waitcnt vmcnt(0)
  v_cmp_ne_u32 vcc, 1, v12
  s_and_b64 exec, exec, vcc
  s_cbranch_execz L_aok
  s_add_u32 s{S_SPIN}, s{S_SPIN}, 1
  s_cmp_gt_u32 s{S_SPIN}, 0x40000
  s_cbranch_scc1 L_aok
  s_sleep {args.psleep}
  s_branch L_apoll
L_aok:
  s_mov_b64 exec, -1
L_await:
  s_barrier""")
stamp(8)
for cb in range(4): A(f"  s_cmp_eq_u32 s{S_CB}, {cb}\n  s_cbranch_scc1 L_p2vA{cb}")
for cb in range(4): p2_variant(cb, True)
A("L_p2B:\n  s_barrier")
stamp(8)
for cb in range(4): A(f"  s_cmp_eq_u32 s{S_CB}, {cb}\n  s_cbranch_scc1 L_p2vB{cb}")
for cb in range(4): p2_variant(cb, False)
A("L_fin:\n  s_nop 7")
for b in range(4):
    d = 64 + 4 * b
    cvt(d, OA(b, 0)); cvt(d + 2, OA(b, 1))
    A(f"  s_add_u32 s{S_T0}, s{S_C2}, {(32*(b>>1) + (b&1)) * 2048}")
    A(f"  buffer_store_dwordx4 v[{d}:{d+3}], v8, s[{SRD_OUT}:{SRD_OUT+3}], s{S_T0} offen")
stamp(10)
if NSTAMP:
    A("  s_waitcnt vmcnt(0)")
    stamp(11)
    A(f"  s_cmp_lg_u32 s{S_WV}, 0\n  s_cbranch_scc1 L_end")
    stamp_flush([6, 7, 8, 9, 10, 11], 12)
A("L_end:\n  s_endpgm")
A(f""".section .rodata,"a"
.p2align 6
.amdhsa_kernel {NAME}
  .amdhsa_next_free_vgpr 256
  .amdhsa_next_free_sgpr 102
  .amdhsa_accum_offset 256
  .amdhsa_group_segment_fixed_size 0
  .amdhsa_kernarg_size 72
  .amdhsa_user_sgpr_count 2
  .amdhsa_user_sgpr_kernarg_segment_ptr 1
  .amdhsa_system_sgpr_workgroup_id_x 1
.end_amdhsa_kernel""")
print("\n".join(out))
```

```python
import sys, argparse, struct
ap = argparse.ArgumentParser()
ap.add_argument("--stamps", type=int, default=0)
ap.add_argument("--order", type=str, default="rot8")
ap.add_argument("--dbg", type=str, default="")
ap.add_argument("--touch", type=int, default=4)
ap.add_argument("--psleep", type=int, default=2)
ap.add_argument("--maxfl", type=int, default=20)
ap.add_argument("--codepf", type=int, default=1)
ap.add_argument("--D", type=int, default=5)
ap.add_argument("--D0", type=int, default=2)
ap.add_argument("--ramp", type=int, default=4)
ap.add_argument("--bpos", type=int, default=3)
ap.add_argument("--cl", type=str, default="")
args = ap.parse_args()
NAME = "concat_heads__sliding_local_dilated__linear_attn_block__prompt_kernel"
out = []
def A(s): out.append(s)
def f2u(x): return struct.unpack("<I", struct.pack("<f", x))[0]
SPINMAX = "0x40000"
XSLOT = 18432; NXS = 4
WBASE = XSLOT * NXS
WSLOT = 12288; NWS = 7
LDS_TOTAL = WBASE + WSLOT * NWS
ORH = 81920
WS_KV = 4 << 20
KVH = 1152
WS_FLG = (4 << 20) + 65536
STAMP_OFF = 128 << 20
NSTAMP = args.stamps
S_PTR = 4; S_WS = 20; S_FLG = 22; S_SEQ = 23
SRD_X = 24; SRD_W = 28; SRD_WO = 32; SRD_OUT = 36; SRD_WS = 40
S_DBG = 44
S_BR = 46; S_RB = 47; S_HG = 48; S_RB2 = 49; S_CB = 50; S_WV = 51; S_J = 52; S_XQ = 53
S_XB = 54; S_XH = 55; S_WB = 56
S_T0 = 57; S_T1 = 58; S_T2 = 59; S_T3 = 60; S_IT = 61
S_M0 = 62; S_M1 = 64
S_XO = 66; S_WO = 67
S_C0 = 68; S_C1 = 69; S_C2 = 70; S_C3 = 71
S_OB = 72; S_SPIN = 73; S_STB = 74
S_ST = 76
S_CH = 12
S_A0 = 16; S_A1 = 17; S_A2 = 18; S_A3 = 19
S_Q = 4
S_HH = 54; S_RH = 55

def sreg(i): return S_ST + 2 * (i if i < 12 else i - 6)
def stamp(i):
    if i < NSTAMP: A(f"  s_memrealtime s[{sreg(i)}:{sreg(i)+1}]")
def stamp_flush(idxs, vtmp):
    if not NSTAMP: return
    A(f"  s_waitcnt lgkmcnt(0)\n  s_mov_b64 exec, 1\n  v_mov_b32 v{vtmp+2}, 0")
    for i in idxs:
        if i < NSTAMP:
            A(f"  v_mov_b32 v{vtmp}, s{sreg(i)}\n  v_mov_b32 v{vtmp+1}, s{sreg(i)+1}")
            A(f"  global_store_dwordx2 v{vtmp+2}, v[{vtmp}:{vtmp+1}], s[{S_STB}:{S_STB+1}] offset:{8*i}\n  s_nop 1")
    A("  s_mov_b64 exec, -1")
def spin(lbl_out):
    return f"  s_add_u32 s{S_SPIN}, s{S_SPIN}, 1\n  s_cmp_gt_u32 s{S_SPIN}, {SPINMAX}\n  s_cbranch_scc1 {lbl_out}"
def cvt(d, a):
    A(f"  v_cvt_pk_bf16_f32 v{d}, v{a}, v{a+1}\n  v_cvt_pk_bf16_f32 v{d+1}, v{a+2}, v{a+3}")
def quarters():
    for i in range(4):
        A(f"  s_add_u32 s{S_T0}, s{S_CB}, {i}\n  s_and_b32 s{S_T0}, s{S_T0}, 3\n  s_lshl_b32 s{S_Q+i}, s{S_T0}, 12")

A(f"; @launch grid=(256,1,1) block=(768,1,1) lds={LDS_TOTAL}")
A('.amdgcn_target "amdgcn-amd-amdhsa--gfx950"\n.text\n.globl %s\n.p2align 8\n.type %s,@function\n%s:' % (NAME, NAME, NAME))
A("  s_cmp_ge_u32 s2, 256\n  s_cbranch_scc1 L_end")
A(f"  s_load_dwordx16 s[{S_PTR}:{S_PTR+15}], s[0:1], 0\n  s_load_dwordx2 s[{S_WS}:{S_WS+1}], s[0:1], 64")
stamp(0)
A(f"""  v_lshrrev_b32 v1, 6, v0
  v_and_b32 v0, 63, v0
  v_readfirstlane_b32 s{S_WV}, v1
  s_and_b32 s{S_T0}, s2, 7
  s_lshr_b32 s{S_J}, s2, 3
  s_lshr_b32 s{S_BR}, s{S_T0}, 2
  s_and_b32 s{S_XQ}, s{S_T0}, 3
  s_lshr_b32 s{S_T1}, s{S_XQ}, 1
  s_lshl_b32 s{S_T1}, s{S_T1}, 3
  s_lshr_b32 s{S_T2}, s{S_J}, 2
  s_add_u32 s{S_RB}, s{S_T1}, s{S_T2}
  s_and_b32 s{S_T1}, s{S_XQ}, 1
  s_lshl_b32 s{S_T1}, s{S_T1}, 2
  s_and_b32 s{S_CB}, s{S_J}, 3
  s_add_u32 s{S_HG}, s{S_T1}, s{S_CB}
  s_lshl_b32 s{S_T1}, s{S_XQ}, 3
  s_add_u32 s{S_RB2}, s{S_T1}, s{S_T2}
  s_mov_b32 s{S_SPIN}, 0
  s_cmp_lt_u32 s{S_WV}, 8
  s_cbranch_scc1 L_comp""")

VX0 = 1; VX1 = 2; VW = 3; VXH = 4; VWO = 5; VTW = 9; VZ = 10
L_HL = S_C3; L_XL = S_C2; L_WL = S_C1
def seq_pack(l): return sum(x << (4 * i) for i, x in enumerate(l))
o = args.order
A(f"""  s_sub_u32 s{S_WV}, s{S_WV}, 8
  v_lshrrev_b32 v11, 3, v0
  v_and_b32 v12, 7, v0
  v_lshrrev_b32 v13, 4, v0
  v_xor_b32 v14, v12, v13
  v_lshlrev_b32 v14, 4, v14
  v_lshl_add_u32 v{VX0}, v11, 11, v14
  v_xor_b32 v{VX1}, 64, v{VX0}
  v_and_b32 v13, 1, v13
  v_lshlrev_b32 v13, 1, v13
  v_xor_b32 v14, v12, v13
  v_lshlrev_b32 v14, 4, v14
  v_mul_u32_u24 v{VW}, 3072, v11
  v_add_u32 v{VW}, v{VW}, v14
  s_and_b32 s{S_T0}, s{S_WV}, 1
  s_lshl_b32 s{S_T1}, s{S_T0}, 6
  v_xor_b32 v{VW}, s{S_T1}, v{VW}
  v_xor_b32 v{VXH}, s{S_T1}, v{VX0}
  s_lshl_b32 s{S_XB}, s{S_RB}, 17
  s_sub_u32 s{S_XH}, s{S_XB}, 16384
  s_max_i32 s{S_XH}, s{S_XH}, 0
  s_lshl_b32 s{L_HL}, s{S_T0}, 10
  s_add_u32 s{S_XH}, s{S_XH}, s{L_HL}
  s_lshl_b32 s{S_T1}, s{S_WV}, 15
  s_add_u32 s{S_XB}, s{S_XB}, s{S_T1}
  s_lshl_b32 s{L_XL}, s{S_WV}, 12
  s_add_u32 s{L_XL}, s{L_XL}, 2048
  s_lshl_b32 s{S_WB}, s{S_HG}, 7
  s_mul_i32 s{S_T1}, s{S_WV}, 24576
  s_add_u32 s{S_WB}, s{S_WB}, s{S_T1}
  s_lshl_b32 s{L_WL}, s{S_WV}, 10
  s_add_u32 s{L_WL}, s{L_WL}, {WBASE}""")
if o == "plain":
    A(f"  s_mov_b32 s{S_SEQ}, {hex(seq_pack(range(8)))}")
elif o == "rot8":
    A(f"""  s_lshl_b32 s{S_T1}, s{S_CB}, 1
  s_add_u32 s{S_T1}, s{S_T1}, s{S_T2}
  s_and_b32 s{S_T1}, s{S_T1}, 7
  s_mul_i32 s{S_T1}, s{S_T1}, 0x11111111
  s_add_u32 s{S_SEQ}, s{S_T1}, {hex(seq_pack(range(8)))}
  s_and_b32 s{S_SEQ}, s{S_SEQ}, 0x77777777""")
elif o.startswith("g2"):
    seqs = {"g2a": "a0 a1 b0 a2 b1 a3 b2 b3", "g2b": "a0 a1 a2 a3 b0 b1 b2 b3", "g2c": "a0 b0 a1 b1 a2 b2 a3 b3", "g2d": "a0 a1 a2 b0 b1 a3 b2 b3"}
    l = [2 * int(x[1]) + (x[0] == 'b') for x in seqs[o].split()]
    A(f"  s_add_u32 s{S_T1}, s{S_T2}, s{S_CB}\n  s_and_b32 s{S_T1}, s{S_T1}, 1\n  s_mul_i32 s{S_T1}, s{S_T1}, 0x11111111\n  s_xor_b32 s{S_SEQ}, s{S_T1}, {hex(seq_pack(l))}")
elif o.startswith("g4"):
    seqs = {"g4a": "00 01 02 10 03 11 12 13", "g4b": "00 10 01 02 03 11 12 13", "g4c": "00 01 10 02 03 11 12 13", "g4d": "00 01 02 03 10 11 12 13"}
    l = [4 * int(x[0]) + int(x[1]) for x in seqs[o].split()]
    A(f"  s_add_u32 s{S_T1}, s{S_T2}, s{S_CB}\n  s_and_b32 s{S_T1}, s{S_T1}, 3\n  s_mul_i32 s{S_T1}, s{S_T1}, 0x11111111\n  s_xor_b32 s{S_SEQ}, s{S_T1}, {hex(seq_pack(l))}")
def build_srds():
    A(f"""  s_waitcnt lgkmcnt(0)
  s_cmp_eq_u32 s{S_BR}, 0
  s_cselect_b32 s{SRD_X}, s{S_PTR+0}, s{S_PTR+6}
  s_cselect_b32 s{SRD_X+1}, s{S_PTR+1}, s{S_PTR+7}
  s_cselect_b32 s{SRD_W}, s{S_PTR+2}, s{S_PTR+8}
  s_cselect_b32 s{SRD_W+1}, s{S_PTR+3}, s{S_PTR+9}
  s_mov_b32 s{SRD_X+2}, 0x200000
  s_mov_b32 s{SRD_X+3}, 0x20000
  s_mov_b32 s{SRD_W+2}, 0x180000
  s_mov_b32 s{SRD_W+3}, 0x20000""")
def build_srds2():
    A(f"""  s_cmp_eq_u32 s{S_BR}, 0
  s_cselect_b32 s{SRD_WO}, s{S_PTR+4}, s{S_PTR+10}
  s_cselect_b32 s{SRD_WO+1}, s{S_PTR+5}, s{S_PTR+11}
  s_mov_b32 s{SRD_WO+2}, 0x80000
  s_mov_b32 s{SRD_WO+3}, 0x20000
  s_mov_b32 s{SRD_OUT}, s{S_PTR+12}
  s_mov_b32 s{SRD_OUT+1}, s{S_PTR+13}
  s_mov_b32 s{SRD_OUT+2}, 0x400000
  s_mov_b32 s{SRD_OUT+3}, 0x20000
  s_mov_b32 s{SRD_WS}, s{S_WS}
  s_mov_b32 s{SRD_WS+1}, s{S_WS+1}
  s_mov_b32 s{SRD_WS+2}, 0x500000
  s_mov_b32 s{SRD_WS+3}, 0x20000
  s_mov_b32 s{S_DBG}, s{S_PTR+14}
  s_mov_b32 s{S_DBG+1}, s{S_PTR+15}""")
    if NSTAMP:
        A(f"""  s_add_u32 s{S_STB}, s{S_WS}, {STAMP_OFF}
  s_addc_u32 s{S_STB+1}, s{S_WS+1}, 0
  s_mul_i32 s{S_T1}, s2, {8*NSTAMP}
  s_add_u32 s{S_STB}, s{S_STB}, s{S_T1}
  s_addc_u32 s{S_STB+1}, s{S_STB+1}, 0""")
build_srds()
def dma(vo, srd, sreg, imm, lreg, limm, extra=""):
    A(f"  s_add_u32 s{S_T1}, s{sreg}, {imm}\n  s_add_u32 m0, s{lreg}, {limm}\n  s_waitcnt vmcnt({args.maxfl-1})\n  buffer_load_dwordx4 v{vo}, s[{srd}:{srd+3}], s{S_T1} offen{extra} lds")
D = args.D
def gsize(g): return 8 if g == 0 else (3 if g == 15 else (6 if g & 1 else 5))
def xops(t, which):
    xl = (t % NXS) * XSLOT
    A(f"  s_lshr_b32 s{S_T0}, s{S_SEQ}, {4*t}\n  s_and_b32 s{S_T0}, s{S_T0}, 7\n  s_lshl_b32 s{S_T0}, s{S_T0}, 7\n  s_add_u32 s{S_T3}, s{S_T0}, s{S_XB}")
    lst = [(p, m) for p in range(2) for m in range(2)]
    for i in which:
        if i < 4:
            p, m = lst[i]
            dma(VX0 if m == 0 else VX1, SRD_X, S_T3, (p + 16 * m) * 1024, L_XL, xl + p * 2048 + m * 1024)
        else:
            A(f"  s_add_u32 s{S_C0}, s{S_T0}, s{S_XH}")
            dma(VXH, SRD_X, S_C0, 0, L_HL, xl)
def issue_group(g):
    t = g >> 1
    if g > 0 and g & 1 == 0: xops(t, [3, 4])
    A(f"""  s_lshr_b32 s{S_T0}, s{S_SEQ}, {4*t}
  s_and_b32 s{S_T0}, s{S_T0}, 7
  s_mul_i32 s{S_T2}, s{S_T0}, 196608
  s_add_u32 s{S_T2}, s{S_T2}, s{S_WB}""")
    wl = (g % NWS) * WSLOT
    for seg in range(3): dma(VW, SRD_W, S_T2, (g & 1) * 32 * 3072 + seg * 1024, L_WL, wl + seg * 4096)
    if g == 0: xops(0, [0, 1, 2, 3, 4])
    elif g & 1 and g < 15: xops(t + 1, [0, 1, 2])
    if g == 2 * args.touch + 1:
        A(f"""  v_lshlrev_b32 v{VTW}, 7, v0
  s_lshl_b32 s{S_T1}, s{S_J}, 14
  s_lshl_b32 s{S_T0}, s{S_WV}, 12
  s_add_u32 s{S_T1}, s{S_T1}, s{S_T0}
  s_mov_b32 exec_hi, 0
  buffer_load_dword v11, v{VTW}, s[{SRD_WO}:{SRD_WO+3}], s{S_T1} offen
  s_mov_b64 exec, -1""")
        return 1
    return 0
W23 = WBASE + 2 * WSLOT; W45 = WBASE + 4 * WSLOT
XC = lambda i, h: i * XSLOT + 2048 + 8192 * h
chunks = [[XC(0, 0), XC(0, 1), W23, W23 + 8192],
          [W23 + 16384, XC(1, 0), XC(1, 1), W45],
          [W45 + 8192, W45 + 16384, XC(2, 0), XC(2, 1)],
          [WBASE + 6 * WSLOT, WBASE, XC(3, 0), XC(3, 1)]]
freeat = [11, 12, 14, 99]
def chunk_sel(sreg):
    for i in range(4): A(f"  s_mov_b32 s{S_CH+i}, {chunks[i][0]}")
    for w in range(1, 4):
        A(f"  s_cmp_eq_u32 s{sreg}, {w}")
        for i in range(4): A(f"  s_cselect_b32 s{S_CH+i}, {chunks[i][w]}, s{S_CH+i}")
def lsetup():
    build_srds2()
    chunk_sel(S_WV)
    quarters()
    A(f"""  v_lshrrev_b32 v11, 2, v0
  v_and_b32 v12, 3, v0
  v_lshrrev_b32 v13, 5, v0
  v_lshlrev_b32 v13, 1, v13
  v_xor_b32 v12, v12, v13
  v_lshlrev_b32 v12, 4, v12
  v_lshl_add_u32 v{VWO}, v11, 10, v12
  s_lshl_b32 s{S_A0}, s{S_CB}, 8
  s_lshl_b32 s{S_T0}, s{S_WV}, 6
  s_add_u32 s{S_A0}, s{S_A0}, s{S_T0}
  v_and_b32 v{VZ}, 7, v0
  v_lshlrev_b32 v{VZ}, 2, v{VZ}
  v_lshrrev_b32 v6, 1, v0
  v_lshlrev_b32 v6, 7, v6
  v_and_b32 v12, 1, v0
  v_lshl_add_u32 v6, v12, 4, v6
  v_lshlrev_b32 v7, 4, v0""")
def wo_group(i):
    A(f"  s_lshl_b32 s{S_T0}, s{S_Q+i}, 5\n  s_add_u32 s{S_T2}, s{S_T0}, s{S_A0}")
    for k in range(8): dma(VWO, SRD_WO, S_T2, k * 16384, S_CH + i, k * 1024)
sizes = []
def outstanding_after(kid):
    idx = [i for i, x in enumerate(sizes) if (x[0], x[1]) == kid][0]
    return sum(x[2] for x in sizes[idx + 1:])
def do_group(g):
    e = issue_group(g); sizes.append(("g", g, gsize(g))); sizes.append(("t", g, e))
for g in range(args.D0): do_group(g)
lsetup()
nxt = args.D0
for bq in range(17):
    if bq < 16: A(f"  s_waitcnt vmcnt({min(63, outstanding_after(('g', bq)))})")
    A("  s_barrier")
    while nxt < 16 and nxt <= bq + D - 1 and nxt <= bq + 5 and (nxt <= bq + args.D0 or bq >= args.ramp):
        do_group(nxt); nxt += 1
    for i in range(3):
        if freeat[i] == bq: wo_group(i); sizes.append(("w", i, 8))
stamp(6)
A(f"  global_load_dword v14, v{VZ}, s[{S_DBG}:{S_DBG+1}] sc1")
A(f"  s_waitcnt vmcnt({outstanding_after(('w', 1)) + 1})\n  s_barrier")
stamp(7)
wo_group(3)
def init_check(tag, v, vz):
    A(f"""  s_mov_b32 s{S_T1}, 0x01010101
L_ic{tag}:
  s_waitcnt vmcnt(0)
  v_cmp_ne_u32 vcc, s{S_T1}, v{v}
  s_nop 3
  s_cmp_eq_u64 vcc, 0
  s_cbranch_scc1 L_id{tag}
{spin(f"L_id{tag}")}
  s_sleep 4
  global_load_dword v{v}, v{vz}, s[{S_DBG}:{S_DBG+1}] sc1
  s_branch L_ic{tag}
L_id{tag}:""")
A(f"  s_cmp_lg_u32 s{S_BR}, 0\n  s_cbranch_scc1 L_dopoll\n  s_cmp_lg_u32 s{S_WV}, 0\n  s_cbranch_scc1 L_await\nL_dopoll:")
init_check("L", 14, VZ)
A(f"""  s_lshr_b32 s{S_T1}, s{S_RB2}, 1
  s_lshl_b32 s{S_T1}, s{S_T1}, 10
  s_add_u32 s{S_T1}, s{S_T1}, {WS_FLG}
  s_mov_b64 exec, 0xffff
  s_cmp_eq_u32 s{S_BR}, 0
  s_cbranch_scc1 L_apoll
  s_lshl_b32 s{S_T1}, s{S_WV}, 12
  s_add_u32 s{S_T1}, s{S_T1}, {WS_FLG + 128*128}
  s_mov_b64 exec, -1
L_apoll:
  buffer_load_dwordx4 v[16:19], v6, s[{SRD_WS}:{SRD_WS+3}], s{S_T1} offen sc1
  s_waitcnt vmcnt(0)
  v_and_b32 v16, v16, v17
  v_and_b32 v18, v18, v19
  v_and_b32 v16, v16, v18
  v_cmp_ne_u32 vcc, 1, v16
  s_and_b64 exec, exec, vcc
  s_cbranch_execz L_aok
{spin("L_aok")}
  s_sleep {args.psleep}
  s_branch L_apoll
L_aok:
  s_mov_b64 exec, -1
L_await:
  s_lshl_b32 s{S_T3}, s{S_RB2}, 16
  s_lshl_b32 s{S_T0}, s{S_WV}, 14
  s_add_u32 s{S_T3}, s{S_T3}, s{S_T0}
  s_and_b32 s{S_T2}, s{S_WV}, 1
  s_lshl_b32 s{S_T2}, s{S_T2}, 14
  s_lshr_b32 s{S_T0}, s{S_WV}, 1
  s_mul_i32 s{S_T0}, s{S_T0}, {ORH}
  s_add_u32 s{S_T2}, s{S_T2}, s{S_T0}
  s_waitcnt vmcnt(0)
  s_barrier""")
stamp(8)
def lfin():
    if NSTAMP:
        A(f"  s_cmp_lg_u32 s{S_WV}, 0\n  s_cbranch_scc1 L_end")
        stamp_flush([6, 7, 8], 12)
    A("  s_endpgm")
A(f"  s_cmp_eq_u32 s{S_BR}, 0\n  s_cbranch_scc1 L_oload")
if NSTAMP: A("  s_barrier\n  s_barrier\n  s_barrier\n  s_barrier")
lfin()
A("L_oload:")
def oloads(i):
    A(f"  s_add_u32 s{S_A0}, s{S_T3}, s{S_Q+i}\n  s_add_u32 s{S_A1}, s{S_T2}, s{S_Q+i}")
    for h in range(4):
        A(f"  s_add_u32 s{S_T1}, s{S_A0}, {h*1024}\n  s_add_u32 m0, s{S_A1}, {h*1024}\n  s_nop 0\n  buffer_load_dwordx4 v7, s[{SRD_WS}:{SRD_WS+3}], s{S_T1} offen {args.cl} lds")
oloads(0)
A("  s_waitcnt vmcnt(0)")
oloads(1)
A("  s_barrier")
oloads(2); oloads(3)
for i in (1, 2, 3): A(f"  s_waitcnt vmcnt({4*(3-i)})\n  s_barrier")
lfin()

V_XA = 1; V_WA = 2; V_XA1 = 3; V_ONE = 4; V_OA = 5; V_X0C = 6; V_X1C = 13; V_WC = 14; V_IFA = 15
V_IF = 160; V_DUM = 161; V_NC = 162; V_ONESB = 164
A("L_comp:")
A(f"  s_and_b32 s{S_HH}, s{S_WV}, 3\n  s_lshr_b32 s{S_RH}, s{S_WV}, 2")
if args.codepf:
    A(f"""  s_getpc_b64 s[{S_M0}:{S_M0+1}]
L_pcref:
  s_sub_u32 s{S_M0}, s{S_M0}, L_pcref-{NAME}
  s_subb_u32 s{S_M0+1}, s{S_M0+1}, 0
  s_lshl_b32 s{S_T0}, s{S_J}, 3
  s_add_u32 s{S_T0}, s{S_T0}, s{S_WV}
  s_lshl_b32 s{S_T0}, s{S_T0}, 7
  s_min_u32 s{S_T0}, s{S_T0}, (L_codeend-{NAME}-4)&0xfffffffc
  v_mov_b32 v7, s{S_T0}
  s_mov_b64 exec, 1
  global_load_dword v{V_DUM}, v7, s[{S_M0}:{S_M0+1}]
  s_mov_b64 exec, -1""")
A(f"""  v_and_b32 v7, 15, v0
  v_lshrrev_b32 v8, 4, v0
  v_lshrrev_b32 v9, 1, v7
  v_xor_b32 v9, v9, v8
  v_lshlrev_b32 v9, 4, v9
  v_lshl_add_u32 v{V_XA}, v7, 7, v9
  v_lshrrev_b32 v9, 2, v7
  v_lshl_add_u32 v9, v8, 3, v9
  v_lshrrev_b32 v10, 1, v9
  v_and_b32 v10, 1, v10
  v_and_b32 v11, 1, v8
  v_lshl_or_b32 v10, v11, 1, v10
  v_xor_b32 v10, s{S_HH}, v10
  v_lshlrev_b32 v10, 5, v10
  v_lshl_add_u32 v10, v9, 7, v10
  v_and_b32 v11, 3, v7
  v_lshl_add_u32 v{V_WA}, v11, 3, v10
  v_add_u32 v{V_WA}, {WBASE}, v{V_WA}
  v_mov_b32 v{V_ONE}, 1
  s_lshl_b32 s{S_T0}, s{S_HG}, 2
  s_add_u32 s{S_T0}, s{S_T0}, s{S_HH}
  s_lshl_b32 s{S_OB}, s{S_T0}, 9
  s_lshl_b32 s{S_T1}, s{S_RB}, 17
  s_add_u32 s{S_OB}, s{S_OB}, s{S_T1}
  s_lshl_b32 s{S_T1}, s{S_BR}, 21
  s_add_u32 s{S_OB}, s{S_OB}, s{S_T1}
  s_mul_i32 s{S_C3}, s{S_T0}, {KVH}
  s_add_u32 s{S_C3}, s{S_C3}, {WS_KV}
  s_lshl_b32 s{S_FLG}, s{S_BR}, 7
  s_lshl_b32 s{S_T1}, s{S_RB}, 3
  s_add_u32 s{S_FLG}, s{S_FLG}, s{S_T1}
  s_add_u32 s{S_FLG}, s{S_FLG}, s{S_HG}
  s_lshl_b32 s{S_FLG}, s{S_FLG}, 7
  s_add_u32 s{S_FLG}, s{S_FLG}, {WS_FLG}
  s_lshl_b32 s{S_T1}, s{S_WV}, 2
  s_add_u32 s{S_FLG}, s{S_FLG}, s{S_T1}
  v_and_b32 v9, 1, v8
  v_lshlrev_b32 v9, 14, v9
  v_lshrrev_b32 v10, 1, v8
  v_lshl_add_u32 v9, v10, 8, v9
  v_lshl_add_u32 v{V_OA}, v7, 4, v9
  v_and_b32 v{V_IFA}, 7, v0
  v_lshlrev_b32 v{V_IFA}, 2, v{V_IFA}
  s_mov_b32 s{S_IT}, 0
  s_mov_b32 s{S_XO}, 0
  s_mov_b32 s{S_WO}, 0
  v_mov_b32 v{V_WC}, v{V_WA}
  s_waitcnt lgkmcnt(0)""")
build_srds2()
A(f"  s_cmp_eq_u32 s{S_BR}, 0\n  s_cbranch_scc0 L_compB")

wadv_c = [f"  s_add_u32 s{S_WO}, s{S_WO}, {WSLOT}", f"  s_cmp_eq_u32 s{S_WO}, {WSLOT*NWS}", f"  s_cselect_b32 s{S_WO}, 0, s{S_WO}", f"  v_add_u32 v{V_WC}, s{S_WO}, v{V_WA}"]
xadv_c = [f"  s_add_u32 s{S_XO}, s{S_XO}, {XSLOT}", f"  s_cmp_eq_u32 s{S_XO}, {XSLOT*NXS}", f"  s_cselect_b32 s{S_XO}, 0, s{S_XO}",
          f"  v_add_u32 v{V_X0C}, s{S_XO}, v{V_XA}", f"  v_add_u32 v{V_X1C}, s{S_XO}, v{V_XA1}"]
def mainloop(tag, reads, mfmas, extra_adv, tail, bpos):
    A("  s_barrier")
    stamp(1)
    for x in reads(0, 0): A(x)
    for kk in range(2):
        A(f"L_s{kk}{tag}:\n  s_waitcnt lgkmcnt(0)")
        m = mfmas(kk)
        adv = list(wadv_c) + (xadv_c + extra_adv if kk == 1 else [])
        r = reads(1 - kk, 1 - kk)
        ai = 0
        for i in range(bpos):
            A(m[i])
            want = min(len(adv), ((i + 1) * len(adv) + bpos - 2) // max(1, bpos - 1))
            while ai < want: A(adv[ai]); ai += 1
        A("  s_barrier")
        ri = 0; nm = len(m) - bpos
        for i, x in enumerate(m[bpos:]):
            want = min(len(r), ((i + 1) * len(r) + nm - 3) // max(1, nm - 2))
            while ri < want: A(r[ri]); ri += 1
            A(x)
        while ri < len(r): A(r[ri]); ri += 1
    tail()
    A(f"  s_add_u32 s{S_IT}, s{S_IT}, 1\n  s_cmp_lt_u32 s{S_IT}, 8\n  s_cbranch_scc1 L_s0{tag}")
    A(f"  global_load_dword v{V_IF}, v{V_IFA}, s[{S_DBG}:{S_DBG+1}] sc1")
    stamp(2)
    A("  s_waitcnt lgkmcnt(0)")
def trr(d, seg): return [f"  ds_read_b64_tr_b16 v[{d}:{d+1}], v{V_WC} offset:{seg*4096}", f"  ds_read_b64_tr_b16 v[{d+2}:{d+3}], v{V_WC} offset:{seg*4096 + 512}"]
def mm(acc, a, b): return f"  v_mfma_f32_16x16x32_bf16 v[{acc}:{acc+3}], v[{a}:{a+3}], v[{b}:{b+3}], v[{acc}:{acc+3}]"
def store_frags(src, nt, dst):
    for t in range(nt):
        d = dst + 4 * t
        cvt(d, src(2 * t)); cvt(d + 2, src(2 * t + 1))
    A("  s_nop 1")
    for t in range(nt):
        d = dst + 4 * t
        A(f"  v_permlane16_swap_b32 v{d}, v{d+2}\n  v_permlane16_swap_b32 v{d+1}, v{d+3}")
    for t in range(nt):
        d = dst + 4 * t
        A(f"  s_add_u32 s{S_T0}, s{S_OB}, {t*32768}")
        A(f"  buffer_store_dwordx4 v[{d}:{d+3}], v{V_OA}, s[{SRD_WS}:{SRD_WS+3}], s{S_T0} offen sc1")

ACC = 16
AQ = lambda b: ACC + 4 * b
AK = lambda b: ACC + 16 + 4 * b
AV = lambda b: ACC + 36 + 4 * b
FX = lambda buf, b: 72 + 32 * buf + 4 * b
FW = lambda buf, seg: 72 + 32 * buf + 20 + 4 * seg
V_HA = 136; V_H0C = 137; V_H1C = 138
MK = 140; MK0 = 144; V_HI = 148; V_PV = 149; V_ONES = 150
A(f"""  v_mov_b32 v{V_HA}, v{V_XA}
  s_cmp_eq_u32 s{S_RH}, 0
  s_cbranch_scc1 L_h0ok
  v_or_b32 v10, 8, v7
  v_lshrrev_b32 v9, 1, v10
  v_xor_b32 v9, v9, v8
  v_lshlrev_b32 v9, 4, v9
  v_lshl_add_u32 v9, v10, 7, v9
  v_lshrrev_b32 v10, 3, v7
  v_lshlrev_b32 v10, 11, v10
  v_add_u32 v9, v9, v10
  v_add_u32 v{V_HA}, {2048*3}, v9
L_h0ok:
  s_lshl_b32 s{S_T0}, s{S_RH}, 13
  s_add_u32 s{S_T0}, s{S_T0}, 2048
  v_add_u32 v{V_XA}, s{S_T0}, v{V_XA}
  v_xor_b32 v{V_XA1}, 64, v{V_XA}
  v_mov_b32 v{V_X0C}, v{V_XA}
  v_mov_b32 v{V_X1C}, v{V_XA1}
  v_mov_b32 v{V_H0C}, v{V_HA}
  v_xor_b32 v{V_H1C}, 64, v{V_HA}
  s_lshl_b32 s{S_T1}, s{S_RH}, 16
  s_add_u32 s{S_OB}, s{S_OB}, s{S_T1}""")
for r in range(ACC, ACC + 56): A(f"  v_mov_b32 v{r}, 0")
A(f"""  v_lshlrev_b32 v9, 2, v8
  v_sub_u32 v9, v7, v9
  s_mov_b32 s{S_C0}, 0xf149f2ca
  v_mov_b32 v10, s{S_C0}""")
for r in range(4):
    A(f"""  v_subrev_u32 v11, {r}, v9
  v_and_b32 v12, 15, v11
  v_cmp_gt_u32 vcc, 8, v12
  s_nop 1
  v_cndmask_b32 v{MK+r}, v10, 0, vcc
  v_cmp_gt_u32 vcc, 8, v11
  s_nop 1
  v_cndmask_b32 v{MK0+r}, v10, 0, vcc""")
A(f"""  s_or_b32 s{S_T0}, s{S_RB}, s{S_RH}
  s_cmp_eq_u32 s{S_T0}, 0
  s_cbranch_scc1 L_m0
  v_mov_b32 v{MK0}, v{MK}
  v_mov_b32 v{MK0+1}, v{MK+1}
  v_mov_b32 v{MK0+2}, v{MK+2}
  v_mov_b32 v{MK0+3}, v{MK+3}
L_m0:
  v_cmp_lt_u32 s[{S_M0}:{S_M0+1}], 7, v7
  v_cmp_lt_u32 vcc, 1, v8
  s_nop 1
  v_cndmask_b32 v{V_HI}, 0, -1, s[{S_M0}:{S_M0+1}]
  s_andn2_b64 s[{S_M1}:{S_M1+1}], vcc, s[{S_M0}:{S_M0+1}]
  v_mov_b32 v{V_ONES}, 0x3f803f80
  v_mov_b32 v{V_ONES+1}, 0x3f803f80
  v_cndmask_b32 v{V_PV}, 0, -1, s[{S_M1}:{S_M1+1}]
  v_mov_b32 v{V_ONES+2}, 0x3f803f80
  v_mov_b32 v{V_ONES+3}, 0x3f803f80
  s_mov_b32 s{S_C0}, 0x3eb8aa3b""")
def readsA(buf, kk):
    va = V_X0C if kk == 0 else V_X1C
    r = trr(FW(buf, 1), 1) + trr(FW(buf, 2), 2) + trr(FW(buf, 0), 0)
    for b in range(4): r.append(f"  ds_read_b128 v[{FX(buf,b)}:{FX(buf,b)+3}], v{va} offset:{b*2048}")
    r.append(f"  ds_read_b128 v[{FX(buf,4)}:{FX(buf,4)+3}], v{V_H0C if kk == 0 else V_H1C}")
    return r
def mfmasA(buf):
    m = []
    for b in range(4):
        x = FX(buf, b)
        m += [mm(AK(b), FW(buf, 1), x), mm(AV(b), x, FW(buf, 2)), mm(AQ(b), FW(buf, 0), x)]
    x = FX(buf, 4)
    return m + [mm(AK(4), FW(buf, 1), x), mm(AV(4), x, FW(buf, 2))]
mainloop("A", readsA, mfmasA, [f"  v_add_u32 v{V_H0C}, s{S_XO}, v{V_HA}", f"  v_xor_b32 v{V_H1C}, 64, v{V_H0C}"], lambda: None, args.bpos)
K4 = lambda b: 72 + 4 * b
Q4 = lambda b: 88 + 4 * b
VP = lambda p, i: 104 + 6 * p + 2 * i
KH = 116; KH2 = 118; TT = 120
for b in range(4):
    cvt(K4(b), AK(b))
    cvt(VP(b & 1, (b >> 1) + 1), AV(b))
    tt = TT + 2 * (b & 1)
    cvt(tt, AQ(b))
    A(f"  v_and_b32 v{Q4(b)}, v{tt}, v{V_HI}\n  v_and_b32 v{Q4(b)+1}, v{tt+1}, v{V_HI}")
    A(f"  v_xor_b32 v{Q4(b)+2}, v{tt}, v{Q4(b)}\n  v_xor_b32 v{Q4(b)+3}, v{tt+1}, v{Q4(b)+1}")
cvt(KH, AK(4))
cvt(VP(1, 0), AV(4))
A(f"""  s_nop 1
  v_mov_b32_dpp v{KH2}, v{KH} row_ror:8 row_mask:0xf bank_mask:0xf
  v_mov_b32_dpp v{KH2+1}, v{KH+1} row_ror:8 row_mask:0xf bank_mask:0xf
  v_mov_b32 v{VP(0,0)}, v{VP(1,0)}
  v_mov_b32 v{VP(0,0)+1}, v{VP(1,0)+1}
  v_mov_b32 v{TT}, v{VP(1,0)}
  v_mov_b32 v{TT+1}, v{VP(1,0)+1}
  s_nop 1
  v_permlane32_swap_b32 v{VP(0,0)}, v{TT}
  v_permlane32_swap_b32 v{VP(0,0)+1}, v{TT+1}""")
for b in range(4):
    t, p = b >> 1, b & 1
    prev = (KH2 if p == 0 else KH) if t == 0 else K4(p)
    A(f"  v_cndmask_b32 v{K4(b)+2}, v{K4(b)}, v{prev}, s[{S_M0}:{S_M0+1}]\n  v_cndmask_b32 v{K4(b)+3}, v{K4(b)+1}, v{prev+1}, s[{S_M0}:{S_M0+1}]")
A("  s_nop 1")
SS = lambda b: ACC + 4 * b
for b in range(4):
    mk = MK0 if b < 2 else MK
    A(f"  v_mfma_f32_16x16x32_bf16 v[{SS(b)}:{SS(b)+3}], v[{K4(b)}:{K4(b)+3}], v[{Q4(b)}:{Q4(b)+3}], v[{mk}:{mk+3}]")
MX = lambda b: 32 + b
MT = 36
A("  s_nop 7")
for b in range(4): A(f"  v_max3_f32 v{MX(b)}, v{SS(b)}, v{SS(b)+1}, v{SS(b)+2}")
for b in range(4): A(f"  v_max_f32 v{MX(b)}, v{MX(b)}, v{SS(b)+3}")
a, b_, c, d = [MX(i) for i in range(4)]
A(f"""  s_nop 0
  v_permlane32_swap_b32 v{a}, v{b_}
  v_permlane32_swap_b32 v{c}, v{d}
  v_max_f32 v{a}, v{a}, v{b_}
  v_max_f32 v{c}, v{c}, v{d}
  s_nop 1
  v_permlane16_swap_b32 v{a}, v{c}
  v_max_f32 v{a}, v{a}, v{c}
  v_mul_f32 v{a}, s{S_C0}, v{a}
  v_mov_b32 v{c}, v{a}
  s_nop 1
  v_permlane16_swap_b32 v{a}, v{c}
  v_mov_b32 v{b_}, v{a}
  v_mov_b32 v{d}, v{c}
  s_nop 0
  v_permlane32_swap_b32 v{a}, v{b_}
  v_permlane32_swap_b32 v{c}, v{d}""")
for b in range(4):
    for r in range(4): A(f"  v_fma_f32 v{SS(b)+r}, v{SS(b)+r}, s{S_C0}, -v{MX(b)}")
for b in range(4):
    for r in range(4): A(f"  v_exp_f32 v{SS(b)+r}, v{SS(b)+r}")
P4 = lambda b: 40 + 4 * b
for b in range(4):
    tt = MT + 2 * (b & 1)
    cvt(tt, SS(b))
    A(f"  v_and_b32 v{P4(b)}, v{tt}, v{V_PV}\n  v_and_b32 v{P4(b)+1}, v{tt+1}, v{V_PV}")
    A(f"  v_xor_b32 v{P4(b)+2}, v{tt}, v{P4(b)}\n  v_xor_b32 v{P4(b)+3}, v{tt+1}, v{P4(b)+1}")
A("  s_nop 1")
OO = lambda b: 72 + 4 * b
SM = lambda b: 88 + 4 * b
for b in range(4):
    t, p = b >> 1, b & 1
    A(f"  v_mfma_f32_16x16x32_bf16 v[{SM(b)}:{SM(b)+3}], v[{V_ONES}:{V_ONES+3}], v[{P4(b)}:{P4(b)+3}], 0")
    A(f"  v_mfma_f32_16x16x32_bf16 v[{OO(b)}:{OO(b)+3}], v[{VP(p,t)}:{VP(p,t)+3}], v[{P4(b)}:{P4(b)+3}], 0")
A("  s_nop 4")
for b in range(4): A(f"  v_rcp_f32 v{SM(b)}, v{SM(b)}")
for b in range(4):
    for r in range(4): A(f"  v_mul_f32 v{OO(b)+r}, v{OO(b)+r}, v{SM(b)}")
store_frags(OO, 2, ACC)
A("  s_branch L_phase2")

A("L_compB:")
A(f"""  s_mov_b32 s{S_C0}, 0x358637bd
  s_mov_b32 s{S_C1}, 0x3fb8aa3b
  s_mov_b32 s{S_C2}, {hex(f2u(-1e-6 * 1.4426950408889634))}
  v_mov_b32 v{V_NC}, s{S_C2}
  v_add_u32 v{V_XA}, 2048, v{V_XA}
  v_xor_b32 v{V_XA1}, 64, v{V_XA}
  v_mov_b32 v{V_X0C}, v{V_XA}
  v_mov_b32 v{V_X1C}, v{V_XA1}""")
for r in range(16, 48): A(f"  v_mov_b32 v{r}, s{S_C0}")
A(f"  s_cmp_lg_u32 s{S_RH}, 0\n  s_cbranch_scc1 L_compQ")
A(f"""  s_cmp_lg_u32 s{S_RB}, 0
  s_cbranch_scc1 L_nozero
  v_mov_b32 v8, 0
  v_mov_b32 v9, 0
  v_mov_b32 v10, 0
  v_mov_b32 v11, 0
  v_lshlrev_b32 v7, 4, v0
  buffer_store_dwordx4 v[8:11], v7, s[{SRD_WS}:{SRD_WS+3}], s{S_C3} offen sc1
  s_mov_b64 exec, 0xff
  buffer_store_dwordx4 v[8:11], v7, s[{SRD_WS}:{SRD_WS+3}], s{S_C3} offen offset:1024 sc1
  s_mov_b64 exec, -1
  s_lshl_b32 s{S_T0}, s{S_HG}, 12
  s_lshl_b32 s{S_T1}, s{S_HH}, 10
  s_add_u32 s{S_T0}, s{S_T0}, s{S_T1}
  s_add_u32 s{S_T0}, s{S_T0}, {WS_FLG}
  buffer_store_dwordx4 v[8:11], v7, s[{SRD_WS}:{SRD_WS+3}], s{S_T0} offen sc1
L_nozero:""")
BK = lambda b: 16 + 4 * b
BV = lambda b: 48 + 4 * b
GX = lambda buf, b: 80 + 40 * buf + 4 * b
GW = lambda buf, i: 80 + 40 * buf + 32 + 4 * i
for r in range(48, 80): A(f"  v_mov_b32 v{r}, 0")
for r in range(4): A(f"  v_mov_b32 v{V_ONESB+r}, 0x3f803f80")
def xreads(buf, kk):
    va = V_X0C if kk == 0 else V_X1C
    return [f"  ds_read_b128 v[{GX(buf,b)}:{GX(buf,b)+3}], v{va} offset:{b*2048}" for b in range(8)]
def readsKV(buf, kk): return trr(GW(buf, 0), 1) + trr(GW(buf, 1), 2) + xreads(buf, kk)
def mfmasKV(buf):
    m = []
    for b in range(8): m += [mm(BK(b), GX(buf, b), GW(buf, 0)), mm(BV(b), GX(buf, b), GW(buf, 1))]
    return m
def ack():
    A(f"""  s_or_b32 s{S_T0}, s{S_IT}, s{S_RB}
  s_cmp_lg_u32 s{S_T0}, 0
  s_cbranch_scc1 L_noack
  s_waitcnt vmcnt(0)
  s_lshl_b32 s{S_T0}, s{S_HG}, 2
  s_add_u32 s{S_T0}, s{S_T0}, s{S_HH}
  v_mov_b32 v11, s{S_T0}
  s_mov_b64 exec, 1
  global_store_byte v11, v{V_ONE}, s[{S_DBG}:{S_DBG+1}] sc1
  s_mov_b64 exec, -1
L_noack:""")
mainloop("K", readsKV, mfmasKV, [], ack, args.bpos)
PK = lambda b: 80 + 2 * b
VV = lambda b: 96 + 2 * b
ET = 112
def phi(acc, n, et):
    for i in range(n): A(f"  v_fma_f32 v{et+i}, v{acc+i}, s{S_C1}, v{V_NC}")
    for i in range(n): A(f"  v_exp_f32 v{et+i}, v{et+i} clamp")
    for i in range(n): A(f"  v_max_f32 v{acc+i}, s{S_C0}, v{acc+i}")
    for i in range(n): A(f"  v_add_f32 v{acc+i}, v{acc+i}, v{et+i}")
for b in range(8): cvt(VV(b), BV(b))
phi(BK(0), 32, ET)
for b in range(8): cvt(PK(b), BK(b))
KVA = 144; ZA = 148
A("  s_nop 1")
for i in range(4):
    c = "0" if i == 0 else f"v[{KVA}:{KVA+3}]"
    A(f"  v_mfma_f32_16x16x32_bf16 v[{KVA}:{KVA+3}], v[{VV(2*i)}:{VV(2*i)+3}], v[{PK(2*i)}:{PK(2*i)+3}], {c}")
    c = "0" if i == 0 else f"v[{ZA}:{ZA+3}]"
    A(f"  v_mfma_f32_16x16x32_bf16 v[{ZA}:{ZA+3}], v[{V_ONESB}:{V_ONESB+3}], v[{PK(2*i)}:{PK(2*i)+3}], {c}")
A("  v_lshlrev_b32 v7, 2, v0")
init_check("B", V_IF, V_IFA)
A("  s_nop 2")
for r in range(4):
    A(f"  buffer_atomic_add_f32 v{KVA+r}, v7, s[{SRD_WS}:{SRD_WS+3}], s{S_C3} offen offset:{256*r}")
A(f"  s_mov_b64 exec, 0xffff\n  buffer_atomic_add_f32 v{ZA}, v7, s[{SRD_WS}:{SRD_WS+3}], s{S_C3} offen offset:1024\n  s_mov_b64 exec, -1")
A("  s_branch L_phase2")
A("L_compQ:")
def readsQ(buf, kk): return trr(GW(buf, 0), 0) + xreads(buf, kk)
def mfmasQ(buf): return [mm(BK(b), GW(buf, 0), GX(buf, b)) for b in range(8)]
mainloop("Q", readsQ, mfmasQ, [], lambda: None, min(args.bpos, 2))
A("  s_nop 4")
phi(BK(0), 32, ET)
store_frags(BK, 4, 16)

A("L_phase2:")
stamp(3)
chunk_sel(S_HH)
quarters()
A(f"""  v_and_b32 v11, 15, v0
  v_lshrrev_b32 v12, 4, v0
  v_lshrrev_b32 v13, 2, v11
  v_lshl_add_u32 v13, v12, 3, v13
  v_and_b32 v14, 3, v11
  v_and_b32 v10, 1, v12
  v_lshlrev_b32 v10, 1, v10
  v_xor_b32 v14, v14, v10
  v_lshlrev_b32 v14, 4, v14
  v_lshl_add_u32 v6, v13, 6, v14
  v_add_u32 v2, s{S_CH}, v6
  v_add_u32 v3, s{S_CH+1}, v6
  v_lshlrev_b32 v11, 12, v11
  v_lshl_add_u32 v1, v12, 4, v11
  s_lshl_b32 s{S_C2}, s{S_RB2}, 17
  s_lshl_b32 s{S_T0}, s{S_RH}, 16
  s_add_u32 s{S_C2}, s{S_C2}, s{S_T0}
  s_lshl_b32 s{S_T0}, s{S_BR}, 10
  s_add_u32 s{S_C2}, s{S_C2}, s{S_T0}
  s_lshl_b32 s{S_T0}, s{S_CB}, 8
  s_add_u32 s{S_C2}, s{S_C2}, s{S_T0}
  s_lshl_b32 s{S_T0}, s{S_HH}, 6
  s_add_u32 s{S_C2}, s{S_C2}, s{S_T0}
  s_mul_i32 s{S_C3}, s{S_RH}, {ORH}""")
init_check("P", V_IF, V_IFA)
A(f"  v_mov_b32 v11, 0\n  s_mov_b64 exec, 1\n  buffer_store_dword v{V_ONE}, v11, s[{SRD_WS}:{SRD_WS+3}], s{S_FLG} offen sc1\n  s_mov_b64 exec, -1")
stamp(4)
A("  s_barrier")
WF = lambda ks, c: (104 + ks * 8 + c * 4) if ks < 8 else (40 + (ks - 8) * 8 + c * 4)
def wo_reads(i, va):
    for k in range(4):
        for c in range(2):
            d = WF(4 * i + k, c)
            A(f"  ds_read_b64_tr_b16 v[{d}:{d+1}], v{va} offset:{k*2048 + 8*c}\n  ds_read_b64_tr_b16 v[{d+2}:{d+3}], v{va} offset:{k*2048 + 8*c + 256}")
wo_reads(0, 2); wo_reads(1, 3)
A(f"""  v_lshlrev_b32 v5, 4, v0
  v_add_u32 v5, s{S_C3}, v5
  v_and_b32 v11, 31, v0
  v_lshrrev_b32 v12, 5, v0
  v_lshrrev_b32 v13, 4, v11
  v_lshlrev_b32 v13, 14, v13
  v_lshl_add_u32 v13, v12, 8, v13
  v_and_b32 v14, 15, v11
  v_lshl_add_u32 v7, v14, 4, v13
  v_and_b32 v13, 3, v11
  v_lshrrev_b32 v14, 2, v11
  v_and_b32 v10, 1, v14
  v_lshrrev_b32 v14, 1, v14
  v_and_b32 v14, 1, v14
  v_lshl_or_b32 v14, v10, 1, v14
  v_lshl_add_u32 v13, v13, 2, v14
  v_cmp_lt_u32 vcc, 15, v11
  s_nop 1
  v_cndmask_b32 v13, v13, 16, vcc
  v_lshlrev_b32 v13, 6, v13
  v_lshl_add_u32 v4, v12, 5, v13
  s_lshl_b32 s{S_C1}, s{S_RB2}, 16
  s_add_u32 s{S_C1}, s{S_C1}, 0x200000
  s_lshl_b32 s{S_T0}, s{S_RH}, 15
  s_add_u32 s{S_C1}, s{S_C1}, s{S_T0}
  s_lshl_b32 s{S_A0}, s{S_HH}, 10
  s_mov_b32 s{S_C0}, 0x358637bd
  s_waitcnt lgkmcnt(0)""")
stamp(5)
A("  s_barrier")
OA = lambda b, c: 16 + (b * 2 + c) * 4
OF = lambda s, b: (32 if s == 0 else 8) + 4 * b
def gemm(i, first):
    A(f"  v_add_u32 v2, s{S_Q+i}, v5")
    for h in range(2):
        for b in range(2):
            A(f"  ds_read_b128 v[{OF(h,b)}:{OF(h,b)+3}], v2 offset:{b*16384 + h*1024}")
    for h in range(4):
        A(f"  s_waitcnt lgkmcnt({2 if h < 3 else 0})")
        for b in range(2):
            d = OF(h & 1, b)
            for c in range(2):
                acc = OA(b, c); wf = WF(4 * i + h, c)
                cin = "0" if (first and h == 0) else f"v[{acc}:{acc+3}]"
                A(f"  v_mfma_f32_16x16x32_bf16 v[{acc}:{acc+3}], v[{wf}:{wf+3}], v[{d}:{d+3}], {cin}")
        if h + 2 < 4:
            for b in range(2):
                A(f"  ds_read_b128 v[{OF(h&1,b)}:{OF(h&1,b)+3}], v2 offset:{b*16384 + (h+2)*1024}")
def late_wo():
    A(f"  v_add_u32 v2, s{S_CH+2}, v6\n  v_add_u32 v3, s{S_CH+3}, v6")
    wo_reads(2, 2); wo_reads(3, 3)
A(f"  s_cmp_lg_u32 s{S_BR}, 0\n  s_cbranch_scc1 L_p2B")
late_wo()
for i in range(4):
    A("  s_barrier")
    if i == 0: stamp(9)
    if i == 2: pass
    gemm(i, i == 0)
A("  s_branch L_fin")
A("L_p2B:")
PIN = lambda s: 40 + 24 * s
DDU = 88
def ploads(i):
    s = PIN(i & 1)
    A(f"""  s_add_u32 s{S_T2}, s{S_Q+i}, s{S_A0}        ; hp*1024
  s_lshr_b32 s{S_T1}, s{S_T2}, 10
  s_mul_i32 s{S_T1}, s{S_T1}, {2*KVH}
  s_add_u32 s{S_T1}, s{S_T1}, {WS_KV}
  s_add_u32 s{S_T2}, s{S_T2}, s{S_C1}""")
    for hh in range(2):
        k = s + 8 + 8 * hh
        A(f"  buffer_load_dwordx4 v[{k}:{k+3}], v4, s[{SRD_WS}:{SRD_WS+3}], s{S_T1} offen offset:{hh*KVH} {args.cl}")
        A(f"  buffer_load_dwordx4 v[{k+4}:{k+7}], v4, s[{SRD_WS}:{SRD_WS+3}], s{S_T1} offen offset:{hh*KVH+16} {args.cl}")
        A(f"  buffer_load_dwordx4 v[{s+4*hh}:{s+4*hh+3}], v7, s[{SRD_WS}:{SRD_WS+3}], s{S_T2} offen offset:{hh*512} {args.cl}")
def produce(i):
    s = PIN(i & 1)
    if i == 0: stamp(12)
    A(f"  s_waitcnt vmcnt({6 if i < 3 else 0})")
    if i == 0: stamp(13)
    A(f"  s_add_u32 s{S_T0}, s{S_Q+i}, s{S_A0}\n  s_add_u32 s{S_T0}, s{S_T0}, s{S_C3}\n  v_add_u32 v3, s{S_T0}, v7")
    for hh in range(2):
        k = s + 8 + 8 * hh
        cvt(k, k); cvt(k + 2, k + 4)
    for hh in range(2):
        k = s + 8 + 8 * hh; d = DDU
        A(f"  s_nop 1\n  v_mfma_f32_32x32x16_bf16 v[{d}:{d+15}], v[{k}:{k+3}], v[{s+4*hh}:{s+4*hh+3}], 0\n  s_nop 11")
        A(f"  v_add_f32 v{d+8}, s{S_C0}, v{d+8}\n  v_rcp_f32 v{d+8}, v{d+8}\n  s_nop 0")
        for r in range(0, 8, 2):
            A(f"  v_pk_mul_f32 v[{d+r}:{d+r+1}], v[{d+r}:{d+r+1}], v[{d+8}:{d+9}] op_sel_hi:[1,0]")
        cvt(d + 12, d); cvt(d + 14, d + 4)
        A(f"  ds_write_b128 v3, v[{d+12}:{d+15}] offset:{hh*512}")
    if i + 2 < 4: ploads(i + 2)
    A("  s_waitcnt lgkmcnt(0)")
    if i == 0: stamp(14)
    A("  s_barrier")
ploads(0); ploads(1)
produce(0)
stamp(9)
produce(1); gemm(0, True)
produce(2); gemm(1, False)
produce(3)
late_wo()
gemm(2, False); gemm(3, False)
A("L_fin:\n  s_nop 7")
for b in range(2):
    d = 32 + 4 * b
    cvt(d, OA(b, 0)); cvt(d + 2, OA(b, 1))
    A(f"  s_add_u32 s{S_T0}, s{S_C2}, {b * 2048}")
    A(f"  buffer_store_dwordx4 v[{d}:{d+3}], v1, s[{SRD_OUT}:{SRD_OUT+3}], s{S_T0} offen")
stamp(10)
if NSTAMP:
    A("  s_waitcnt vmcnt(0)")
    stamp(11)
    A(f"  s_cmp_lg_u32 s{S_WV}, 0\n  s_cbranch_scc1 L_end")
    stamp_flush([0, 1, 2, 3, 4, 5, 9, 10, 11, 12, 13, 14], 8)
A("L_end:\n  s_endpgm\nL_codeend:")
A(f""".section .rodata,"a"
.p2align 6
.amdhsa_kernel {NAME}
  .amdhsa_next_free_vgpr 168
  .amdhsa_next_free_sgpr 102
  .amdhsa_accum_offset 168
  .amdhsa_group_segment_fixed_size 0
  .amdhsa_kernarg_size 72
  .amdhsa_user_sgpr_count 2
  .amdhsa_user_sgpr_kernarg_segment_ptr 1
  .amdhsa_system_sgpr_workgroup_id_x 1
.end_amdhsa_kernel""")
print("\n".join(out))
```

```python
import sys, argparse, struct
ap = argparse.ArgumentParser()
ap.add_argument("--stamps", type=int, default=0)
ap.add_argument("--order", type=str, default="rot8")
ap.add_argument("--dbg", type=str, default="")
ap.add_argument("--touch", type=int, default=4)
ap.add_argument("--psleep", type=int, default=2)
ap.add_argument("--maxfl", type=int, default=20)
ap.add_argument("--codepf", type=int, default=1)
ap.add_argument("--D", type=int, default=5)
ap.add_argument("--D0", type=int, default=2)
ap.add_argument("--ramp", type=int, default=4)
ap.add_argument("--bpos", type=int, default=3)
ap.add_argument("--cl", type=str, default="")
args = ap.parse_args()
NAME = "concat_heads__sliding_local_dilated__linear_attn_block__prompt_kernel"
out = []
def A(s): out.append(s)
def f2u(x): return struct.unpack("<I", struct.pack("<f", x))[0]
SPINMAX = "0x40000"
XSLOT = 18432; NXS = 4
WBASE = XSLOT * NXS
WSLOT = 12288; NWS = 7
LDS_TOTAL = WBASE + WSLOT * NWS
ORH = 98304
KVS = 544
KV0 = 32768; KV1 = 147456 - 11 * KVS
WS_KV = 4 << 20
KVH = 1152
WS_FLG = (4 << 20) + 65536
STAMP_OFF = 128 << 20
NSTAMP = args.stamps
S_PTR = 4; S_WS = 20; S_FLG = 22; S_SEQ = 23
SRD_X = 24; SRD_W = 28; SRD_WO = 32; SRD_OUT = 36; SRD_WS = 40
S_DBG = 44
S_BR = 46; S_RB = 47; S_HG = 48; S_RB2 = 49; S_CB = 50; S_WV = 51; S_J = 52; S_XQ = 53
S_XB = 54; S_XH = 55; S_WB = 56
S_T0 = 57; S_T1 = 58; S_T2 = 59; S_T3 = 60; S_IT = 61
S_M0 = 62; S_M1 = 64
S_XO = 66; S_WO = 67
S_C0 = 68; S_C1 = 69; S_C2 = 70; S_C3 = 71
S_OB = 72; S_SPIN = 73; S_STB = 74
S_ST = 76
S_CH = 12
S_A0 = 16; S_A1 = 17; S_A2 = 18; S_A3 = 19
S_Q = 4
S_HH = 54; S_RH = 55

def sreg(i): return S_ST + 2 * (i if i < 12 else i - 6)
def stamp(i):
    if i < NSTAMP: A(f"  s_memrealtime s[{sreg(i)}:{sreg(i)+1}]")
def stamp_flush(idxs, vtmp):
    if not NSTAMP: return
    A(f"  s_waitcnt lgkmcnt(0)\n  s_mov_b64 exec, 1\n  v_mov_b32 v{vtmp+2}, 0")
    for i in idxs:
        if i < NSTAMP:
            A(f"  v_mov_b32 v{vtmp}, s{sreg(i)}\n  v_mov_b32 v{vtmp+1}, s{sreg(i)+1}")
            A(f"  global_store_dwordx2 v{vtmp+2}, v[{vtmp}:{vtmp+1}], s[{S_STB}:{S_STB+1}] offset:{8*i}\n  s_nop 1")
    A("  s_mov_b64 exec, -1")
def spin(lbl_out):
    return f"  s_add_u32 s{S_SPIN}, s{S_SPIN}, 1\n  s_cmp_gt_u32 s{S_SPIN}, {SPINMAX}\n  s_cbranch_scc1 {lbl_out}"
def cvt(d, a):
    A(f"  v_cvt_pk_bf16_f32 v{d}, v{a}, v{a+1}\n  v_cvt_pk_bf16_f32 v{d+1}, v{a+2}, v{a+3}")
def quarters():
    for i in range(4):
        A(f"  s_add_u32 s{S_T0}, s{S_CB}, {i}\n  s_and_b32 s{S_T0}, s{S_T0}, 3\n  s_lshl_b32 s{S_Q+i}, s{S_T0}, 12")

A(f"; @launch grid=(256,1,1) block=(768,1,1) lds={LDS_TOTAL}")
A('.amdgcn_target "amdgcn-amd-amdhsa--gfx950"\n.text\n.globl %s\n.p2align 8\n.type %s,@function\n%s:' % (NAME, NAME, NAME))
A("  s_cmp_ge_u32 s2, 256\n  s_cbranch_scc1 L_end")
A(f"  s_load_dwordx16 s[{S_PTR}:{S_PTR+15}], s[0:1], 0\n  s_load_dwordx2 s[{S_WS}:{S_WS+1}], s[0:1], 64")
stamp(0)
A(f"""  v_lshrrev_b32 v1, 6, v0
  v_and_b32 v0, 63, v0
  v_readfirstlane_b32 s{S_WV}, v1
  s_and_b32 s{S_T0}, s2, 7
  s_lshr_b32 s{S_J}, s2, 3
  s_lshr_b32 s{S_BR}, s{S_T0}, 2
  s_and_b32 s{S_XQ}, s{S_T0}, 3
  s_lshr_b32 s{S_T1}, s{S_XQ}, 1
  s_lshl_b32 s{S_T1}, s{S_T1}, 3
  s_lshr_b32 s{S_T2}, s{S_J}, 2
  s_add_u32 s{S_RB}, s{S_T1}, s{S_T2}
  s_and_b32 s{S_T1}, s{S_XQ}, 1
  s_lshl_b32 s{S_T1}, s{S_T1}, 2
  s_and_b32 s{S_CB}, s{S_J}, 3
  s_add_u32 s{S_HG}, s{S_T1}, s{S_CB}
  s_lshl_b32 s{S_T1}, s{S_XQ}, 3
  s_add_u32 s{S_RB2}, s{S_T1}, s{S_T2}
  s_mov_b32 s{S_SPIN}, 0
  s_cmp_lt_u32 s{S_WV}, 8
  s_cbranch_scc1 L_comp""")

VX0 = 1; VX1 = 2; VW = 3; VXH = 4; VWO = 5; VTW = 9; VZ = 10
L_HL = S_C3; L_XL = S_C2; L_WL = S_C1
def seq_pack(l): return sum(x << (4 * i) for i, x in enumerate(l))
o = args.order
A(f"""  s_sub_u32 s{S_WV}, s{S_WV}, 8
  v_lshrrev_b32 v11, 3, v0
  v_and_b32 v12, 7, v0
  v_lshrrev_b32 v13, 4, v0
  v_xor_b32 v14, v12, v13
  v_lshlrev_b32 v14, 4, v14
  v_lshl_add_u32 v{VX0}, v11, 11, v14
  v_xor_b32 v{VX1}, 64, v{VX0}
  v_and_b32 v13, 1, v13
  v_lshlrev_b32 v13, 1, v13
  v_xor_b32 v14, v12, v13
  v_lshlrev_b32 v14, 4, v14
  v_mul_u32_u24 v{VW}, 3072, v11
  v_add_u32 v{VW}, v{VW}, v14
  s_and_b32 s{S_T0}, s{S_WV}, 1
  s_lshl_b32 s{S_T1}, s{S_T0}, 6
  v_xor_b32 v{VW}, s{S_T1}, v{VW}
  v_xor_b32 v{VXH}, s{S_T1}, v{VX0}
  s_lshl_b32 s{S_XB}, s{S_RB}, 17
  s_sub_u32 s{S_XH}, s{S_XB}, 16384
  s_max_i32 s{S_XH}, s{S_XH}, 0
  s_lshl_b32 s{L_HL}, s{S_T0}, 10
  s_add_u32 s{S_XH}, s{S_XH}, s{L_HL}
  s_lshl_b32 s{S_T1}, s{S_WV}, 15
  s_add_u32 s{S_XB}, s{S_XB}, s{S_T1}
  s_lshl_b32 s{L_XL}, s{S_WV}, 12
  s_add_u32 s{L_XL}, s{L_XL}, 2048
  s_lshl_b32 s{S_WB}, s{S_HG}, 7
  s_mul_i32 s{S_T1}, s{S_WV}, 24576
  s_add_u32 s{S_WB}, s{S_WB}, s{S_T1}
  s_lshl_b32 s{L_WL}, s{S_WV}, 10
  s_add_u32 s{L_WL}, s{L_WL}, {WBASE}""")
if o == "plain":
    A(f"  s_mov_b32 s{S_SEQ}, {hex(seq_pack(range(8)))}")
elif o == "rot8":
    A(f"""  s_lshl_b32 s{S_T1}, s{S_CB}, 1
  s_add_u32 s{S_T1}, s{S_T1}, s{S_T2}
  s_and_b32 s{S_T1}, s{S_T1}, 7
  s_mul_i32 s{S_T1}, s{S_T1}, 0x11111111
  s_add_u32 s{S_SEQ}, s{S_T1}, {hex(seq_pack(range(8)))}
  s_and_b32 s{S_SEQ}, s{S_SEQ}, 0x77777777""")
elif o.startswith("g2"):
    seqs = {"g2a": "a0 a1 b0 a2 b1 a3 b2 b3", "g2b": "a0 a1 a2 a3 b0 b1 b2 b3", "g2c": "a0 b0 a1 b1 a2 b2 a3 b3", "g2d": "a0 a1 a2 b0 b1 a3 b2 b3"}
    l = [2 * int(x[1]) + (x[0] == 'b') for x in seqs[o].split()]
    A(f"  s_add_u32 s{S_T1}, s{S_T2}, s{S_CB}\n  s_and_b32 s{S_T1}, s{S_T1}, 1\n  s_mul_i32 s{S_T1}, s{S_T1}, 0x11111111\n  s_xor_b32 s{S_SEQ}, s{S_T1}, {hex(seq_pack(l))}")
elif o.startswith("g4"):
    seqs = {"g4a": "00 01 02 10 03 11 12 13", "g4b": "00 10 01 02 03 11 12 13", "g4c": "00 01 10 02 03 11 12 13", "g4d": "00 01 02 03 10 11 12 13"}
    l = [4 * int(x[0]) + int(x[1]) for x in seqs[o].split()]
    A(f"  s_add_u32 s{S_T1}, s{S_T2}, s{S_CB}\n  s_and_b32 s{S_T1}, s{S_T1}, 3\n  s_mul_i32 s{S_T1}, s{S_T1}, 0x11111111\n  s_xor_b32 s{S_SEQ}, s{S_T1}, {hex(seq_pack(l))}")
def build_srds():
    A(f"""  s_waitcnt lgkmcnt(0)
  s_cmp_eq_u32 s{S_BR}, 0
  s_cselect_b32 s{SRD_X}, s{S_PTR+0}, s{S_PTR+6}
  s_cselect_b32 s{SRD_X+1}, s{S_PTR+1}, s{S_PTR+7}
  s_cselect_b32 s{SRD_W}, s{S_PTR+2}, s{S_PTR+8}
  s_cselect_b32 s{SRD_W+1}, s{S_PTR+3}, s{S_PTR+9}
  s_mov_b32 s{SRD_X+2}, 0x200000
  s_mov_b32 s{SRD_X+3}, 0x20000
  s_mov_b32 s{SRD_W+2}, 0x180000
  s_mov_b32 s{SRD_W+3}, 0x20000""")
def build_srds2():
    A(f"""  s_cmp_eq_u32 s{S_BR}, 0
  s_cselect_b32 s{SRD_WO}, s{S_PTR+4}, s{S_PTR+10}
  s_cselect_b32 s{SRD_WO+1}, s{S_PTR+5}, s{S_PTR+11}
  s_mov_b32 s{SRD_WO+2}, 0x80000
  s_mov_b32 s{SRD_WO+3}, 0x20000
  s_mov_b32 s{SRD_OUT}, s{S_PTR+12}
  s_mov_b32 s{SRD_OUT+1}, s{S_PTR+13}
  s_mov_b32 s{SRD_OUT+2}, 0x400000
  s_mov_b32 s{SRD_OUT+3}, 0x20000
  s_mov_b32 s{SRD_WS}, s{S_WS}
  s_mov_b32 s{SRD_WS+1}, s{S_WS+1}
  s_mov_b32 s{SRD_WS+2}, 0x500000
  s_mov_b32 s{SRD_WS+3}, 0x20000
  s_mov_b32 s{S_DBG}, s{S_PTR+14}
  s_mov_b32 s{S_DBG+1}, s{S_PTR+15}""")
    if NSTAMP:
        A(f"""  s_add_u32 s{S_STB}, s{S_WS}, {STAMP_OFF}
  s_addc_u32 s{S_STB+1}, s{S_WS+1}, 0
  s_mul_i32 s{S_T1}, s2, {8*NSTAMP}
  s_add_u32 s{S_STB}, s{S_STB}, s{S_T1}
  s_addc_u32 s{S_STB+1}, s{S_STB+1}, 0""")
build_srds()
def dma(vo, srd, sreg, imm, lreg, limm, extra=""):
    A(f"  s_add_u32 s{S_T1}, s{sreg}, {imm}\n  s_add_u32 m0, s{lreg}, {limm}\n  s_waitcnt vmcnt({args.maxfl-1})\n  buffer_load_dwordx4 v{vo}, s[{srd}:{srd+3}], s{S_T1} offen{extra} lds")
D = args.D
def gsize(g): return 8 if g == 0 else (3 if g == 15 else (6 if g & 1 else 5))
def xops(t, which):
    xl = (t % NXS) * XSLOT
    A(f"  s_lshr_b32 s{S_T0}, s{S_SEQ}, {4*t}\n  s_and_b32 s{S_T0}, s{S_T0}, 7\n  s_lshl_b32 s{S_T0}, s{S_T0}, 7\n  s_add_u32 s{S_T3}, s{S_T0}, s{S_XB}")
    lst = [(p, m) for p in range(2) for m in range(2)]
    for i in which:
        if i < 4:
            p, m = lst[i]
            dma(VX0 if m == 0 else VX1, SRD_X, S_T3, (p + 16 * m) * 1024, L_XL, xl + p * 2048 + m * 1024)
        else:
            A(f"  s_add_u32 s{S_C0}, s{S_T0}, s{S_XH}")
            dma(VXH, SRD_X, S_C0, 0, L_HL, xl)
def issue_group(g):
    t = g >> 1
    if g > 0 and g & 1 == 0: xops(t, [3, 4])
    A(f"""  s_lshr_b32 s{S_T0}, s{S_SEQ}, {4*t}
  s_and_b32 s{S_T0}, s{S_T0}, 7
  s_mul_i32 s{S_T2}, s{S_T0}, 196608
  s_add_u32 s{S_T2}, s{S_T2}, s{S_WB}""")
    wl = (g % NWS) * WSLOT
    for seg in range(3): dma(VW, SRD_W, S_T2, (g & 1) * 32 * 3072 + seg * 1024, L_WL, wl + seg * 4096)
    if g == 0: xops(0, [0, 1, 2, 3, 4])
    elif g & 1 and g < 15: xops(t + 1, [0, 1, 2])
    if g == 2 * args.touch + 1:
        A(f"""  v_lshlrev_b32 v{VTW}, 7, v0
  s_lshl_b32 s{S_T1}, s{S_J}, 14
  s_lshl_b32 s{S_T0}, s{S_WV}, 12
  s_add_u32 s{S_T1}, s{S_T1}, s{S_T0}
  s_mov_b32 exec_hi, 0
  buffer_load_dword v11, v{VTW}, s[{SRD_WO}:{SRD_WO+3}], s{S_T1} offen
  s_mov_b64 exec, -1""")
        return 1
    return 0
XC = lambda i: i * XSLOT + 2048
chunks = [[XC(0), 98304], [114688, XC(1)], [131072, XC(2)], [XC(3), WBASE]]
freeat = [11, 12, 14, 16]
def chunk_sel(bitreg):
    A(f"  s_cmp_eq_u32 s{bitreg}, 0")
    for i in range(4): A(f"  s_mov_b32 s{S_CH+i}, {chunks[i][1]}\n  s_cselect_b32 s{S_CH+i}, {chunks[i][0]}, s{S_CH+i}")
def lsetup():
    build_srds2()
    A(f"  s_and_b32 s{S_T2}, s{S_WV}, 1")
    chunk_sel(S_T2)
    quarters()
    A(f"""  v_lshrrev_b32 v11, 3, v0
  v_and_b32 v12, 7, v0
  v_bfe_u32 v13, v0, 4, 1
  v_lshlrev_b32 v13, 2, v13
  v_xor_b32 v12, v12, v13
  v_lshlrev_b32 v12, 4, v12
  v_lshl_add_u32 v{VWO}, v11, 10, v12
  s_lshl_b32 s{S_A0}, s{S_CB}, 8
  s_lshl_b32 s{S_T0}, s{S_T2}, 7
  s_add_u32 s{S_A0}, s{S_A0}, s{S_T0}
  s_lshr_b32 s{S_T0}, s{S_WV}, 1
  s_lshl_b32 s{S_T1}, s{S_T0}, 16
  s_add_u32 s{S_A0}, s{S_A0}, s{S_T1}
  s_lshl_b32 s{S_T0}, s{S_T0}, 13
  s_add_u32 s{S_CH}, s{S_CH}, s{S_T0}
  s_add_u32 s{S_CH+1}, s{S_CH+1}, s{S_T0}
  s_add_u32 s{S_CH+2}, s{S_CH+2}, s{S_T0}
  s_add_u32 s{S_CH+3}, s{S_CH+3}, s{S_T0}
  s_lshl_b32 s{S_FLG}, s{S_BR}, 7
  s_lshl_b32 s{S_T1}, s{S_RB}, 3
  s_add_u32 s{S_FLG}, s{S_FLG}, s{S_T1}
  s_add_u32 s{S_FLG}, s{S_FLG}, s{S_HG}
  s_lshl_b32 s{S_FLG}, s{S_FLG}, 7
  s_add_u32 s{S_FLG}, s{S_FLG}, {WS_FLG}
  v_mov_b32 v8, 1
  v_mov_b32 v15, 0
  v_and_b32 v{VZ}, 7, v0
  v_lshlrev_b32 v{VZ}, 2, v{VZ}
  v_lshlrev_b32 v6, 7, v0
  v_lshlrev_b32 v7, 4, v0""")
def wo_group(i):
    A(f"  s_lshl_b32 s{S_T0}, s{S_Q+i}, 5\n  s_add_u32 s{S_T2}, s{S_T0}, s{S_A0}")
    for k in range(8): dma(VWO, SRD_WO, S_T2, k * 8192, S_CH + i, k * 1024)
sizes = []
def outstanding_after(kid):
    idx = [i for i, x in enumerate(sizes) if (x[0], x[1]) == kid][0]
    return sum(x[2] for x in sizes[idx + 1:])
def do_group(g):
    e = issue_group(g); sizes.append(("g", g, gsize(g))); sizes.append(("t", g, e))
for g in range(args.D0): do_group(g)
lsetup()
nxt = args.D0
for bq in range(17):
    if bq < 16: A(f"  s_waitcnt vmcnt({min(63, outstanding_after(('g', bq)))})")
    A("  s_barrier")
    while nxt < 16 and nxt <= bq + D - 1 and nxt <= bq + 5 and (nxt <= bq + args.D0 or bq >= args.ramp):
        do_group(nxt); nxt += 1
    for i in range(4):
        if freeat[i] == bq: wo_group(i); sizes.append(("w", i, 8))
stamp(6)
def init_check(tag, v, vz):
    A(f"""  s_mov_b32 s{S_T1}, 0x01010101
L_ic{tag}:
  s_waitcnt vmcnt(0)
  v_cmp_ne_u32 vcc, s{S_T1}, v{v}
  s_nop 3
  s_cmp_eq_u64 vcc, 0
  s_cbranch_scc1 L_id{tag}
{spin(f"L_id{tag}")}
  s_sleep 4
  global_load_dword v{v}, v{vz}, s[{S_DBG}:{S_DBG+1}] sc1
  s_branch L_ic{tag}
L_id{tag}:""")
def poll(tag, voff, sreg, val=1):
    A(f"""L_pl{tag}:
  buffer_load_dword v16, v{voff}, s[{SRD_WS}:{SRD_WS+3}], s{sreg} offen sc1
  s_waitcnt vmcnt(0)
  v_cmp_ne_u32 vcc, {val}, v16
  s_and_b64 exec, exec, vcc
  s_cbranch_execz L_po{tag}
{spin(f"L_po{tag}")}
  s_sleep {args.psleep}
  s_branch L_pl{tag}
L_po{tag}:
  s_mov_b64 exec, -1""")
A("  s_barrier")
A(f"""  s_cmp_lg_u32 s{S_WV}, 0
  s_cbranch_scc1 L_nofl
  s_mov_b64 exec, 1
  buffer_store_dword v8, v15, s[{SRD_WS}:{SRD_WS+3}], s{S_FLG} offen sc1
  s_mov_b64 exec, -1
  s_waitcnt vmcnt({outstanding_after(('w', 1)) + 1})
  s_branch L_fl2
L_nofl:
  s_waitcnt vmcnt({outstanding_after(('w', 1))})
L_fl2:
  s_barrier""")
stamp(7)
A(f"""  s_cmp_lg_u32 s{S_WV}, 0
  s_cbranch_scc1 L_await
  s_lshr_b32 s{S_T1}, s{S_RB2}, 1
  s_lshl_b32 s{S_T1}, s{S_T1}, 10
  s_lshl_b32 s{S_T0}, s{S_BR}, 14
  s_add_u32 s{S_T1}, s{S_T1}, s{S_T0}
  s_add_u32 s{S_T1}, s{S_T1}, {WS_FLG}
  s_mov_b64 exec, 0xff""")
poll("R", 6, S_T1)
A(f"""L_await:
  s_lshl_b32 s{S_T3}, s{S_RB2}, 16
  s_lshl_b32 s{S_T0}, s{S_WV}, 14
  s_add_u32 s{S_T3}, s{S_T3}, s{S_T0}
  s_and_b32 s{S_T2}, s{S_WV}, 1
  s_lshl_b32 s{S_T2}, s{S_T2}, 14
  s_lshr_b32 s{S_T0}, s{S_WV}, 1
  s_mul_i32 s{S_T0}, s{S_T0}, {ORH}
  s_add_u32 s{S_T2}, s{S_T2}, s{S_T0}
  s_waitcnt vmcnt(0)
  s_barrier""")
def lfin():
    if NSTAMP:
        A(f"  s_cmp_lg_u32 s{S_WV}, 0\n  s_cbranch_scc1 L_end")
        stamp_flush([6, 7, 8], 12)
    A("  s_endpgm")
A(f"  s_cmp_eq_u32 s{S_BR}, 0\n  s_cbranch_scc1 L_oload")
A(f"""  s_mov_b32 s{S_T1}, {WS_FLG + 128*128}
  s_mov_b32 s{S_T2}, {WS_FLG + 192*128}
  v_lshrrev_b32 v11, 2, v0
  v_lshlrev_b32 v11, 4, v11
  v_bfe_u32 v12, v0, 1, 1
  v_lshl_add_u32 v11, v12, 8, v11
  v_and_b32 v12, 1, v0
  v_lshl_add_u32 v11, v12, 3, v11
  s_lshl_b32 s{S_A0}, s{S_WV}, 3
  s_mul_i32 s{S_A1}, s{S_A0}, {KVH}
  s_add_u32 s{S_A1}, s{S_A1}, {WS_KV}
  v_bfe_u32 v12, v0, 2, 3
  v_mul_u32_u24 v13, {KVH}, v12
  v_and_b32 v14, 3, v0
  v_lshl_add_u32 v13, v14, 4, v13
  v_add_u32 v13, 1024, v13
  v_add_u32 v12, s{S_A0}, v12              ; head
  v_mul_u32_u24 v20, {KVS}, v12
  v_lshl_add_u32 v20, v14, 3, v20
  v_add_u32 v20, {KV0 + 512}, v20
  v_add_u32 v21, {KV1 - KV0}, v20
  v_cmp_lt_u32 vcc, 10, v12
  s_nop 1
  v_cndmask_b32 v20, v20, v21, vcc""")
A(f"  v_mul_u32_u24 v21, {KVH}, v0\n  v_add_u32 v21, 1088, v21\n  s_mov_b64 exec, 0xff")
poll("K", 21, S_A1, 16)
stamp(8)
for h in range(8):
    r = 24 + h * 4
    A(f"  s_add_u32 s{S_T1}, s{S_A1}, {h*KVH}\n  buffer_load_dwordx4 v[{r}:{r+3}], v7, s[{SRD_WS}:{SRD_WS+3}], s{S_T1} offen {args.cl}")
A(f"  buffer_load_dwordx4 v[56:59], v13, s[{SRD_WS}:{SRD_WS+3}], s{S_A1} offen {args.cl}")
for h in range(8):
    r = 24 + h * 4
    A(f"""  s_add_u32 s{S_T0}, s{S_A0}, {h}
  s_mul_i32 s{S_T1}, s{S_T0}, {KVS}
  s_cmp_lt_u32 s{S_T0}, 11
  s_cselect_b32 s{S_T0}, 0, {KV1-KV0}
  s_add_u32 s{S_T1}, s{S_T1}, s{S_T0}
  s_add_u32 s{S_T1}, s{S_T1}, {KV0}
  v_add_u32 v{60+h}, s{S_T1}, v11""")
for h in range(8):
    r = 24 + h * 4
    A(f"  s_waitcnt vmcnt({8-h})")
    cvt(r, r)
    A(f"  ds_write_b64 v{60+h}, v[{r}:{r+1}]")
A("  s_waitcnt vmcnt(0)")
cvt(56, 56)
A("  ds_write_b64 v20, v[56:57]\n  s_waitcnt lgkmcnt(0)\n  s_barrier")
if NSTAMP: A("  s_barrier")
lfin()
A("L_oload:")
stamp(8)
def oloads(i):
    A(f"  s_add_u32 s{S_A0}, s{S_T3}, s{S_Q+i}\n  s_add_u32 s{S_A1}, s{S_T2}, s{S_Q+i}")
    for h in range(4):
        A(f"  s_add_u32 s{S_T1}, s{S_A0}, {h*1024}\n  s_add_u32 m0, s{S_A1}, {h*1024}\n  s_nop 0\n  buffer_load_dwordx4 v7, s[{SRD_WS}:{SRD_WS+3}], s{S_T1} offen {args.cl} lds")
oloads(0)
A("  s_waitcnt vmcnt(0)")
oloads(1)
A("  s_barrier")
oloads(2); oloads(3)
for i in (1, 2, 3): A(f"  s_waitcnt vmcnt({4*(3-i)})\n  s_barrier")
lfin()

V_XA = 1; V_WA = 2; V_XA1 = 3; V_ONE = 4; V_OA = 5; V_X0C = 6; V_X1C = 13; V_WC = 14; V_IFA = 15
V_IF = 160; V_DUM = 161; V_NC = 162; V_ONESB = 164
A("L_comp:")
A(f"  s_and_b32 s{S_HH}, s{S_WV}, 3\n  s_lshr_b32 s{S_RH}, s{S_WV}, 2")
if args.codepf:
    A(f"""  s_getpc_b64 s[{S_M0}:{S_M0+1}]
L_pcref:
  s_sub_u32 s{S_M0}, s{S_M0}, L_pcref-{NAME}
  s_subb_u32 s{S_M0+1}, s{S_M0+1}, 0
  s_lshl_b32 s{S_T0}, s{S_J}, 3
  s_add_u32 s{S_T0}, s{S_T0}, s{S_WV}
  s_lshl_b32 s{S_T0}, s{S_T0}, 7
  s_min_u32 s{S_T0}, s{S_T0}, (L_codeend-{NAME}-4)&0xfffffffc
  v_mov_b32 v7, s{S_T0}
  s_mov_b64 exec, 1
  global_load_dword v{V_DUM}, v7, s[{S_M0}:{S_M0+1}]
  s_mov_b64 exec, -1""")
A(f"""  v_and_b32 v7, 15, v0
  v_lshrrev_b32 v8, 4, v0
  v_lshrrev_b32 v9, 1, v7
  v_xor_b32 v9, v9, v8
  v_lshlrev_b32 v9, 4, v9
  v_lshl_add_u32 v{V_XA}, v7, 7, v9
  v_lshrrev_b32 v9, 2, v7
  v_lshl_add_u32 v9, v8, 3, v9
  v_lshrrev_b32 v10, 1, v9
  v_and_b32 v10, 1, v10
  v_and_b32 v11, 1, v8
  v_lshl_or_b32 v10, v11, 1, v10
  v_xor_b32 v10, s{S_HH}, v10
  v_lshlrev_b32 v10, 5, v10
  v_lshl_add_u32 v10, v9, 7, v10
  v_and_b32 v11, 3, v7
  v_lshl_add_u32 v{V_WA}, v11, 3, v10
  v_add_u32 v{V_WA}, {WBASE}, v{V_WA}
  v_mov_b32 v{V_ONE}, 1
  s_lshl_b32 s{S_T0}, s{S_HG}, 2
  s_add_u32 s{S_T0}, s{S_T0}, s{S_HH}
  s_lshl_b32 s{S_OB}, s{S_T0}, 9
  s_lshl_b32 s{S_T1}, s{S_RB}, 17
  s_add_u32 s{S_OB}, s{S_OB}, s{S_T1}
  s_lshl_b32 s{S_T1}, s{S_BR}, 21
  s_add_u32 s{S_OB}, s{S_OB}, s{S_T1}
  s_mul_i32 s{S_C3}, s{S_T0}, {KVH}
  s_add_u32 s{S_C3}, s{S_C3}, {WS_KV}
  s_lshl_b32 s{S_FLG}, s{S_BR}, 7
  s_lshl_b32 s{S_T1}, s{S_RB}, 3
  s_add_u32 s{S_FLG}, s{S_FLG}, s{S_T1}
  s_add_u32 s{S_FLG}, s{S_FLG}, s{S_HG}
  s_lshl_b32 s{S_FLG}, s{S_FLG}, 7
  s_add_u32 s{S_FLG}, s{S_FLG}, {WS_FLG}
  s_lshl_b32 s{S_T1}, s{S_WV}, 2
  s_add_u32 s{S_FLG}, s{S_FLG}, s{S_T1}
  v_and_b32 v9, 1, v8
  v_lshlrev_b32 v9, 14, v9
  v_lshrrev_b32 v10, 1, v8
  v_lshl_add_u32 v9, v10, 8, v9
  v_lshl_add_u32 v{V_OA}, v7, 4, v9
  v_and_b32 v{V_IFA}, 7, v0
  v_lshlrev_b32 v{V_IFA}, 2, v{V_IFA}
  s_mov_b32 s{S_IT}, 0
  s_mov_b32 s{S_XO}, 0
  s_mov_b32 s{S_WO}, 0
  v_mov_b32 v{V_WC}, v{V_WA}
  s_waitcnt lgkmcnt(0)""")
build_srds2()
A(f"  s_cmp_eq_u32 s{S_BR}, 0\n  s_cbranch_scc0 L_compB")

wadv_c = [f"  s_add_u32 s{S_WO}, s{S_WO}, {WSLOT}", f"  s_cmp_eq_u32 s{S_WO}, {WSLOT*NWS}", f"  s_cselect_b32 s{S_WO}, 0, s{S_WO}", f"  v_add_u32 v{V_WC}, s{S_WO}, v{V_WA}"]
xadv_c = [f"  s_add_u32 s{S_XO}, s{S_XO}, {XSLOT}", f"  s_cmp_eq_u32 s{S_XO}, {XSLOT*NXS}", f"  s_cselect_b32 s{S_XO}, 0, s{S_XO}",
          f"  v_add_u32 v{V_X0C}, s{S_XO}, v{V_XA}", f"  v_add_u32 v{V_X1C}, s{S_XO}, v{V_XA1}"]
def mainloop(tag, reads, mfmas, extra_adv, tail, bpos):
    A("  s_barrier")
    stamp(1)
    for x in reads(0, 0): A(x)
    for kk in range(2):
        A(f"L_s{kk}{tag}:\n  s_waitcnt lgkmcnt(0)")
        m = mfmas(kk)
        adv = list(wadv_c) + (xadv_c + extra_adv if kk == 1 else [])
        r = reads(1 - kk, 1 - kk)
        ai = 0
        for i in range(bpos):
            A(m[i])
            want = min(len(adv), ((i + 1) * len(adv) + bpos - 2) // max(1, bpos - 1))
            while ai < want: A(adv[ai]); ai += 1
        A("  s_barrier")
        ri = 0; nm = len(m) - bpos
        for i, x in enumerate(m[bpos:]):
            want = min(len(r), ((i + 1) * len(r) + nm - 3) // max(1, nm - 2))
            while ri < want: A(r[ri]); ri += 1
            A(x)
        while ri < len(r): A(r[ri]); ri += 1
    tail()
    A(f"  s_add_u32 s{S_IT}, s{S_IT}, 1\n  s_cmp_lt_u32 s{S_IT}, 8\n  s_cbranch_scc1 L_s0{tag}")
    A(f"  global_load_dword v{V_IF}, v{V_IFA}, s[{S_DBG}:{S_DBG+1}] sc1")
    stamp(2)
    A("  s_waitcnt lgkmcnt(0)")
def trr(d, seg): return [f"  ds_read_b64_tr_b16 v[{d}:{d+1}], v{V_WC} offset:{seg*4096}", f"  ds_read_b64_tr_b16 v[{d+2}:{d+3}], v{V_WC} offset:{seg*4096 + 512}"]
def mm(acc, a, b): return f"  v_mfma_f32_16x16x32_bf16 v[{acc}:{acc+3}], v[{a}:{a+3}], v[{b}:{b+3}], v[{acc}:{acc+3}]"
def store_frags(src, nt, dst):
    for t in range(nt):
        d = dst + 4 * t
        cvt(d, src(2 * t)); cvt(d + 2, src(2 * t + 1))
    A("  s_nop 1")
    for t in range(nt):
        d = dst + 4 * t
        A(f"  v_permlane16_swap_b32 v{d}, v{d+2}\n  v_permlane16_swap_b32 v{d+1}, v{d+3}")
    for t in range(nt):
        d = dst + 4 * t
        A(f"  s_add_u32 s{S_T0}, s{S_OB}, {t*32768}")
        A(f"  buffer_store_dwordx4 v[{d}:{d+3}], v{V_OA}, s[{SRD_WS}:{SRD_WS+3}], s{S_T0} offen sc1")

ACC = 16
AQ = lambda b: ACC + 4 * b
AK = lambda b: ACC + 16 + 4 * b
AV = lambda b: ACC + 36 + 4 * b
FX = lambda buf, b: 72 + 32 * buf + 4 * b
FW = lambda buf, seg: 72 + 32 * buf + 20 + 4 * seg
V_HA = 136; V_H0C = 137; V_H1C = 138
MK = 140; MK0 = 144; V_HI = 148; V_PV = 149; V_ONES = 150
A(f"""  v_mov_b32 v{V_HA}, v{V_XA}
  s_cmp_eq_u32 s{S_RH}, 0
  s_cbranch_scc1 L_h0ok
  v_or_b32 v10, 8, v7
  v_lshrrev_b32 v9, 1, v10
  v_xor_b32 v9, v9, v8
  v_lshlrev_b32 v9, 4, v9
  v_lshl_add_u32 v9, v10, 7, v9
  v_lshrrev_b32 v10, 3, v7
  v_lshlrev_b32 v10, 11, v10
  v_add_u32 v9, v9, v10
  v_add_u32 v{V_HA}, {2048*3}, v9
L_h0ok:
  s_lshl_b32 s{S_T0}, s{S_RH}, 13
  s_add_u32 s{S_T0}, s{S_T0}, 2048
  v_add_u32 v{V_XA}, s{S_T0}, v{V_XA}
  v_xor_b32 v{V_XA1}, 64, v{V_XA}
  v_mov_b32 v{V_X0C}, v{V_XA}
  v_mov_b32 v{V_X1C}, v{V_XA1}
  v_mov_b32 v{V_H0C}, v{V_HA}
  v_xor_b32 v{V_H1C}, 64, v{V_HA}
  s_lshl_b32 s{S_T1}, s{S_RH}, 16
  s_add_u32 s{S_OB}, s{S_OB}, s{S_T1}""")
for r in range(ACC, ACC + 56): A(f"  v_mov_b32 v{r}, 0")
A(f"""  v_lshlrev_b32 v9, 2, v8
  v_sub_u32 v9, v7, v9
  s_mov_b32 s{S_C0}, 0xf149f2ca
  v_mov_b32 v10, s{S_C0}""")
for r in range(4):
    A(f"""  v_subrev_u32 v11, {r}, v9
  v_and_b32 v12, 15, v11
  v_cmp_gt_u32 vcc, 8, v12
  s_nop 1
  v_cndmask_b32 v{MK+r}, v10, 0, vcc
  v_cmp_gt_u32 vcc, 8, v11
  s_nop 1
  v_cndmask_b32 v{MK0+r}, v10, 0, vcc""")
A(f"""  s_or_b32 s{S_T0}, s{S_RB}, s{S_RH}
  s_cmp_eq_u32 s{S_T0}, 0
  s_cbranch_scc1 L_m0
  v_mov_b32 v{MK0}, v{MK}
  v_mov_b32 v{MK0+1}, v{MK+1}
  v_mov_b32 v{MK0+2}, v{MK+2}
  v_mov_b32 v{MK0+3}, v{MK+3}
L_m0:
  v_cmp_lt_u32 s[{S_M0}:{S_M0+1}], 7, v7
  v_cmp_lt_u32 vcc, 1, v8
  s_nop 1
  v_cndmask_b32 v{V_HI}, 0, -1, s[{S_M0}:{S_M0+1}]
  s_andn2_b64 s[{S_M1}:{S_M1+1}], vcc, s[{S_M0}:{S_M0+1}]
  v_mov_b32 v{V_ONES}, 0x3f803f80
  v_mov_b32 v{V_ONES+1}, 0x3f803f80
  v_cndmask_b32 v{V_PV}, 0, -1, s[{S_M1}:{S_M1+1}]
  v_mov_b32 v{V_ONES+2}, 0x3f803f80
  v_mov_b32 v{V_ONES+3}, 0x3f803f80
  s_mov_b32 s{S_C0}, 0x3eb8aa3b""")
def readsA(buf, kk):
    va = V_X0C if kk == 0 else V_X1C
    r = trr(FW(buf, 1), 1) + trr(FW(buf, 2), 2) + trr(FW(buf, 0), 0)
    for b in range(4): r.append(f"  ds_read_b128 v[{FX(buf,b)}:{FX(buf,b)+3}], v{va} offset:{b*2048}")
    r.append(f"  ds_read_b128 v[{FX(buf,4)}:{FX(buf,4)+3}], v{V_H0C if kk == 0 else V_H1C}")
    return r
def mfmasA(buf):
    m = []
    for b in range(4):
        x = FX(buf, b)
        m += [mm(AK(b), FW(buf, 1), x), mm(AV(b), x, FW(buf, 2)), mm(AQ(b), FW(buf, 0), x)]
    x = FX(buf, 4)
    return m + [mm(AK(4), FW(buf, 1), x), mm(AV(4), x, FW(buf, 2))]
mainloop("A", readsA, mfmasA, [f"  v_add_u32 v{V_H0C}, s{S_XO}, v{V_HA}", f"  v_xor_b32 v{V_H1C}, 64, v{V_H0C}"], lambda: None, args.bpos)
K4 = lambda b: 72 + 4 * b
Q4 = lambda b: 88 + 4 * b
VP = lambda p, i: 104 + 6 * p + 2 * i
KH = 116; KH2 = 118; TT = 120
for b in range(4):
    cvt(K4(b), AK(b))
    cvt(VP(b & 1, (b >> 1) + 1), AV(b))
    tt = TT + 2 * (b & 1)
    cvt(tt, AQ(b))
    A(f"  v_and_b32 v{Q4(b)}, v{tt}, v{V_HI}\n  v_and_b32 v{Q4(b)+1}, v{tt+1}, v{V_HI}")
    A(f"  v_xor_b32 v{Q4(b)+2}, v{tt}, v{Q4(b)}\n  v_xor_b32 v{Q4(b)+3}, v{tt+1}, v{Q4(b)+1}")
cvt(KH, AK(4))
cvt(VP(1, 0), AV(4))
A(f"""  s_nop 1
  v_mov_b32_dpp v{KH2}, v{KH} row_ror:8 row_mask:0xf bank_mask:0xf
  v_mov_b32_dpp v{KH2+1}, v{KH+1} row_ror:8 row_mask:0xf bank_mask:0xf
  v_mov_b32 v{VP(0,0)}, v{VP(1,0)}
  v_mov_b32 v{VP(0,0)+1}, v{VP(1,0)+1}
  v_mov_b32 v{TT}, v{VP(1,0)}
  v_mov_b32 v{TT+1}, v{VP(1,0)+1}
  s_nop 1
  v_permlane32_swap_b32 v{VP(0,0)}, v{TT}
  v_permlane32_swap_b32 v{VP(0,0)+1}, v{TT+1}""")
for b in range(4):
    t, p = b >> 1, b & 1
    prev = (KH2 if p == 0 else KH) if t == 0 else K4(p)
    A(f"  v_cndmask_b32 v{K4(b)+2}, v{K4(b)}, v{prev}, s[{S_M0}:{S_M0+1}]\n  v_cndmask_b32 v{K4(b)+3}, v{K4(b)+1}, v{prev+1}, s[{S_M0}:{S_M0+1}]")
A("  s_nop 1")
SS = lambda b: ACC + 4 * b
for b in range(4):
    mk = MK0 if b < 2 else MK
    A(f"  v_mfma_f32_16x16x32_bf16 v[{SS(b)}:{SS(b)+3}], v[{K4(b)}:{K4(b)+3}], v[{Q4(b)}:{Q4(b)+3}], v[{mk}:{mk+3}]")
MX = lambda b: 32 + b
MT = 36
A("  s_nop 7")
for b in range(4): A(f"  v_max3_f32 v{MX(b)}, v{SS(b)}, v{SS(b)+1}, v{SS(b)+2}")
for b in range(4): A(f"  v_max_f32 v{MX(b)}, v{MX(b)}, v{SS(b)+3}")
a, b_, c, d = [MX(i) for i in range(4)]
A(f"""  s_nop 0
  v_permlane32_swap_b32 v{a}, v{b_}
  v_permlane32_swap_b32 v{c}, v{d}
  v_max_f32 v{a}, v{a}, v{b_}
  v_max_f32 v{c}, v{c}, v{d}
  s_nop 1
  v_permlane16_swap_b32 v{a}, v{c}
  v_max_f32 v{a}, v{a}, v{c}
  v_mul_f32 v{a}, s{S_C0}, v{a}
  v_mov_b32 v{c}, v{a}
  s_nop 1
  v_permlane16_swap_b32 v{a}, v{c}
  v_mov_b32 v{b_}, v{a}
  v_mov_b32 v{d}, v{c}
  s_nop 0
  v_permlane32_swap_b32 v{a}, v{b_}
  v_permlane32_swap_b32 v{c}, v{d}""")
for b in range(4):
    for r in range(4): A(f"  v_fma_f32 v{SS(b)+r}, v{SS(b)+r}, s{S_C0}, -v{MX(b)}")
for b in range(4):
    for r in range(4): A(f"  v_exp_f32 v{SS(b)+r}, v{SS(b)+r}")
P4 = lambda b: 40 + 4 * b
for b in range(4):
    tt = MT + 2 * (b & 1)
    cvt(tt, SS(b))
    A(f"  v_and_b32 v{P4(b)}, v{tt}, v{V_PV}\n  v_and_b32 v{P4(b)+1}, v{tt+1}, v{V_PV}")
    A(f"  v_xor_b32 v{P4(b)+2}, v{tt}, v{P4(b)}\n  v_xor_b32 v{P4(b)+3}, v{tt+1}, v{P4(b)+1}")
A("  s_nop 1")
OO = lambda b: 72 + 4 * b
SM = lambda b: 88 + 4 * b
for b in range(4):
    t, p = b >> 1, b & 1
    A(f"  v_mfma_f32_16x16x32_bf16 v[{SM(b)}:{SM(b)+3}], v[{V_ONES}:{V_ONES+3}], v[{P4(b)}:{P4(b)+3}], 0")
    A(f"  v_mfma_f32_16x16x32_bf16 v[{OO(b)}:{OO(b)+3}], v[{VP(p,t)}:{VP(p,t)+3}], v[{P4(b)}:{P4(b)+3}], 0")
A("  s_nop 4")
for b in range(4): A(f"  v_rcp_f32 v{SM(b)}, v{SM(b)}")
for b in range(4):
    for r in range(4): A(f"  v_mul_f32 v{OO(b)+r}, v{OO(b)+r}, v{SM(b)}")
store_frags(OO, 2, ACC)
A("  s_branch L_phase2")

A("L_compB:")
A(f"""  s_mov_b32 s{S_C0}, 0x358637bd
  s_mov_b32 s{S_C1}, 0x3fb8aa3b
  s_mov_b32 s{S_C2}, {hex(f2u(-1e-6 * 1.4426950408889634))}
  v_mov_b32 v{V_NC}, s{S_C2}
  v_add_u32 v{V_XA}, 2048, v{V_XA}
  v_xor_b32 v{V_XA1}, 64, v{V_XA}
  v_mov_b32 v{V_X0C}, v{V_XA}
  v_mov_b32 v{V_X1C}, v{V_XA1}""")
for r in range(16, 48): A(f"  v_mov_b32 v{r}, s{S_C0}")
A(f"  s_cmp_lg_u32 s{S_RH}, 0\n  s_cbranch_scc1 L_compQ")
A(f"""  s_cmp_lg_u32 s{S_RB}, 0
  s_cbranch_scc1 L_nozero
  v_mov_b32 v8, 0
  v_mov_b32 v9, 0
  v_mov_b32 v10, 0
  v_mov_b32 v11, 0
  v_lshlrev_b32 v7, 4, v0
  buffer_store_dwordx4 v[8:11], v7, s[{SRD_WS}:{SRD_WS+3}], s{S_C3} offen sc1
  s_mov_b64 exec, 0xff
  buffer_store_dwordx4 v[8:11], v7, s[{SRD_WS}:{SRD_WS+3}], s{S_C3} offen offset:1024 sc1
  s_mov_b64 exec, -1
  s_lshl_b32 s{S_T0}, s{S_HG}, 12
  s_lshl_b32 s{S_T1}, s{S_HH}, 10
  s_add_u32 s{S_T0}, s{S_T0}, s{S_T1}
  s_add_u32 s{S_T0}, s{S_T0}, {WS_FLG}
  buffer_store_dwordx4 v[8:11], v7, s[{SRD_WS}:{SRD_WS+3}], s{S_T0} offen sc1
L_nozero:""")
BK = lambda b: 16 + 4 * b
BV = lambda b: 48 + 4 * b
GX = lambda buf, b: 80 + 40 * buf + 4 * b
GW = lambda buf, i: 80 + 40 * buf + 32 + 4 * i
for r in range(48, 80): A(f"  v_mov_b32 v{r}, 0")
for r in range(4): A(f"  v_mov_b32 v{V_ONESB+r}, 0x3f803f80")
def xreads(buf, kk):
    va = V_X0C if kk == 0 else V_X1C
    return [f"  ds_read_b128 v[{GX(buf,b)}:{GX(buf,b)+3}], v{va} offset:{b*2048}" for b in range(8)]
def readsKV(buf, kk): return trr(GW(buf, 0), 1) + trr(GW(buf, 1), 2) + xreads(buf, kk)
def mfmasKV(buf):
    m = []
    for b in range(8): m += [mm(BK(b), GX(buf, b), GW(buf, 0)), mm(BV(b), GX(buf, b), GW(buf, 1))]
    return m
def ack():
    A(f"""  s_or_b32 s{S_T0}, s{S_IT}, s{S_RB}
  s_cmp_lg_u32 s{S_T0}, 0
  s_cbranch_scc1 L_noack
  s_waitcnt vmcnt(0)
  s_lshl_b32 s{S_T0}, s{S_HG}, 2
  s_add_u32 s{S_T0}, s{S_T0}, s{S_HH}
  v_mov_b32 v11, s{S_T0}
  s_mov_b64 exec, 1
  global_store_byte v11, v{V_ONE}, s[{S_DBG}:{S_DBG+1}] sc1
  s_mov_b64 exec, -1
L_noack:""")
mainloop("K", readsKV, mfmasKV, [], ack, args.bpos)
PK = lambda b: 80 + 2 * b
VV = lambda b: 96 + 2 * b
ET = 112
def phi(acc, n, et):
    for i in range(n): A(f"  v_fma_f32 v{et+i}, v{acc+i}, s{S_C1}, v{V_NC}")
    for i in range(n): A(f"  v_exp_f32 v{et+i}, v{et+i} clamp")
    for i in range(n): A(f"  v_max_f32 v{acc+i}, s{S_C0}, v{acc+i}")
    for i in range(n): A(f"  v_add_f32 v{acc+i}, v{acc+i}, v{et+i}")
for b in range(8): cvt(VV(b), BV(b))
phi(BK(0), 32, ET)
for b in range(8): cvt(PK(b), BK(b))
KVA = 144; ZA = 148
A("  s_nop 1")
for i in range(4):
    c = "0" if i == 0 else f"v[{KVA}:{KVA+3}]"
    A(f"  v_mfma_f32_16x16x32_bf16 v[{KVA}:{KVA+3}], v[{VV(2*i)}:{VV(2*i)+3}], v[{PK(2*i)}:{PK(2*i)+3}], {c}")
    c = "0" if i == 0 else f"v[{ZA}:{ZA+3}]"
    A(f"  v_mfma_f32_16x16x32_bf16 v[{ZA}:{ZA+3}], v[{V_ONESB}:{V_ONESB+3}], v[{PK(2*i)}:{PK(2*i)+3}], {c}")
A("""  v_and_b32 v7, 15, v0
  v_lshlrev_b32 v7, 2, v7
  v_lshrrev_b32 v8, 5, v0
  v_lshl_add_u32 v7, v8, 8, v7
  v_bfe_u32 v8, v0, 4, 1
  v_lshl_add_u32 v7, v8, 9, v7""")
init_check("B", V_IF, V_IFA)
A("  s_nop 2")
for r in range(4):
    A(f"  buffer_atomic_add_f32 v{KVA+r}, v7, s[{SRD_WS}:{SRD_WS+3}], s{S_C3} offen offset:{64*r}")
A(f"  s_mov_b64 exec, 0xffff\n  buffer_atomic_add_f32 v{ZA}, v7, s[{SRD_WS}:{SRD_WS+3}], s{S_C3} offen offset:1024\n  s_mov_b64 exec, -1")
A(f"  v_mov_b32 v8, 0\n  s_waitcnt vmcnt(0)\n  s_mov_b64 exec, 1\n  buffer_atomic_add v{V_ONE}, v8, s[{SRD_WS}:{SRD_WS+3}], s{S_C3} offen offset:1088\n  s_mov_b64 exec, -1")
A("  s_branch L_phase2")
A("L_compQ:")
def readsQ(buf, kk): return trr(GW(buf, 0), 0) + xreads(buf, kk)
def mfmasQ(buf): return [mm(BK(b), GW(buf, 0), GX(buf, b)) for b in range(8)]
mainloop("Q", readsQ, mfmasQ, [], lambda: None, min(args.bpos, 2))
A("  s_nop 4")
phi(BK(0), 32, ET)
store_frags(BK, 4, 16)

A("L_phase2:")
stamp(3)
A(f"  s_lshr_b32 s{S_T2}, s{S_HH}, 1")
chunk_sel(S_T2)
quarters()
A(f"""  v_and_b32 v11, 15, v0
  v_lshrrev_b32 v12, 4, v0
  v_lshrrev_b32 v13, 2, v11
  v_lshl_add_u32 v13, v12, 3, v13
  v_and_b32 v14, 3, v11
  v_lshlrev_b32 v14, 4, v14
  v_lshl_add_u32 v14, v13, 7, v14
  v_bfe_u32 v10, v13, 1, 1
  s_and_b32 s{S_T0}, s{S_HH}, 1
  v_xor_b32 v10, s{S_T0}, v10
  v_lshl_add_u32 v6, v10, 6, v14
  v_add_u32 v2, s{S_CH}, v6
  v_add_u32 v3, s{S_CH+1}, v6
  v_lshlrev_b32 v11, 12, v11
  v_lshl_add_u32 v1, v12, 4, v11
  s_lshl_b32 s{S_C2}, s{S_RB2}, 17
  s_lshl_b32 s{S_T0}, s{S_RH}, 16
  s_add_u32 s{S_C2}, s{S_C2}, s{S_T0}
  s_lshl_b32 s{S_T0}, s{S_BR}, 10
  s_add_u32 s{S_C2}, s{S_C2}, s{S_T0}
  s_lshl_b32 s{S_T0}, s{S_CB}, 8
  s_add_u32 s{S_C2}, s{S_C2}, s{S_T0}
  s_lshl_b32 s{S_T0}, s{S_HH}, 6
  s_add_u32 s{S_C2}, s{S_C2}, s{S_T0}
  s_mul_i32 s{S_C3}, s{S_RH}, {ORH}""")
init_check("P", V_IF, V_IFA)
stamp(4)
A("  s_barrier\n  s_barrier")
WF = lambda ks, c: 104 + (ks % 8) * 8 + c * 4
def wo_reads(i, va):
    for k in range(4):
        for c in range(2):
            d = WF(4 * i + k, c)
            A(f"  ds_read_b64_tr_b16 v[{d}:{d+1}], v{va} offset:{k*4096 + 8*c}\n  ds_read_b64_tr_b16 v[{d+2}:{d+3}], v{va} offset:{k*4096 + 8*c + 512}")
wo_reads(0, 2); wo_reads(1, 3)
A(f"""  v_lshlrev_b32 v5, 4, v0
  v_add_u32 v5, s{S_C3}, v5
  v_and_b32 v11, 31, v0
  v_lshrrev_b32 v12, 5, v0
  v_lshrrev_b32 v13, 4, v11
  v_lshlrev_b32 v13, 14, v13
  v_lshl_add_u32 v13, v12, 8, v13
  v_and_b32 v14, 15, v11
  v_lshl_add_u32 v7, v14, 4, v13
  v_lshlrev_b32 v13, 4, v14
  v_lshl_add_u32 v13, v12, 8, v13
  v_lshlrev_b32 v10, 4, v12
  v_add_u32 v10, 512, v10
  v_cmp_lt_u32 vcc, 15, v11
  s_nop 1
  v_cndmask_b32 v4, v13, v10, vcc
  s_lshl_b32 s{S_C1}, s{S_RB2}, 16
  s_add_u32 s{S_C1}, s{S_C1}, 0x200000
  s_mov_b32 s{S_C0}, 0x358637bd
  s_waitcnt lgkmcnt(0)""")
stamp(5)
A("  s_barrier")
OA = lambda b, c: 16 + (b * 2 + c) * 4
OF = lambda k, b: 40 + (k % 8) * 8 + 4 * b
def gemm_all(bars):
    q = []
    def rd_o(k):
        i, h = k >> 2, k & 3
        for b in range(2):
            A(f"  ds_read_b128 v[{OF(k,b)}:{OF(k,b)+3}], v{8+i} offset:{b*16384 + h*1024}"); q.append(("o", k))
    def rd_w(k):
        i, h = k >> 2, k & 3
        for c in range(2):
            d = WF(k, c)
            A(f"  ds_read_b64_tr_b16 v[{d}:{d+1}], v{i} offset:{h*4096 + 8*c}"); q.append(("w", k))
            A(f"  ds_read_b64_tr_b16 v[{d+2}:{d+3}], v{i} offset:{h*4096 + 8*c + 512}"); q.append(("w", k))
    if bars: A("  s_barrier"); stamp(9)
    for k in range(4): rd_o(k)
    for k in range(16):
        need = [j for j, t in enumerate(q) if t[1] <= k]
        if need:
            n = len(q) - 1 - need[-1]
            A(f"  s_waitcnt lgkmcnt({min(n, 15)})")
            del q[:need[-1] + 1]
        ms = []
        for b in range(2):
            for c in range(2):
                acc = OA(b, c); wf = WF(k, c); d = OF(k, b)
                cin = "0" if k == 0 else f"v[{acc}:{acc+3}]"
                ms.append(f"  v_mfma_f32_16x16x32_bf16 v[{acc}:{acc+3}], v[{wf}:{wf+3}], v[{d}:{d+3}], {cin}")
        A(ms[0]); A(ms[1])
        kn = k + 4 if not bars else None
        if bars:
            if k % 4 == 1 and k + 3 < 16:
                A("  s_barrier")
                for kk in range(k + 3, k + 5): rd_o(kk)
            elif k % 4 == 2 and k + 4 < 16:
                for kk in range(k + 4, k + 6): rd_o(kk)
        elif k + 4 < 16: rd_o(k + 4)
        A(ms[2]); A(ms[3])
        if k < 8: rd_w(k + 8)
A(f"  v_add_u32 v2, s{S_CH+2}, v6\n  v_add_u32 v3, s{S_CH+3}, v6")
for i in range(4): A(f"  v_add_u32 v{8+i}, s{S_Q+i}, v5")
A(f"  s_cmp_lg_u32 s{S_BR}, 0\n  s_cbranch_scc1 L_p2B")
gemm_all(True)
A("  s_branch L_fin")
A("L_p2B:")
PQ = lambda i, rg: 40 + (i * 2 + rg) * 4
A(f"""  s_lshr_b32 s{S_A0}, s{S_WV}, 1
  s_lshl_b32 s{S_A0}, s{S_A0}, 10
  s_and_b32 s{S_T0}, s{S_WV}, 1
  s_lshl_b32 s{S_T0}, s{S_T0}, 9
  s_add_u32 s{S_A0}, s{S_A0}, s{S_T0}""")
for i in range(4):
    A(f"  s_add_u32 s{S_T2}, s{S_A0}, {i*4096}\n  s_add_u32 s{S_T2}, s{S_T2}, s{S_C1}\n  s_add_u32 s{S_T3}, s{S_T2}, 32768")
    for rg in range(2):
        d = PQ(i, rg)
        A(f"  buffer_load_dwordx4 v[{d}:{d+3}], v7, s[{SRD_WS}:{SRD_WS+3}], s{S_T2 if rg == 0 else S_T3} offen {args.cl}")
for i in range(4):
    A(f"""  s_add_u32 s{S_T0}, s{S_WV}, {8*i}
  s_mul_i32 s{S_T1}, s{S_T0}, {KVS}
  s_cmp_lt_u32 s{S_T0}, 11
  s_cselect_b32 s{S_T0}, 0, {KV1-KV0}
  s_add_u32 s{S_T1}, s{S_T1}, s{S_T0}
  s_add_u32 s{S_T1}, s{S_T1}, {KV0}
  v_add_u32 v{12+i}, s{S_T1}, v4""")
A(f"  v_add_u32 v32, s{S_A0}, v7\n  v_add_u32 v33, {ORH}, v32\n  s_waitcnt vmcnt(0)")
stamp(12)
A("  s_barrier")
stamp(13)
for i in range(4): A(f"  ds_read_b128 v[{16+4*i}:{19+4*i}], v{12+i}")
def pm(u):
    i, rg = u >> 1, u & 1; d = 72 + 16 * rg
    A(f"  v_mfma_f32_32x32x16_bf16 v[{d}:{d+15}], v[{16+4*i}:{19+4*i}], v[{PQ(i,rg)}:{PQ(i,rg)+3}], 0")
def pv(u):
    i, rg = u >> 1, u & 1; d = 72 + 16 * rg
    A(f"  v_add_f32 v{d+8}, s{S_C0}, v{d+8}\n  v_rcp_f32 v{d+8}, v{d+8}\n  s_nop 0")
    for r in range(0, 8, 2):
        A(f"  v_pk_mul_f32 v[{d+r}:{d+r+1}], v[{d+r}:{d+r+1}], v[{d+8}:{d+9}] op_sel_hi:[1,0]")
    o_ = PQ(i, rg)
    cvt(o_, d); cvt(o_ + 2, d + 4)
    A(f"  ds_write_b128 v{32+rg}, v[{o_}:{o_+3}] offset:{i*4096}")
A("  s_waitcnt lgkmcnt(0)")
pm(0); pm(1)
A("  s_nop 10")
for u in range(8):
    pv(u)
    if u + 2 < 8: pm(u + 2)
    if u == 6: A("  s_nop 0")
A("  s_waitcnt lgkmcnt(0)")
stamp(14)
A("  s_barrier")
stamp(9)
gemm_all(False)
A("L_fin:\n  s_nop 7")
for b in range(2):
    d = 32 + 4 * b
    cvt(d, OA(b, 0)); cvt(d + 2, OA(b, 1))
    A(f"  s_add_u32 s{S_T0}, s{S_C2}, {b * 2048}")
    A(f"  buffer_store_dwordx4 v[{d}:{d+3}], v1, s[{SRD_OUT}:{SRD_OUT+3}], s{S_T0} offen")
stamp(10)
if NSTAMP:
    A("  s_waitcnt vmcnt(0)")
    stamp(11)
    A(f"  s_cmp_lg_u32 s{S_WV}, 0\n  s_cbranch_scc1 L_end")
    stamp_flush([0, 1, 2, 3, 4, 5, 9, 10, 11, 12, 13, 14], 8)
A("L_end:\n  s_endpgm\nL_codeend:")
A(f""".section .rodata,"a"
.p2align 6
.amdhsa_kernel {NAME}
  .amdhsa_next_free_vgpr 168
  .amdhsa_next_free_sgpr 102
  .amdhsa_accum_offset 168
  .amdhsa_group_segment_fixed_size 0
  .amdhsa_kernarg_size 72
  .amdhsa_user_sgpr_count 2
  .amdhsa_user_sgpr_kernarg_segment_ptr 1
  .amdhsa_system_sgpr_workgroup_id_x 1
.end_amdhsa_kernel""")
print("\n".join(out))
```

```python
import sys, argparse, struct
ap = argparse.ArgumentParser()
ap.add_argument("--stamps", type=int, default=0)
ap.add_argument("--order", type=str, default="g4c")
ap.add_argument("--dbg", type=str, default="")
ap.add_argument("--touch", type=int, default=4)
ap.add_argument("--psleep", type=int, default=2)
ap.add_argument("--maxfl", type=int, default=20)
ap.add_argument("--codepf", type=int, default=0)
ap.add_argument("--D", type=int, default=5)
ap.add_argument("--D0", type=int, default=2)
ap.add_argument("--ramp", type=int, default=4)
ap.add_argument("--bpos", type=int, default=3)
ap.add_argument("--ost", type=str, default="")
ap.add_argument("--cl", type=str, default="")
args = ap.parse_args()
NAME = "concat_heads__sliding_local_dilated__linear_attn_block__prompt_kernel"
out = []
def A(s): out.append(s)
def f2u(x): return struct.unpack("<I", struct.pack("<f", x))[0]
SPINMAX = "0x40000"
XSLOT = 18432; NXS = 4
WBASE = XSLOT * NXS
WSLOT = 12288; NWS = 7
LDS_TOTAL = WBASE + WSLOT * NWS
ORH = 98304
KVS = 544
KV0 = 32768; KV1 = 147456 - 11 * KVS
WS_KV = 4 << 20
KVH = 1152
WS_FLG = (4 << 20) + 65536
STAMP_OFF = 128 << 20
NSTAMP = args.stamps
S_PTR = 4; S_WS = 20; S_FLG = 22; S_SEQ = 23
SRD_X = 24; SRD_W = 28; SRD_WO = 32; SRD_OUT = 36; SRD_WS = 40
S_DBG = 44
S_BR = 46; S_RB = 47; S_HG = 48; S_RB2 = 49; S_CB = 50; S_WV = 51; S_J = 52; S_XQ = 53
S_XB = 54; S_XH = 55; S_WB = 56
S_T0 = 57; S_T1 = 58; S_T2 = 59; S_T3 = 60; S_IT = 61
S_M0 = 62; S_M1 = 64
S_XO = 66; S_WO = 67
S_C0 = 68; S_C1 = 69; S_C2 = 70; S_C3 = 71
S_OB = 72; S_SPIN = 73; S_STB = 74
S_ST = 76
S_CH = 12
S_A0 = 16; S_A1 = 17; S_A2 = 18; S_A3 = 19
S_Q = 4
S_HH = 54; S_RH = 55

def sreg(i): return S_ST + 2 * (i if i < 12 else i - 6)
def stamp(i):
    if i < NSTAMP: A(f"  s_memrealtime s[{sreg(i)}:{sreg(i)+1}]")
def stamp_flush(idxs, vtmp):
    if not NSTAMP: return
    A(f"  s_waitcnt lgkmcnt(0)\n  s_mov_b64 exec, 1\n  v_mov_b32 v{vtmp+2}, 0")
    for i in idxs:
        if i < NSTAMP:
            A(f"  v_mov_b32 v{vtmp}, s{sreg(i)}\n  v_mov_b32 v{vtmp+1}, s{sreg(i)+1}")
            A(f"  global_store_dwordx2 v{vtmp+2}, v[{vtmp}:{vtmp+1}], s[{S_STB}:{S_STB+1}] offset:{8*i}\n  s_nop 1")
    A("  s_mov_b64 exec, -1")
def spin(lbl_out):
    return f"  s_add_u32 s{S_SPIN}, s{S_SPIN}, 1\n  s_cmp_gt_u32 s{S_SPIN}, {SPINMAX}\n  s_cbranch_scc1 {lbl_out}"
def cvt(d, a):
    A(f"  v_cvt_pk_bf16_f32 v{d}, v{a}, v{a+1}\n  v_cvt_pk_bf16_f32 v{d+1}, v{a+2}, v{a+3}")
def quarters():
    for i in range(4):
        A(f"  s_add_u32 s{S_T0}, s{S_CB}, {i}\n  s_and_b32 s{S_T0}, s{S_T0}, 3\n  s_lshl_b32 s{S_Q+i}, s{S_T0}, 12")

A(f"; @launch grid=(256,1,1) block=(768,1,1) lds={LDS_TOTAL}")
A('.amdgcn_target "amdgcn-amd-amdhsa--gfx950"\n.text\n.globl %s\n.p2align 8\n.type %s,@function\n%s:' % (NAME, NAME, NAME))
A("  s_cmp_ge_u32 s2, 256\n  s_cbranch_scc1 L_end")
A(f"  s_load_dwordx16 s[{S_PTR}:{S_PTR+15}], s[0:1], 0\n  s_load_dwordx2 s[{S_WS}:{S_WS+1}], s[0:1], 64")
stamp(0)
A(f"""  v_lshrrev_b32 v1, 6, v0
  v_and_b32 v0, 63, v0
  v_readfirstlane_b32 s{S_WV}, v1
  s_and_b32 s{S_T0}, s2, 7
  s_lshr_b32 s{S_J}, s2, 3
  s_lshr_b32 s{S_BR}, s{S_T0}, 2
  s_and_b32 s{S_XQ}, s{S_T0}, 3
  s_lshr_b32 s{S_T1}, s{S_XQ}, 1
  s_lshl_b32 s{S_T1}, s{S_T1}, 3
  s_lshr_b32 s{S_T2}, s{S_J}, 2
  s_add_u32 s{S_RB}, s{S_T1}, s{S_T2}
  s_and_b32 s{S_T1}, s{S_XQ}, 1
  s_lshl_b32 s{S_T1}, s{S_T1}, 2
  s_and_b32 s{S_CB}, s{S_J}, 3
  s_add_u32 s{S_HG}, s{S_T1}, s{S_CB}
  s_lshl_b32 s{S_T1}, s{S_XQ}, 3
  s_add_u32 s{S_RB2}, s{S_T1}, s{S_T2}
  s_mov_b32 s{S_SPIN}, 0
  s_cmp_lt_u32 s{S_WV}, 8
  s_cbranch_scc1 L_comp""")

VX0 = 1; VX1 = 2; VW = 3; VXH = 4; VWO = 5; VTW = 9; VZ = 10
L_HL = S_C3; L_XL = S_C2; L_WL = S_C1
def seq_pack(l): return sum(x << (4 * i) for i, x in enumerate(l))
o = args.order
A(f"""  s_sub_u32 s{S_WV}, s{S_WV}, 8
  v_lshrrev_b32 v11, 3, v0
  v_and_b32 v12, 7, v0
  v_lshrrev_b32 v13, 4, v0
  v_xor_b32 v14, v12, v13
  v_lshlrev_b32 v14, 4, v14
  v_lshl_add_u32 v{VX0}, v11, 11, v14
  v_xor_b32 v{VX1}, 64, v{VX0}
  v_and_b32 v13, 1, v13
  v_lshlrev_b32 v13, 1, v13
  v_xor_b32 v14, v12, v13
  v_lshlrev_b32 v14, 4, v14
  v_mul_u32_u24 v{VW}, 3072, v11
  v_add_u32 v{VW}, v{VW}, v14
  s_and_b32 s{S_T0}, s{S_WV}, 1
  s_lshl_b32 s{S_T1}, s{S_T0}, 6
  v_xor_b32 v{VW}, s{S_T1}, v{VW}
  v_xor_b32 v{VXH}, s{S_T1}, v{VX0}
  s_lshl_b32 s{S_XB}, s{S_RB}, 17
  s_sub_u32 s{S_XH}, s{S_XB}, 16384
  s_max_i32 s{S_XH}, s{S_XH}, 0
  s_lshl_b32 s{L_HL}, s{S_T0}, 10
  s_add_u32 s{S_XH}, s{S_XH}, s{L_HL}
  s_lshl_b32 s{S_T1}, s{S_WV}, 15
  s_add_u32 s{S_XB}, s{S_XB}, s{S_T1}
  s_lshl_b32 s{L_XL}, s{S_WV}, 12
  s_add_u32 s{L_XL}, s{L_XL}, 2048
  s_lshl_b32 s{S_WB}, s{S_HG}, 7
  s_mul_i32 s{S_T1}, s{S_WV}, 24576
  s_add_u32 s{S_WB}, s{S_WB}, s{S_T1}
  s_lshl_b32 s{L_WL}, s{S_WV}, 10
  s_add_u32 s{L_WL}, s{L_WL}, {WBASE}""")
if o == "plain":
    A(f"  s_mov_b32 s{S_SEQ}, {hex(seq_pack(range(8)))}")
elif o == "rot8":
    A(f"""  s_lshl_b32 s{S_T1}, s{S_CB}, 1
  s_add_u32 s{S_T1}, s{S_T1}, s{S_T2}
  s_and_b32 s{S_T1}, s{S_T1}, 7
  s_mul_i32 s{S_T1}, s{S_T1}, 0x11111111
  s_add_u32 s{S_SEQ}, s{S_T1}, {hex(seq_pack(range(8)))}
  s_and_b32 s{S_SEQ}, s{S_SEQ}, 0x77777777""")
elif o.startswith("g2"):
    seqs = {"g2a": "a0 a1 b0 a2 b1 a3 b2 b3", "g2b": "a0 a1 a2 a3 b0 b1 b2 b3", "g2c": "a0 b0 a1 b1 a2 b2 a3 b3", "g2d": "a0 a1 a2 b0 b1 a3 b2 b3"}
    l = [2 * int(x[1]) + (x[0] == 'b') for x in seqs[o].split()]
    A(f"  s_add_u32 s{S_T1}, s{S_T2}, s{S_CB}\n  s_and_b32 s{S_T1}, s{S_T1}, 1\n  s_mul_i32 s{S_T1}, s{S_T1}, 0x11111111\n  s_xor_b32 s{S_SEQ}, s{S_T1}, {hex(seq_pack(l))}")
elif o.startswith("g4"):
    seqs = {"g4a": "00 01 02 10 03 11 12 13", "g4b": "00 10 01 02 03 11 12 13", "g4c": "00 01 10 02 03 11 12 13", "g4d": "00 01 02 03 10 11 12 13"}
    l = [4 * int(x[0]) + int(x[1]) for x in seqs[o].split()]
    A(f"  s_add_u32 s{S_T1}, s{S_T2}, s{S_CB}\n  s_and_b32 s{S_T1}, s{S_T1}, 3\n  s_mul_i32 s{S_T1}, s{S_T1}, 0x11111111\n  s_xor_b32 s{S_SEQ}, s{S_T1}, {hex(seq_pack(l))}")
def build_srds():
    A(f"""  s_waitcnt lgkmcnt(0)
  s_cmp_eq_u32 s{S_BR}, 0
  s_cselect_b32 s{SRD_X}, s{S_PTR+0}, s{S_PTR+6}
  s_cselect_b32 s{SRD_X+1}, s{S_PTR+1}, s{S_PTR+7}
  s_cselect_b32 s{SRD_W}, s{S_PTR+2}, s{S_PTR+8}
  s_cselect_b32 s{SRD_W+1}, s{S_PTR+3}, s{S_PTR+9}
  s_mov_b32 s{SRD_X+2}, 0x200000
  s_mov_b32 s{SRD_X+3}, 0x20000
  s_mov_b32 s{SRD_W+2}, 0x180000
  s_mov_b32 s{SRD_W+3}, 0x20000""")
def build_srds2():
    A(f"""  s_cmp_eq_u32 s{S_BR}, 0
  s_cselect_b32 s{SRD_WO}, s{S_PTR+4}, s{S_PTR+10}
  s_cselect_b32 s{SRD_WO+1}, s{S_PTR+5}, s{S_PTR+11}
  s_mov_b32 s{SRD_WO+2}, 0x80000
  s_mov_b32 s{SRD_WO+3}, 0x20000
  s_mov_b32 s{SRD_OUT}, s{S_PTR+12}
  s_mov_b32 s{SRD_OUT+1}, s{S_PTR+13}
  s_mov_b32 s{SRD_OUT+2}, 0x400000
  s_mov_b32 s{SRD_OUT+3}, 0x20000
  s_mov_b32 s{SRD_WS}, s{S_WS}
  s_mov_b32 s{SRD_WS+1}, s{S_WS+1}
  s_mov_b32 s{SRD_WS+2}, 0x500000
  s_mov_b32 s{SRD_WS+3}, 0x20000
  s_mov_b32 s{S_DBG}, s{S_PTR+14}
  s_mov_b32 s{S_DBG+1}, s{S_PTR+15}""")
    if NSTAMP:
        A(f"""  s_add_u32 s{S_STB}, s{S_WS}, {STAMP_OFF}
  s_addc_u32 s{S_STB+1}, s{S_WS+1}, 0
  s_mul_i32 s{S_T1}, s2, {8*NSTAMP}
  s_add_u32 s{S_STB}, s{S_STB}, s{S_T1}
  s_addc_u32 s{S_STB+1}, s{S_STB+1}, 0""")
build_srds()
def dma(vo, srd, sreg, imm, lreg, limm, extra=""):
    A(f"  s_add_u32 s{S_T1}, s{sreg}, {imm}\n  s_add_u32 m0, s{lreg}, {limm}\n  s_waitcnt vmcnt({args.maxfl-1})\n  buffer_load_dwordx4 v{vo}, s[{srd}:{srd+3}], s{S_T1} offen{extra} lds")
D = args.D
def gsize(g): return 8 if g == 0 else (3 if g == 15 else (6 if g & 1 else 5))
def xops(t, which):
    xl = (t % NXS) * XSLOT
    A(f"  s_lshr_b32 s{S_T0}, s{S_SEQ}, {4*t}\n  s_and_b32 s{S_T0}, s{S_T0}, 7\n  s_lshl_b32 s{S_T0}, s{S_T0}, 7\n  s_add_u32 s{S_T3}, s{S_T0}, s{S_XB}")
    lst = [(p, m) for p in range(2) for m in range(2)]
    for i in which:
        if i < 4:
            p, m = lst[i]
            dma(VX0 if m == 0 else VX1, SRD_X, S_T3, (p + 16 * m) * 1024, L_XL, xl + p * 2048 + m * 1024)
        else:
            A(f"  s_add_u32 s{S_C0}, s{S_T0}, s{S_XH}")
            dma(VXH, SRD_X, S_C0, 0, L_HL, xl)
def issue_group(g):
    t = g >> 1
    if g > 0 and g & 1 == 0: xops(t, [3, 4])
    A(f"""  s_lshr_b32 s{S_T0}, s{S_SEQ}, {4*t}
  s_and_b32 s{S_T0}, s{S_T0}, 7
  s_mul_i32 s{S_T2}, s{S_T0}, 196608
  s_add_u32 s{S_T2}, s{S_T2}, s{S_WB}""")
    wl = (g % NWS) * WSLOT
    for seg in range(3): dma(VW, SRD_W, S_T2, (g & 1) * 32 * 3072 + seg * 1024, L_WL, wl + seg * 4096)
    if g == 0: xops(0, [0, 1, 2, 3, 4])
    elif g & 1 and g < 15: xops(t + 1, [0, 1, 2])
    if g == 2 * args.touch + 1:
        A(f"""  v_lshlrev_b32 v{VTW}, 7, v0
  s_lshl_b32 s{S_T1}, s{S_J}, 14
  s_lshl_b32 s{S_T0}, s{S_WV}, 12
  s_add_u32 s{S_T1}, s{S_T1}, s{S_T0}
  s_mov_b32 exec_hi, 0
  buffer_load_dword v11, v{VTW}, s[{SRD_WO}:{SRD_WO+3}], s{S_T1} offen
  s_mov_b64 exec, -1""")
        return 1
    return 0
XC = lambda i: i * XSLOT + 2048
chunks = [[XC(0), 98304], [114688, XC(1)], [131072, XC(2)], [XC(3), WBASE]]
freeat = [11, 12, 14, 16]
def chunk_sel(bitreg):
    A(f"  s_cmp_eq_u32 s{bitreg}, 0")
    for i in range(4): A(f"  s_mov_b32 s{S_CH+i}, {chunks[i][1]}\n  s_cselect_b32 s{S_CH+i}, {chunks[i][0]}, s{S_CH+i}")
def lsetup():
    build_srds2()
    A(f"  s_and_b32 s{S_T2}, s{S_WV}, 1")
    chunk_sel(S_T2)
    quarters()
    A(f"""  v_lshrrev_b32 v11, 3, v0
  v_and_b32 v12, 7, v0
  v_bfe_u32 v13, v0, 4, 1
  v_lshlrev_b32 v13, 2, v13
  v_xor_b32 v12, v12, v13
  v_lshlrev_b32 v12, 4, v12
  v_lshl_add_u32 v{VWO}, v11, 10, v12
  s_lshl_b32 s{S_A0}, s{S_CB}, 8
  s_lshl_b32 s{S_T0}, s{S_T2}, 7
  s_add_u32 s{S_A0}, s{S_A0}, s{S_T0}
  s_lshr_b32 s{S_T0}, s{S_WV}, 1
  s_lshl_b32 s{S_T1}, s{S_T0}, 16
  s_add_u32 s{S_A0}, s{S_A0}, s{S_T1}
  s_lshl_b32 s{S_T0}, s{S_T0}, 13
  s_add_u32 s{S_CH}, s{S_CH}, s{S_T0}
  s_add_u32 s{S_CH+1}, s{S_CH+1}, s{S_T0}
  s_add_u32 s{S_CH+2}, s{S_CH+2}, s{S_T0}
  s_add_u32 s{S_CH+3}, s{S_CH+3}, s{S_T0}
  s_lshl_b32 s{S_FLG}, s{S_BR}, 7
  s_lshl_b32 s{S_T1}, s{S_RB}, 3
  s_add_u32 s{S_FLG}, s{S_FLG}, s{S_T1}
  s_add_u32 s{S_FLG}, s{S_FLG}, s{S_HG}
  s_lshl_b32 s{S_FLG}, s{S_FLG}, 7
  s_add_u32 s{S_FLG}, s{S_FLG}, {WS_FLG}
  v_mov_b32 v8, 1
  v_mov_b32 v15, 0
  v_and_b32 v{VZ}, 7, v0
  v_lshlrev_b32 v{VZ}, 2, v{VZ}
  v_lshlrev_b32 v6, 7, v0
  v_lshlrev_b32 v7, 4, v0""")
def wo_group(i):
    A(f"  s_lshl_b32 s{S_T0}, s{S_Q+i}, 5\n  s_add_u32 s{S_T2}, s{S_T0}, s{S_A0}")
    for k in range(8): dma(VWO, SRD_WO, S_T2, k * 8192, S_CH + i, k * 1024)
sizes = []
def outstanding_after(kid):
    idx = [i for i, x in enumerate(sizes) if (x[0], x[1]) == kid][0]
    return sum(x[2] for x in sizes[idx + 1:])
def do_group(g):
    e = issue_group(g); sizes.append(("g", g, gsize(g))); sizes.append(("t", g, e))
for g in range(args.D0): do_group(g)
lsetup()
nxt = args.D0
for bq in range(17):
    if bq < 16: A(f"  s_waitcnt vmcnt({min(63, outstanding_after(('g', bq)))})")
    A("  s_barrier")
    while nxt < 16 and nxt <= bq + D - 1 and nxt <= bq + 5 and (nxt <= bq + args.D0 or bq >= args.ramp):
        do_group(nxt); nxt += 1
    for i in range(4):
        if freeat[i] == bq: wo_group(i); sizes.append(("w", i, 8))
stamp(6)
def init_check(tag, v, vz):
    A(f"""  s_mov_b32 s{S_T1}, 0x01010101
L_ic{tag}:
  s_waitcnt vmcnt(0)
  v_cmp_ne_u32 vcc, s{S_T1}, v{v}
  s_nop 3
  s_cmp_eq_u64 vcc, 0
  s_cbranch_scc1 L_id{tag}
{spin(f"L_id{tag}")}
  s_sleep 4
  global_load_dword v{v}, v{vz}, s[{S_DBG}:{S_DBG+1}] sc1
  s_branch L_ic{tag}
L_id{tag}:""")
def poll(tag, voff, sreg, val=1):
    A(f"""L_pl{tag}:
  buffer_load_dword v16, v{voff}, s[{SRD_WS}:{SRD_WS+3}], s{sreg} offen sc1
  s_waitcnt vmcnt(0)
  v_cmp_ne_u32 vcc, {val}, v16
  s_and_b64 exec, exec, vcc
  s_cbranch_execz L_po{tag}
{spin(f"L_po{tag}")}
  s_sleep {args.psleep}
  s_branch L_pl{tag}
L_po{tag}:
  s_mov_b64 exec, -1""")
A("  s_barrier")
A(f"""  s_cmp_lg_u32 s{S_WV}, 0
  s_cbranch_scc1 L_nofl
  s_mov_b64 exec, 1
  buffer_store_dword v8, v15, s[{SRD_WS}:{SRD_WS+3}], s{S_FLG} offen sc1
  s_mov_b64 exec, -1
  s_waitcnt vmcnt({outstanding_after(('w', 1)) + 1})
  s_branch L_fl2
L_nofl:
  s_waitcnt vmcnt({outstanding_after(('w', 1))})
L_fl2:
  s_barrier""")
stamp(7)
A(f"""  s_cmp_lg_u32 s{S_WV}, 0
  s_cbranch_scc1 L_await
  s_lshr_b32 s{S_T1}, s{S_RB2}, 1
  s_lshl_b32 s{S_T1}, s{S_T1}, 10
  s_lshl_b32 s{S_T0}, s{S_BR}, 14
  s_add_u32 s{S_T1}, s{S_T1}, s{S_T0}
  s_add_u32 s{S_T1}, s{S_T1}, {WS_FLG}
  s_mov_b64 exec, 0xff""")
poll("R", 6, S_T1)
A(f"""L_await:
  s_lshl_b32 s{S_T3}, s{S_RB2}, 16
  s_lshl_b32 s{S_T0}, s{S_WV}, 14
  s_add_u32 s{S_T3}, s{S_T3}, s{S_T0}
  s_and_b32 s{S_T2}, s{S_WV}, 1
  s_lshl_b32 s{S_T2}, s{S_T2}, 14
  s_lshr_b32 s{S_T0}, s{S_WV}, 1
  s_mul_i32 s{S_T0}, s{S_T0}, {ORH}
  s_add_u32 s{S_T2}, s{S_T2}, s{S_T0}
  s_waitcnt vmcnt(0)
  s_barrier""")
def lfin():
    if NSTAMP:
        A(f"  s_cmp_lg_u32 s{S_WV}, 0\n  s_cbranch_scc1 L_end")
        stamp_flush([6, 7, 8], 12)
    A("  s_endpgm")
A(f"  s_cmp_eq_u32 s{S_BR}, 0\n  s_cbranch_scc1 L_oload")
A(f"""  s_mov_b32 s{S_T1}, {WS_FLG + 128*128}
  s_mov_b32 s{S_T2}, {WS_FLG + 192*128}
  v_lshrrev_b32 v11, 2, v0
  v_lshlrev_b32 v11, 4, v11
  v_bfe_u32 v12, v0, 1, 1
  v_lshl_add_u32 v11, v12, 8, v11
  v_and_b32 v12, 1, v0
  v_lshl_add_u32 v11, v12, 3, v11
  s_lshl_b32 s{S_A0}, s{S_WV}, 3
  s_mul_i32 s{S_A1}, s{S_A0}, {KVH}
  s_add_u32 s{S_A1}, s{S_A1}, {WS_KV}
  v_bfe_u32 v12, v0, 2, 3
  v_mul_u32_u24 v13, {KVH}, v12
  v_and_b32 v14, 3, v0
  v_lshl_add_u32 v13, v14, 4, v13
  v_add_u32 v13, 1024, v13
  v_add_u32 v12, s{S_A0}, v12              ; head
  v_mul_u32_u24 v20, {KVS}, v12
  v_lshl_add_u32 v20, v14, 3, v20
  v_add_u32 v20, {KV0 + 512}, v20
  v_add_u32 v21, {KV1 - KV0}, v20
  v_cmp_lt_u32 vcc, 10, v12
  s_nop 1
  v_cndmask_b32 v20, v20, v21, vcc""")
A(f"  v_mul_u32_u24 v21, {KVH}, v0\n  v_add_u32 v21, 1088, v21\n  s_mov_b64 exec, 0xff")
poll("K", 21, S_A1, 16)
stamp(8)
for h in range(8):
    r = 24 + h * 4
    A(f"  s_add_u32 s{S_T1}, s{S_A1}, {h*KVH}\n  buffer_load_dwordx4 v[{r}:{r+3}], v7, s[{SRD_WS}:{SRD_WS+3}], s{S_T1} offen {args.cl}")
A(f"  buffer_load_dwordx4 v[56:59], v13, s[{SRD_WS}:{SRD_WS+3}], s{S_A1} offen {args.cl}")
for h in range(8):
    r = 24 + h * 4
    A(f"""  s_add_u32 s{S_T0}, s{S_A0}, {h}
  s_mul_i32 s{S_T1}, s{S_T0}, {KVS}
  s_cmp_lt_u32 s{S_T0}, 11
  s_cselect_b32 s{S_T0}, 0, {KV1-KV0}
  s_add_u32 s{S_T1}, s{S_T1}, s{S_T0}
  s_add_u32 s{S_T1}, s{S_T1}, {KV0}
  v_add_u32 v{60+h}, s{S_T1}, v11""")
for h in range(8):
    r = 24 + h * 4
    A(f"  s_waitcnt vmcnt({8-h})")
    cvt(r, r)
    A(f"  ds_write_b64 v{60+h}, v[{r}:{r+1}]")
A("  s_waitcnt vmcnt(0)")
cvt(56, 56)
A("  ds_write_b64 v20, v[56:57]\n  s_waitcnt lgkmcnt(0)\n  s_barrier")
if NSTAMP: A("  s_barrier")
lfin()
A("L_oload:")
stamp(8)
def oloads(i):
    A(f"  s_add_u32 s{S_A0}, s{S_T3}, s{S_Q+i}\n  s_add_u32 s{S_A1}, s{S_T2}, s{S_Q+i}")
    for h in range(4):
        A(f"  s_add_u32 s{S_T1}, s{S_A0}, {h*1024}\n  s_add_u32 m0, s{S_A1}, {h*1024}\n  s_nop 0\n  buffer_load_dwordx4 v7, s[{SRD_WS}:{SRD_WS+3}], s{S_T1} offen {args.cl} lds")
oloads(0)
A("  s_waitcnt vmcnt(0)")
oloads(1)
A("  s_barrier")
oloads(2); oloads(3)
for i in (1, 2, 3): A(f"  s_waitcnt vmcnt({4*(3-i)})\n  s_barrier")
lfin()

V_XA = 1; V_WA = 2; V_XA1 = 3; V_ONE = 4; V_OA = 5; V_X0C = 6; V_X1C = 13; V_WC = 14; V_IFA = 15
V_IF = 160; V_DUM = 161; V_NC = 162; V_ONESB = 164
A("L_comp:")
A(f"  s_and_b32 s{S_HH}, s{S_WV}, 3\n  s_lshr_b32 s{S_RH}, s{S_WV}, 2")
if args.codepf:
    A(f"""  s_getpc_b64 s[{S_M0}:{S_M0+1}]
L_pcref:
  s_sub_u32 s{S_M0}, s{S_M0}, L_pcref-{NAME}
  s_subb_u32 s{S_M0+1}, s{S_M0+1}, 0
  s_lshl_b32 s{S_T0}, s{S_J}, 3
  s_add_u32 s{S_T0}, s{S_T0}, s{S_WV}
  s_lshl_b32 s{S_T0}, s{S_T0}, 7
  s_min_u32 s{S_T0}, s{S_T0}, (L_codeend-{NAME}-4)&0xfffffffc
  v_mov_b32 v7, s{S_T0}
  s_mov_b64 exec, 1
  global_load_dword v{V_DUM}, v7, s[{S_M0}:{S_M0+1}]
  s_mov_b64 exec, -1""")
A(f"""  v_and_b32 v7, 15, v0
  v_lshrrev_b32 v8, 4, v0
  v_lshrrev_b32 v9, 1, v7
  v_xor_b32 v9, v9, v8
  v_lshlrev_b32 v9, 4, v9
  v_lshl_add_u32 v{V_XA}, v7, 7, v9
  v_lshrrev_b32 v9, 2, v7
  v_lshl_add_u32 v9, v8, 3, v9
  v_lshrrev_b32 v10, 1, v9
  v_and_b32 v10, 1, v10
  v_and_b32 v11, 1, v8
  v_lshl_or_b32 v10, v11, 1, v10
  v_xor_b32 v10, s{S_HH}, v10
  v_lshlrev_b32 v10, 5, v10
  v_lshl_add_u32 v10, v9, 7, v10
  v_and_b32 v11, 3, v7
  v_lshl_add_u32 v{V_WA}, v11, 3, v10
  v_add_u32 v{V_WA}, {WBASE}, v{V_WA}
  v_mov_b32 v{V_ONE}, 1
  s_lshl_b32 s{S_T0}, s{S_HG}, 2
  s_add_u32 s{S_T0}, s{S_T0}, s{S_HH}
  s_lshl_b32 s{S_OB}, s{S_T0}, 9
  s_lshl_b32 s{S_T1}, s{S_RB}, 17
  s_add_u32 s{S_OB}, s{S_OB}, s{S_T1}
  s_lshl_b32 s{S_T1}, s{S_BR}, 21
  s_add_u32 s{S_OB}, s{S_OB}, s{S_T1}
  s_mul_i32 s{S_C3}, s{S_T0}, {KVH}
  s_add_u32 s{S_C3}, s{S_C3}, {WS_KV}
  s_lshl_b32 s{S_FLG}, s{S_BR}, 7
  s_lshl_b32 s{S_T1}, s{S_RB}, 3
  s_add_u32 s{S_FLG}, s{S_FLG}, s{S_T1}
  s_add_u32 s{S_FLG}, s{S_FLG}, s{S_HG}
  s_lshl_b32 s{S_FLG}, s{S_FLG}, 7
  s_add_u32 s{S_FLG}, s{S_FLG}, {WS_FLG}
  s_lshl_b32 s{S_T1}, s{S_WV}, 2
  s_add_u32 s{S_FLG}, s{S_FLG}, s{S_T1}
  v_and_b32 v9, 1, v8
  v_lshlrev_b32 v9, 14, v9
  v_lshrrev_b32 v10, 1, v8
  v_lshl_add_u32 v9, v10, 8, v9
  v_lshl_add_u32 v{V_OA}, v7, 4, v9
  v_and_b32 v{V_IFA}, 7, v0
  v_lshlrev_b32 v{V_IFA}, 2, v{V_IFA}
  s_mov_b32 s{S_IT}, 0
  s_mov_b32 s{S_XO}, 0
  s_mov_b32 s{S_WO}, 0
  v_mov_b32 v{V_WC}, v{V_WA}
  s_waitcnt lgkmcnt(0)""")
build_srds2()
A(f"  s_cmp_eq_u32 s{S_BR}, 0\n  s_cbranch_scc0 L_compB")

wadv_c = [f"  s_add_u32 s{S_WO}, s{S_WO}, {WSLOT}", f"  s_cmp_eq_u32 s{S_WO}, {WSLOT*NWS}", f"  s_cselect_b32 s{S_WO}, 0, s{S_WO}", f"  v_add_u32 v{V_WC}, s{S_WO}, v{V_WA}"]
xadv_c = [f"  s_add_u32 s{S_XO}, s{S_XO}, {XSLOT}", f"  s_cmp_eq_u32 s{S_XO}, {XSLOT*NXS}", f"  s_cselect_b32 s{S_XO}, 0, s{S_XO}",
          f"  v_add_u32 v{V_X0C}, s{S_XO}, v{V_XA}", f"  v_add_u32 v{V_X1C}, s{S_XO}, v{V_XA1}"]
def mainloop(tag, reads, mfmas, extra_adv, tail, bpos):
    A("  s_barrier")
    stamp(1)
    for x in reads(0, 0): A(x)
    for kk in range(2):
        A(f"L_s{kk}{tag}:\n  s_waitcnt lgkmcnt(0)")
        m = mfmas(kk)
        adv = list(wadv_c) + (xadv_c + extra_adv if kk == 1 else [])
        r = reads(1 - kk, 1 - kk)
        ai = 0
        for i in range(bpos):
            A(m[i])
            want = min(len(adv), ((i + 1) * len(adv) + bpos - 2) // max(1, bpos - 1))
            while ai < want: A(adv[ai]); ai += 1
        A("  s_barrier")
        ri = 0; nm = len(m) - bpos
        for i, x in enumerate(m[bpos:]):
            want = min(len(r), ((i + 1) * len(r) + nm - 3) // max(1, nm - 2))
            while ri < want: A(r[ri]); ri += 1
            A(x)
        while ri < len(r): A(r[ri]); ri += 1
    tail()
    A(f"  s_add_u32 s{S_IT}, s{S_IT}, 1\n  s_cmp_lt_u32 s{S_IT}, 8\n  s_cbranch_scc1 L_s0{tag}")
    A(f"  global_load_dword v{V_IF}, v{V_IFA}, s[{S_DBG}:{S_DBG+1}] sc1")
    stamp(2)
    A("  s_waitcnt lgkmcnt(0)")
def trr(d, seg): return [f"  ds_read_b64_tr_b16 v[{d}:{d+1}], v{V_WC} offset:{seg*4096}", f"  ds_read_b64_tr_b16 v[{d+2}:{d+3}], v{V_WC} offset:{seg*4096 + 512}"]
def mm(acc, a, b): return f"  v_mfma_f32_16x16x32_bf16 v[{acc}:{acc+3}], v[{a}:{a+3}], v[{b}:{b+3}], v[{acc}:{acc+3}]"
def store_frags(src, nt, dst):
    for t in range(nt):
        d = dst + 4 * t
        cvt(d, src(2 * t)); cvt(d + 2, src(2 * t + 1))
    A("  s_nop 1")
    for t in range(nt):
        d = dst + 4 * t
        A(f"  v_permlane16_swap_b32 v{d}, v{d+2}\n  v_permlane16_swap_b32 v{d+1}, v{d+3}")
    for t in range(nt):
        d = dst + 4 * t
        A(f"  s_add_u32 s{S_T0}, s{S_OB}, {t*32768}")
        A(f"  buffer_store_dwordx4 v[{d}:{d+3}], v{V_OA}, s[{SRD_WS}:{SRD_WS+3}], s{S_T0} offen sc1")

ACC = 16
AQ = lambda b: ACC + 4 * b
AK = lambda b: ACC + 16 + 4 * b
AV = lambda b: ACC + 36 + 4 * b
FX = lambda buf, b: 72 + 32 * buf + 4 * b
FW = lambda buf, seg: 72 + 32 * buf + 20 + 4 * seg
V_HA = 136; V_H0C = 137; V_H1C = 138
MK = 140; MK0 = 144; V_HI = 148; V_PV = 149; V_ONES = 150
A(f"""  v_mov_b32 v{V_HA}, v{V_XA}
  s_cmp_eq_u32 s{S_RH}, 0
  s_cbranch_scc1 L_h0ok
  v_or_b32 v10, 8, v7
  v_lshrrev_b32 v9, 1, v10
  v_xor_b32 v9, v9, v8
  v_lshlrev_b32 v9, 4, v9
  v_lshl_add_u32 v9, v10, 7, v9
  v_lshrrev_b32 v10, 3, v7
  v_lshlrev_b32 v10, 11, v10
  v_add_u32 v9, v9, v10
  v_add_u32 v{V_HA}, {2048*3}, v9
L_h0ok:
  s_lshl_b32 s{S_T0}, s{S_RH}, 13
  s_add_u32 s{S_T0}, s{S_T0}, 2048
  v_add_u32 v{V_XA}, s{S_T0}, v{V_XA}
  v_xor_b32 v{V_XA1}, 64, v{V_XA}
  v_mov_b32 v{V_X0C}, v{V_XA}
  v_mov_b32 v{V_X1C}, v{V_XA1}
  v_mov_b32 v{V_H0C}, v{V_HA}
  v_xor_b32 v{V_H1C}, 64, v{V_HA}
  s_lshl_b32 s{S_T1}, s{S_RH}, 16
  s_add_u32 s{S_OB}, s{S_OB}, s{S_T1}""")
for r in range(ACC, ACC + 56): A(f"  v_mov_b32 v{r}, 0")
A(f"""  v_lshlrev_b32 v9, 2, v8
  v_sub_u32 v9, v7, v9
  s_mov_b32 s{S_C0}, 0xf149f2ca
  v_mov_b32 v10, s{S_C0}""")
for r in range(4):
    A(f"""  v_subrev_u32 v11, {r}, v9
  v_and_b32 v12, 15, v11
  v_cmp_gt_u32 vcc, 8, v12
  s_nop 1
  v_cndmask_b32 v{MK+r}, v10, 0, vcc
  v_cmp_gt_u32 vcc, 8, v11
  s_nop 1
  v_cndmask_b32 v{MK0+r}, v10, 0, vcc""")
A(f"""  s_or_b32 s{S_T0}, s{S_RB}, s{S_RH}
  s_cmp_eq_u32 s{S_T0}, 0
  s_cbranch_scc1 L_m0
  v_mov_b32 v{MK0}, v{MK}
  v_mov_b32 v{MK0+1}, v{MK+1}
  v_mov_b32 v{MK0+2}, v{MK+2}
  v_mov_b32 v{MK0+3}, v{MK+3}
L_m0:
  v_cmp_lt_u32 s[{S_M0}:{S_M0+1}], 7, v7
  v_cmp_lt_u32 vcc, 1, v8
  s_nop 1
  v_cndmask_b32 v{V_HI}, 0, -1, s[{S_M0}:{S_M0+1}]
  s_andn2_b64 s[{S_M1}:{S_M1+1}], vcc, s[{S_M0}:{S_M0+1}]
  v_mov_b32 v{V_ONES}, 0x3f803f80
  v_mov_b32 v{V_ONES+1}, 0x3f803f80
  v_cndmask_b32 v{V_PV}, 0, -1, s[{S_M1}:{S_M1+1}]
  v_mov_b32 v{V_ONES+2}, 0x3f803f80
  v_mov_b32 v{V_ONES+3}, 0x3f803f80
  s_mov_b32 s{S_C0}, 0x3eb8aa3b""")
def readsA(buf, kk):
    va = V_X0C if kk == 0 else V_X1C
    r = trr(FW(buf, 1), 1) + trr(FW(buf, 2), 2) + trr(FW(buf, 0), 0)
    for b in range(4): r.append(f"  ds_read_b128 v[{FX(buf,b)}:{FX(buf,b)+3}], v{va} offset:{b*2048}")
    r.append(f"  ds_read_b128 v[{FX(buf,4)}:{FX(buf,4)+3}], v{V_H0C if kk == 0 else V_H1C}")
    return r
def mfmasA(buf):
    m = []
    for b in range(4):
        x = FX(buf, b)
        m += [mm(AK(b), FW(buf, 1), x), mm(AV(b), x, FW(buf, 2)), mm(AQ(b), FW(buf, 0), x)]
    x = FX(buf, 4)
    return m + [mm(AK(4), FW(buf, 1), x), mm(AV(4), x, FW(buf, 2))]
mainloop("A", readsA, mfmasA, [f"  v_add_u32 v{V_H0C}, s{S_XO}, v{V_HA}", f"  v_xor_b32 v{V_H1C}, 64, v{V_H0C}"], lambda: None, args.bpos)
K4 = lambda b: 72 + 4 * b
Q4 = lambda b: 88 + 4 * b
VP = lambda p, i: 104 + 6 * p + 2 * i
KH = 116; KH2 = 118; TT = 120
for b in range(4):
    cvt(K4(b), AK(b))
    cvt(VP(b & 1, (b >> 1) + 1), AV(b))
    tt = TT + 2 * (b & 1)
    cvt(tt, AQ(b))
    A(f"  v_and_b32 v{Q4(b)}, v{tt}, v{V_HI}\n  v_and_b32 v{Q4(b)+1}, v{tt+1}, v{V_HI}")
    A(f"  v_xor_b32 v{Q4(b)+2}, v{tt}, v{Q4(b)}\n  v_xor_b32 v{Q4(b)+3}, v{tt+1}, v{Q4(b)+1}")
cvt(KH, AK(4))
cvt(VP(1, 0), AV(4))
A(f"""  s_nop 1
  v_mov_b32_dpp v{KH2}, v{KH} row_ror:8 row_mask:0xf bank_mask:0xf
  v_mov_b32_dpp v{KH2+1}, v{KH+1} row_ror:8 row_mask:0xf bank_mask:0xf
  v_mov_b32 v{VP(0,0)}, v{VP(1,0)}
  v_mov_b32 v{VP(0,0)+1}, v{VP(1,0)+1}
  v_mov_b32 v{TT}, v{VP(1,0)}
  v_mov_b32 v{TT+1}, v{VP(1,0)+1}
  s_nop 1
  v_permlane32_swap_b32 v{VP(0,0)}, v{TT}
  v_permlane32_swap_b32 v{VP(0,0)+1}, v{TT+1}""")
for b in range(4):
    t, p = b >> 1, b & 1
    prev = (KH2 if p == 0 else KH) if t == 0 else K4(p)
    A(f"  v_cndmask_b32 v{K4(b)+2}, v{K4(b)}, v{prev}, s[{S_M0}:{S_M0+1}]\n  v_cndmask_b32 v{K4(b)+3}, v{K4(b)+1}, v{prev+1}, s[{S_M0}:{S_M0+1}]")
A("  s_nop 1")
SS = lambda b: ACC + 4 * b
for b in range(4):
    mk = MK0 if b < 2 else MK
    A(f"  v_mfma_f32_16x16x32_bf16 v[{SS(b)}:{SS(b)+3}], v[{K4(b)}:{K4(b)+3}], v[{Q4(b)}:{Q4(b)+3}], v[{mk}:{mk+3}]")
MX = lambda b: 32 + b
MT = 36
A("  s_nop 7")
for b in range(4): A(f"  v_max3_f32 v{MX(b)}, v{SS(b)}, v{SS(b)+1}, v{SS(b)+2}")
for b in range(4): A(f"  v_max_f32 v{MX(b)}, v{MX(b)}, v{SS(b)+3}")
a, b_, c, d = [MX(i) for i in range(4)]
A(f"""  s_nop 0
  v_permlane32_swap_b32 v{a}, v{b_}
  v_permlane32_swap_b32 v{c}, v{d}
  v_max_f32 v{a}, v{a}, v{b_}
  v_max_f32 v{c}, v{c}, v{d}
  s_nop 1
  v_permlane16_swap_b32 v{a}, v{c}
  v_max_f32 v{a}, v{a}, v{c}
  v_mul_f32 v{a}, s{S_C0}, v{a}
  v_mov_b32 v{c}, v{a}
  s_nop 1
  v_permlane16_swap_b32 v{a}, v{c}
  v_mov_b32 v{b_}, v{a}
  v_mov_b32 v{d}, v{c}
  s_nop 0
  v_permlane32_swap_b32 v{a}, v{b_}
  v_permlane32_swap_b32 v{c}, v{d}""")
for b in range(4):
    for r in range(4): A(f"  v_fma_f32 v{SS(b)+r}, v{SS(b)+r}, s{S_C0}, -v{MX(b)}")
for b in range(4):
    for r in range(4): A(f"  v_exp_f32 v{SS(b)+r}, v{SS(b)+r}")
P4 = lambda b: 40 + 4 * b
for b in range(4):
    tt = MT + 2 * (b & 1)
    cvt(tt, SS(b))
    A(f"  v_and_b32 v{P4(b)}, v{tt}, v{V_PV}\n  v_and_b32 v{P4(b)+1}, v{tt+1}, v{V_PV}")
    A(f"  v_xor_b32 v{P4(b)+2}, v{tt}, v{P4(b)}\n  v_xor_b32 v{P4(b)+3}, v{tt+1}, v{P4(b)+1}")
A("  s_nop 1")
OO = lambda b: 72 + 4 * b
SM = lambda b: 88 + 4 * b
for b in range(4):
    t, p = b >> 1, b & 1
    A(f"  v_mfma_f32_16x16x32_bf16 v[{SM(b)}:{SM(b)+3}], v[{V_ONES}:{V_ONES+3}], v[{P4(b)}:{P4(b)+3}], 0")
    A(f"  v_mfma_f32_16x16x32_bf16 v[{OO(b)}:{OO(b)+3}], v[{VP(p,t)}:{VP(p,t)+3}], v[{P4(b)}:{P4(b)+3}], 0")
A("  s_nop 4")
for b in range(4): A(f"  v_rcp_f32 v{SM(b)}, v{SM(b)}")
for b in range(4):
    for r in range(4): A(f"  v_mul_f32 v{OO(b)+r}, v{OO(b)+r}, v{SM(b)}")
store_frags(OO, 2, ACC)
A("  s_branch L_phase2")

A("L_compB:")
A(f"""  s_mov_b32 s{S_C0}, 0x358637bd
  s_mov_b32 s{S_C1}, 0x3fb8aa3b
  s_mov_b32 s{S_C2}, {hex(f2u(-1e-6 * 1.4426950408889634))}
  v_mov_b32 v{V_NC}, s{S_C2}
  v_add_u32 v{V_XA}, 2048, v{V_XA}
  v_xor_b32 v{V_XA1}, 64, v{V_XA}
  v_mov_b32 v{V_X0C}, v{V_XA}
  v_mov_b32 v{V_X1C}, v{V_XA1}""")
for r in range(16, 48): A(f"  v_mov_b32 v{r}, s{S_C0}")
A(f"  s_cmp_lg_u32 s{S_RH}, 0\n  s_cbranch_scc1 L_compQ")
A(f"""  s_cmp_lg_u32 s{S_RB}, 0
  s_cbranch_scc1 L_nozero
  v_mov_b32 v8, 0
  v_mov_b32 v9, 0
  v_mov_b32 v10, 0
  v_mov_b32 v11, 0
  v_lshlrev_b32 v7, 4, v0
  buffer_store_dwordx4 v[8:11], v7, s[{SRD_WS}:{SRD_WS+3}], s{S_C3} offen sc1
  s_mov_b64 exec, 0xff
  buffer_store_dwordx4 v[8:11], v7, s[{SRD_WS}:{SRD_WS+3}], s{S_C3} offen offset:1024 sc1
  s_mov_b64 exec, -1
  s_lshl_b32 s{S_T0}, s{S_HG}, 12
  s_lshl_b32 s{S_T1}, s{S_HH}, 10
  s_add_u32 s{S_T0}, s{S_T0}, s{S_T1}
  s_add_u32 s{S_T0}, s{S_T0}, {WS_FLG}
  buffer_store_dwordx4 v[8:11], v7, s[{SRD_WS}:{SRD_WS+3}], s{S_T0} offen sc1
L_nozero:""")
BK = lambda b: 16 + 4 * b
BV = lambda b: 48 + 4 * b
GX = lambda buf, b: 80 + 40 * buf + 4 * b
GW = lambda buf, i: 80 + 40 * buf + 32 + 4 * i
for r in range(48, 80): A(f"  v_mov_b32 v{r}, 0")
for r in range(4): A(f"  v_mov_b32 v{V_ONESB+r}, 0x3f803f80")
def xreads(buf, kk):
    va = V_X0C if kk == 0 else V_X1C
    return [f"  ds_read_b128 v[{GX(buf,b)}:{GX(buf,b)+3}], v{va} offset:{b*2048}" for b in range(8)]
def readsKV(buf, kk): return trr(GW(buf, 0), 1) + trr(GW(buf, 1), 2) + xreads(buf, kk)
def mfmasKV(buf):
    m = []
    for b in range(8): m += [mm(BK(b), GX(buf, b), GW(buf, 0)), mm(BV(b), GX(buf, b), GW(buf, 1))]
    return m
def ack():
    A(f"""  s_or_b32 s{S_T0}, s{S_IT}, s{S_RB}
  s_cmp_lg_u32 s{S_T0}, 0
  s_cbranch_scc1 L_noack
  s_waitcnt vmcnt(0)
  s_lshl_b32 s{S_T0}, s{S_HG}, 2
  s_add_u32 s{S_T0}, s{S_T0}, s{S_HH}
  v_mov_b32 v11, s{S_T0}
  s_mov_b64 exec, 1
  global_store_byte v11, v{V_ONE}, s[{S_DBG}:{S_DBG+1}] sc1
  s_mov_b64 exec, -1
L_noack:""")
mainloop("K", readsKV, mfmasKV, [], ack, args.bpos)
PK = lambda b: 80 + 2 * b
VV = lambda b: 96 + 2 * b
ET = 112
def phi(acc, n, et):
    for i in range(n): A(f"  v_fma_f32 v{et+i}, v{acc+i}, s{S_C1}, v{V_NC}")
    for i in range(n): A(f"  v_exp_f32 v{et+i}, v{et+i} clamp")
    for i in range(n): A(f"  v_max_f32 v{acc+i}, s{S_C0}, v{acc+i}")
    for i in range(n): A(f"  v_add_f32 v{acc+i}, v{acc+i}, v{et+i}")
for b in range(8): cvt(VV(b), BV(b))
phi(BK(0), 32, ET)
for b in range(8): cvt(PK(b), BK(b))
KVA = 144; ZA = 148
A("  s_nop 1")
for i in range(4):
    c = "0" if i == 0 else f"v[{KVA}:{KVA+3}]"
    A(f"  v_mfma_f32_16x16x32_bf16 v[{KVA}:{KVA+3}], v[{VV(2*i)}:{VV(2*i)+3}], v[{PK(2*i)}:{PK(2*i)+3}], {c}")
    c = "0" if i == 0 else f"v[{ZA}:{ZA+3}]"
    A(f"  v_mfma_f32_16x16x32_bf16 v[{ZA}:{ZA+3}], v[{V_ONESB}:{V_ONESB+3}], v[{PK(2*i)}:{PK(2*i)+3}], {c}")
A("""  v_and_b32 v7, 15, v0
  v_lshlrev_b32 v7, 2, v7
  v_lshrrev_b32 v8, 5, v0
  v_lshl_add_u32 v7, v8, 8, v7
  v_bfe_u32 v8, v0, 4, 1
  v_lshl_add_u32 v7, v8, 9, v7""")
init_check("B", V_IF, V_IFA)
A("  s_nop 2")
for r in range(4):
    A(f"  buffer_atomic_add_f32 v{KVA+r}, v7, s[{SRD_WS}:{SRD_WS+3}], s{S_C3} offen offset:{64*r}")
A(f"  s_mov_b64 exec, 0xffff\n  buffer_atomic_add_f32 v{ZA}, v7, s[{SRD_WS}:{SRD_WS+3}], s{S_C3} offen offset:1024\n  s_mov_b64 exec, -1")
A(f"  v_mov_b32 v8, 0\n  s_waitcnt vmcnt(0)\n  s_mov_b64 exec, 1\n  buffer_atomic_add v{V_ONE}, v8, s[{SRD_WS}:{SRD_WS+3}], s{S_C3} offen offset:1088\n  s_mov_b64 exec, -1")
A("  s_branch L_phase2")
A("L_compQ:")
def readsQ(buf, kk): return trr(GW(buf, 0), 0) + xreads(buf, kk)
def mfmasQ(buf): return [mm(BK(b), GW(buf, 0), GX(buf, b)) for b in range(8)]
mainloop("Q", readsQ, mfmasQ, [], lambda: None, min(args.bpos, 2))
A("  s_nop 4")
phi(BK(0), 32, ET)
store_frags(BK, 4, 16)

A("L_phase2:")
stamp(3)
A(f"  s_lshr_b32 s{S_T2}, s{S_HH}, 1")
chunk_sel(S_T2)
quarters()
A(f"""  v_and_b32 v11, 15, v0
  v_lshrrev_b32 v12, 4, v0
  v_lshrrev_b32 v13, 2, v11
  v_lshl_add_u32 v13, v12, 3, v13
  v_and_b32 v14, 3, v11
  v_lshlrev_b32 v14, 4, v14
  v_lshl_add_u32 v14, v13, 7, v14
  v_bfe_u32 v10, v13, 1, 1
  s_and_b32 s{S_T0}, s{S_HH}, 1
  v_xor_b32 v10, s{S_T0}, v10
  v_lshl_add_u32 v6, v10, 6, v14
  v_add_u32 v2, s{S_CH}, v6
  v_add_u32 v3, s{S_CH+1}, v6
  v_lshlrev_b32 v11, 12, v11
  v_lshl_add_u32 v1, v12, 4, v11
  s_lshl_b32 s{S_C2}, s{S_RB2}, 17
  s_lshl_b32 s{S_T0}, s{S_RH}, 16
  s_add_u32 s{S_C2}, s{S_C2}, s{S_T0}
  s_lshl_b32 s{S_T0}, s{S_BR}, 10
  s_add_u32 s{S_C2}, s{S_C2}, s{S_T0}
  s_lshl_b32 s{S_T0}, s{S_CB}, 8
  s_add_u32 s{S_C2}, s{S_C2}, s{S_T0}
  s_lshl_b32 s{S_T0}, s{S_HH}, 6
  s_add_u32 s{S_C2}, s{S_C2}, s{S_T0}
  s_mul_i32 s{S_C3}, s{S_RH}, {ORH}""")
init_check("P", V_IF, V_IFA)
stamp(4)
A("  s_barrier\n  s_barrier")
WF = lambda ks, c: 104 + (ks % 8) * 8 + c * 4
def wo_reads(i, va):
    for k in range(4):
        for c in range(2):
            d = WF(4 * i + k, c)
            A(f"  ds_read_b64_tr_b16 v[{d}:{d+1}], v{va} offset:{k*4096 + 8*c}\n  ds_read_b64_tr_b16 v[{d+2}:{d+3}], v{va} offset:{k*4096 + 8*c + 512}")
wo_reads(0, 2); wo_reads(1, 3)
A(f"""  v_lshlrev_b32 v5, 4, v0
  v_add_u32 v5, s{S_C3}, v5
  v_and_b32 v11, 31, v0
  v_lshrrev_b32 v12, 5, v0
  v_lshrrev_b32 v13, 4, v11
  v_lshlrev_b32 v13, 14, v13
  v_lshl_add_u32 v13, v12, 8, v13
  v_and_b32 v14, 15, v11
  v_lshl_add_u32 v7, v14, 4, v13
  v_lshlrev_b32 v13, 4, v14
  v_lshl_add_u32 v13, v12, 8, v13
  v_lshlrev_b32 v10, 4, v12
  v_add_u32 v10, 512, v10
  v_cmp_lt_u32 vcc, 15, v11
  s_nop 1
  v_cndmask_b32 v4, v13, v10, vcc
  s_lshl_b32 s{S_C1}, s{S_RB2}, 16
  s_add_u32 s{S_C1}, s{S_C1}, 0x200000
  s_mov_b32 s{S_C0}, 0x358637bd
  s_waitcnt lgkmcnt(0)""")
stamp(5)
A("  s_barrier")
OA = lambda b, c: 16 + (b * 2 + c) * 4
OF = lambda k, b: 40 + (k % 8) * 8 + 4 * b
def gemm_all(bars):
    q = []
    def rd_o(k):
        i, h = k >> 2, k & 3
        for b in range(2):
            A(f"  ds_read_b128 v[{OF(k,b)}:{OF(k,b)+3}], v{8+i} offset:{b*16384 + h*1024}"); q.append(("o", k))
    def rd_w(k):
        i, h = k >> 2, k & 3
        for c in range(2):
            d = WF(k, c)
            A(f"  ds_read_b64_tr_b16 v[{d}:{d+1}], v{i} offset:{h*4096 + 8*c}"); q.append(("w", k))
            A(f"  ds_read_b64_tr_b16 v[{d+2}:{d+3}], v{i} offset:{h*4096 + 8*c + 512}"); q.append(("w", k))
    if bars: A("  s_barrier"); stamp(9)
    for k in range(4): rd_o(k)
    for k in range(16):
        need = [j for j, t in enumerate(q) if t[1] <= k]
        if need:
            n = len(q) - 1 - need[-1]
            A(f"  s_waitcnt lgkmcnt({min(n, 15)})")
            del q[:need[-1] + 1]
        ms = []
        for b in range(2):
            for c in range(2):
                acc = OA(b, c); wf = WF(k, c); d = OF(k, b)
                cin = "0" if k == 0 else f"v[{acc}:{acc+3}]"
                ms.append(f"  v_mfma_f32_16x16x32_bf16 v[{acc}:{acc+3}], v[{wf}:{wf+3}], v[{d}:{d+3}], {cin}")
        A(ms[0]); A(ms[1])
        kn = k + 4 if not bars else None
        if bars:
            if k % 4 == 1 and k + 3 < 16:
                A("  s_barrier")
                for kk in range(k + 3, k + 5): rd_o(kk)
            elif k % 4 == 2 and k + 4 < 16:
                for kk in range(k + 4, k + 6): rd_o(kk)
        elif k + 4 < 16: rd_o(k + 4)
        A(ms[2]); A(ms[3])
        if k < 8: rd_w(k + 8)
A(f"  v_add_u32 v2, s{S_CH+2}, v6\n  v_add_u32 v3, s{S_CH+3}, v6")
for i in range(4): A(f"  v_add_u32 v{8+i}, s{S_Q+i}, v5")
A(f"  s_cmp_lg_u32 s{S_BR}, 0\n  s_cbranch_scc1 L_p2B")
gemm_all(True)
A("  s_branch L_fin")
A("L_p2B:")
PQ = lambda i, rg: 40 + (i * 2 + rg) * 4
A(f"""  s_lshr_b32 s{S_A0}, s{S_WV}, 1
  s_lshl_b32 s{S_A0}, s{S_A0}, 10
  s_and_b32 s{S_T0}, s{S_WV}, 1
  s_lshl_b32 s{S_T0}, s{S_T0}, 9
  s_add_u32 s{S_A0}, s{S_A0}, s{S_T0}""")
for i in range(4):
    A(f"  s_add_u32 s{S_T2}, s{S_A0}, {i*4096}\n  s_add_u32 s{S_T2}, s{S_T2}, s{S_C1}\n  s_add_u32 s{S_T3}, s{S_T2}, 32768")
    for rg in range(2):
        d = PQ(i, rg)
        A(f"  buffer_load_dwordx4 v[{d}:{d+3}], v7, s[{SRD_WS}:{SRD_WS+3}], s{S_T2 if rg == 0 else S_T3} offen {args.cl}")
for i in range(4):
    A(f"""  s_add_u32 s{S_T0}, s{S_WV}, {8*i}
  s_mul_i32 s{S_T1}, s{S_T0}, {KVS}
  s_cmp_lt_u32 s{S_T0}, 11
  s_cselect_b32 s{S_T0}, 0, {KV1-KV0}
  s_add_u32 s{S_T1}, s{S_T1}, s{S_T0}
  s_add_u32 s{S_T1}, s{S_T1}, {KV0}
  v_add_u32 v{12+i}, s{S_T1}, v4""")
A(f"  v_add_u32 v32, s{S_A0}, v7\n  v_add_u32 v33, {ORH}, v32\n  s_waitcnt vmcnt(0)")
stamp(12)
A("  s_barrier")
stamp(13)
for i in range(4): A(f"  ds_read_b128 v[{16+4*i}:{19+4*i}], v{12+i}")
def pm(u):
    i, rg = u >> 1, u & 1; d = 72 + 16 * rg
    A(f"  v_mfma_f32_32x32x16_bf16 v[{d}:{d+15}], v[{16+4*i}:{19+4*i}], v[{PQ(i,rg)}:{PQ(i,rg)+3}], 0")
def pv(u):
    i, rg = u >> 1, u & 1; d = 72 + 16 * rg
    A(f"  v_add_f32 v{d+8}, s{S_C0}, v{d+8}\n  v_rcp_f32 v{d+8}, v{d+8}\n  s_nop 0")
    for r in range(0, 8, 2):
        A(f"  v_pk_mul_f32 v[{d+r}:{d+r+1}], v[{d+r}:{d+r+1}], v[{d+8}:{d+9}] op_sel_hi:[1,0]")
    o_ = PQ(i, rg)
    cvt(o_, d); cvt(o_ + 2, d + 4)
    A(f"  ds_write_b128 v{32+rg}, v[{o_}:{o_+3}] offset:{i*4096}")
A("  s_waitcnt lgkmcnt(0)")
pm(0); pm(1)
A("  s_nop 10")
for u in range(8):
    pv(u)
    if u + 2 < 8: pm(u + 2)
    if u == 6: A("  s_nop 0")
A("  s_waitcnt lgkmcnt(0)")
stamp(14)
A("  s_barrier")
stamp(9)
gemm_all(False)
A("L_fin:\n  s_nop 7")
for b in range(2):
    d = 32 + 4 * b
    cvt(d, OA(b, 0)); cvt(d + 2, OA(b, 1))
    A(f"  s_add_u32 s{S_T0}, s{S_C2}, {b * 2048}")
    A(f"  buffer_store_dwordx4 v[{d}:{d+3}], v1, s[{SRD_OUT}:{SRD_OUT+3}], s{S_T0} offen {args.ost.replace('_', ' ')}")
stamp(10)
if NSTAMP:
    A("  s_waitcnt vmcnt(0)")
    stamp(11)
    A(f"  s_cmp_lg_u32 s{S_WV}, 0\n  s_cbranch_scc1 L_end")
    stamp_flush([0, 1, 2, 3, 4, 5, 9, 10, 11, 12, 13, 14], 8)
A("L_end:\n  s_endpgm\nL_codeend:")
A(f""".section .rodata,"a"
.p2align 6
.amdhsa_kernel {NAME}
  .amdhsa_next_free_vgpr 168
  .amdhsa_next_free_sgpr 102
  .amdhsa_accum_offset 168
  .amdhsa_group_segment_fixed_size 0
  .amdhsa_kernarg_size 72
  .amdhsa_user_sgpr_count 2
  .amdhsa_user_sgpr_kernarg_segment_ptr 1
  .amdhsa_system_sgpr_workgroup_id_x 1
.end_amdhsa_kernel""")
print("\n".join(out))
```

```python
import sys, argparse, struct
ap = argparse.ArgumentParser()
ap.add_argument("--stamps", type=int, default=0)
ap.add_argument("--order", type=str, default="g4c")
ap.add_argument("--dbg", type=str, default="")
ap.add_argument("--touch", type=int, default=4)
ap.add_argument("--psleep", type=int, default=2)
ap.add_argument("--maxfl", type=int, default=20)
ap.add_argument("--codepf", type=int, default=0)
ap.add_argument("--D", type=int, default=5)
ap.add_argument("--D0", type=int, default=2)
ap.add_argument("--ramp", type=int, default=4)
ap.add_argument("--bpos", type=int, default=3)
ap.add_argument("--ldf", type=str, default="nt")
ap.add_argument("--ldn", type=int, default=6)
ap.add_argument("--atouch", type=int, default=0)
ap.add_argument("--kprio", type=int, default=1)
ap.add_argument("--ost", type=str, default="")
ap.add_argument("--cl", type=str, default="")
args = ap.parse_args()
NAME = "concat_heads__sliding_local_dilated__linear_attn_block__prompt_kernel"
out = []
def A(s): out.append(s)
def f2u(x): return struct.unpack("<I", struct.pack("<f", x))[0]
SPINMAX = "0x40000"
XSLOT = 18432; NXS = 4
WBASE = XSLOT * NXS
WSLOT = 12288; NWS = 7
LDS_TOTAL = WBASE + WSLOT * NWS
ORH = 98304
KVS = 544
KV0 = 32768; KV1 = 147456 - 11 * KVS
WS_KV = 4 << 20
KVH = 1152
WS_FLG = (4 << 20) + 65536
WS_CNT = WS_FLG + 256 * 128
STAMP_OFF = 128 << 20
NSTAMP = args.stamps
S_PTR = 4; S_WS = 20; S_FLG = 22; S_SEQ = 23
SRD_X = 24; SRD_W = 28; SRD_WO = 32; SRD_OUT = 36; SRD_WS = 40
S_DBG = 44
S_BR = 46; S_RB = 47; S_HG = 48; S_RB2 = 49; S_CB = 50; S_WV = 51; S_J = 52; S_XQ = 53
S_XB = 54; S_XH = 55; S_WB = 56
S_T0 = 57; S_T1 = 58; S_T2 = 59; S_T3 = 60; S_IT = 61
S_M0 = 62; S_M1 = 64
S_XO = 66; S_WO = 67
S_C0 = 68; S_C1 = 69; S_C2 = 70; S_C3 = 71
S_OB = 72; S_SPIN = 73; S_STB = 74
S_ST = 76
S_CH = 12
S_A0 = 16; S_A1 = 17; S_A2 = 18; S_A3 = 19
S_Q = 4
S_HH = 54; S_RH = 55; S_XH2 = 56

def sreg(i): return S_ST + 2 * (i if i < 12 else i - 6)
def stamp(i):
    if i < NSTAMP: A(f"  s_memrealtime s[{sreg(i)}:{sreg(i)+1}]")
def stamp_flush(idxs, vtmp):
    if not NSTAMP: return
    A(f"  s_waitcnt lgkmcnt(0)\n  s_mov_b64 exec, 1\n  v_mov_b32 v{vtmp+2}, 0")
    for i in idxs:
        if i < NSTAMP:
            A(f"  v_mov_b32 v{vtmp}, s{sreg(i)}\n  v_mov_b32 v{vtmp+1}, s{sreg(i)+1}")
            A(f"  global_store_dwordx2 v{vtmp+2}, v[{vtmp}:{vtmp+1}], s[{S_STB}:{S_STB+1}] offset:{8*i}\n  s_nop 1")
    A("  s_mov_b64 exec, -1")
def spin(lbl_out):
    return f"  s_add_u32 s{S_SPIN}, s{S_SPIN}, 1\n  s_cmp_gt_u32 s{S_SPIN}, {SPINMAX}\n  s_cbranch_scc1 {lbl_out}"
def cvt(d, a):
    A(f"  v_cvt_pk_bf16_f32 v{d}, v{a}, v{a+1}\n  v_cvt_pk_bf16_f32 v{d+1}, v{a+2}, v{a+3}")
def quarters():
    for i in range(4):
        A(f"  s_add_u32 s{S_T0}, s{S_CB}, {i}\n  s_and_b32 s{S_T0}, s{S_T0}, 3\n  s_lshl_b32 s{S_Q+i}, s{S_T0}, 12")

A(f"; @launch grid=(256,1,1) block=(768,1,1) lds={LDS_TOTAL}")
A('.amdgcn_target "amdgcn-amd-amdhsa--gfx950"\n.text\n.globl %s\n.p2align 8\n.type %s,@function\n%s:' % (NAME, NAME, NAME))
A("  s_cmp_ge_u32 s2, 256\n  s_cbranch_scc1 L_end")
A(f"  s_load_dwordx16 s[{S_PTR}:{S_PTR+15}], s[0:1], 0\n  s_load_dwordx2 s[{S_WS}:{S_WS+1}], s[0:1], 64")
stamp(0)
A(f"""  v_lshrrev_b32 v1, 6, v0
  v_and_b32 v0, 63, v0
  v_readfirstlane_b32 s{S_WV}, v1
  s_and_b32 s{S_T0}, s2, 7
  s_lshr_b32 s{S_J}, s2, 3
  s_lshr_b32 s{S_BR}, s{S_T0}, 2
  s_and_b32 s{S_XQ}, s{S_T0}, 3
  s_lshr_b32 s{S_T1}, s{S_XQ}, 1
  s_lshl_b32 s{S_T1}, s{S_T1}, 3
  s_lshr_b32 s{S_T2}, s{S_J}, 2
  s_add_u32 s{S_RB}, s{S_T1}, s{S_T2}
  s_and_b32 s{S_T1}, s{S_XQ}, 1
  s_lshl_b32 s{S_T1}, s{S_T1}, 2
  s_and_b32 s{S_CB}, s{S_J}, 3
  s_add_u32 s{S_HG}, s{S_T1}, s{S_CB}
  s_lshl_b32 s{S_T1}, s{S_XQ}, 3
  s_add_u32 s{S_RB2}, s{S_T1}, s{S_T2}
  s_mov_b32 s{S_SPIN}, 0
  s_cmp_lt_u32 s{S_WV}, 8
  s_cbranch_scc1 L_comp""")

VX0 = 1; VX1 = 2; VW = 3; VXH = 4; VWO = 5; VTW = 9; VZ = 10
L_HL = S_C3; L_XL = S_C2; L_WL = S_C1
def seq_pack(l): return sum(x << (4 * i) for i, x in enumerate(l))
o = args.order
A(f"""  s_sub_u32 s{S_WV}, s{S_WV}, 8
  v_lshrrev_b32 v11, 3, v0
  v_and_b32 v12, 7, v0
  v_lshrrev_b32 v13, 4, v0
  v_xor_b32 v14, v12, v13
  v_lshlrev_b32 v14, 4, v14
  v_lshl_add_u32 v{VX0}, v11, 11, v14
  v_xor_b32 v{VX1}, 64, v{VX0}
  v_and_b32 v13, 1, v13
  v_lshlrev_b32 v13, 1, v13
  v_xor_b32 v14, v12, v13
  v_lshlrev_b32 v14, 4, v14
  v_mul_u32_u24 v{VW}, 3072, v11
  v_add_u32 v{VW}, v{VW}, v14
  s_and_b32 s{S_T0}, s{S_WV}, 1
  s_lshl_b32 s{S_T1}, s{S_T0}, 6
  v_xor_b32 v{VW}, s{S_T1}, v{VW}
  v_xor_b32 v{VXH}, s{S_T1}, v{VX0}
  s_lshl_b32 s{S_XB}, s{S_RB}, 17
  s_sub_u32 s{S_XH}, s{S_XB}, 16384
  s_max_i32 s{S_XH}, s{S_XH}, 0
  s_lshl_b32 s{L_HL}, s{S_T0}, 10
  s_add_u32 s{S_XH}, s{S_XH}, s{L_HL}
  s_lshl_b32 s{S_T1}, s{S_WV}, 15
  s_add_u32 s{S_XB}, s{S_XB}, s{S_T1}
  s_lshl_b32 s{L_XL}, s{S_WV}, 12
  s_add_u32 s{L_XL}, s{L_XL}, 2048
  s_lshl_b32 s{S_WB}, s{S_HG}, 7
  s_mul_i32 s{S_T1}, s{S_WV}, 24576
  s_add_u32 s{S_WB}, s{S_WB}, s{S_T1}
  s_lshl_b32 s{L_WL}, s{S_WV}, 10
  s_add_u32 s{L_WL}, s{L_WL}, {WBASE}""")
def order_code(o, reg):
    if o == "plain":
        A(f"  s_mov_b32 s{reg}, {hex(seq_pack(range(8)))}")
    elif o == "rot8":
        A(f"""  s_lshl_b32 s{S_T1}, s{S_CB}, 1
  s_add_u32 s{S_T1}, s{S_T1}, s{S_T2}
  s_and_b32 s{S_T1}, s{S_T1}, 7
  s_mul_i32 s{S_T1}, s{S_T1}, 0x11111111
  s_add_u32 s{reg}, s{S_T1}, {hex(seq_pack(range(8)))}
  s_and_b32 s{reg}, s{reg}, 0x77777777""")
    elif o.startswith("g2"):
        seqs = {"g2a": "a0 a1 b0 a2 b1 a3 b2 b3", "g2b": "a0 a1 a2 a3 b0 b1 b2 b3", "g2c": "a0 b0 a1 b1 a2 b2 a3 b3", "g2d": "a0 a1 a2 b0 b1 a3 b2 b3"}
        l = [2 * int(x[1]) + (x[0] == 'b') for x in seqs[o].split()]
        A(f"  s_add_u32 s{S_T1}, s{S_T2}, s{S_CB}\n  s_and_b32 s{S_T1}, s{S_T1}, 1\n  s_mul_i32 s{S_T1}, s{S_T1}, 0x11111111\n  s_xor_b32 s{reg}, s{S_T1}, {hex(seq_pack(l))}")
    elif o.startswith("g4"):
        seqs = {"g4a": "00 01 02 10 03 11 12 13", "g4b": "00 10 01 02 03 11 12 13", "g4c": "00 01 10 02 03 11 12 13", "g4d": "00 01 02 03 10 11 12 13"}
        l = [4 * int(x[0]) + int(x[1]) for x in seqs[o].split()]
        A(f"  s_add_u32 s{S_T1}, s{S_T2}, s{S_CB}\n  s_and_b32 s{S_T1}, s{S_T1}, 3\n  s_mul_i32 s{S_T1}, s{S_T1}, 0x11111111\n  s_xor_b32 s{reg}, s{S_T1}, {hex(seq_pack(l))}")
oa, ob = (o.split(",") + [o])[:2]
order_code(oa, S_SEQ)
if ob != oa:
    order_code(ob, S_IT)
    A(f"  s_cmp_eq_u32 s{S_BR}, 0\n  s_cselect_b32 s{S_SEQ}, s{S_SEQ}, s{S_IT}")
def build_srds():
    A(f"""  s_waitcnt lgkmcnt(0)
  s_cmp_eq_u32 s{S_BR}, 0
  s_cselect_b32 s{SRD_X}, s{S_PTR+0}, s{S_PTR+6}
  s_cselect_b32 s{SRD_X+1}, s{S_PTR+1}, s{S_PTR+7}
  s_cselect_b32 s{SRD_W}, s{S_PTR+2}, s{S_PTR+8}
  s_cselect_b32 s{SRD_W+1}, s{S_PTR+3}, s{S_PTR+9}
  s_mov_b32 s{SRD_X+2}, 0x200000
  s_mov_b32 s{SRD_X+3}, 0x20000
  s_mov_b32 s{SRD_W+2}, 0x180000
  s_mov_b32 s{SRD_W+3}, 0x20000""")
def build_srds2():
    A(f"""  s_cmp_eq_u32 s{S_BR}, 0
  s_cselect_b32 s{SRD_WO}, s{S_PTR+4}, s{S_PTR+10}
  s_cselect_b32 s{SRD_WO+1}, s{S_PTR+5}, s{S_PTR+11}
  s_mov_b32 s{SRD_WO+2}, 0x80000
  s_mov_b32 s{SRD_WO+3}, 0x20000
  s_mov_b32 s{SRD_OUT}, s{S_PTR+12}
  s_mov_b32 s{SRD_OUT+1}, s{S_PTR+13}
  s_mov_b32 s{SRD_OUT+2}, 0x400000
  s_mov_b32 s{SRD_OUT+3}, 0x20000
  s_mov_b32 s{SRD_WS}, s{S_WS}
  s_mov_b32 s{SRD_WS+1}, s{S_WS+1}
  s_mov_b32 s{SRD_WS+2}, 0x500000
  s_mov_b32 s{SRD_WS+3}, 0x20000
  s_mov_b32 s{S_DBG}, s{S_PTR+14}
  s_mov_b32 s{S_DBG+1}, s{S_PTR+15}""")
    if NSTAMP:
        A(f"""  s_add_u32 s{S_STB}, s{S_WS}, {STAMP_OFF}
  s_addc_u32 s{S_STB+1}, s{S_WS+1}, 0
  s_mul_i32 s{S_T1}, s2, {8*NSTAMP}
  s_add_u32 s{S_STB}, s{S_STB}, s{S_T1}
  s_addc_u32 s{S_STB+1}, s{S_STB+1}, 0""")
build_srds()
curg = [0]
def dma(vo, srd, sreg, imm, lreg, limm, extra=""):
    if "noload" in args.dbg and srd in (SRD_X, SRD_W): return
    if srd in (SRD_X, SRD_W) and args.ldf and curg[0] < args.ldn: extra = " " + args.ldf.replace("_", " ")
    A(f"  s_add_u32 s{S_T1}, s{sreg}, {imm}\n  s_add_u32 m0, s{lreg}, {limm}\n  s_waitcnt vmcnt({args.maxfl-1})\n  buffer_load_dwordx4 v{vo}, s[{srd}:{srd+3}], s{S_T1} offen{extra} lds")
D = args.D
def gsize(g): return 8 if g == 0 else (3 if g == 15 else (6 if g & 1 else 5))
def xops(t, which):
    xl = (t % NXS) * XSLOT
    A(f"  s_lshr_b32 s{S_T0}, s{S_SEQ}, {4*t}\n  s_and_b32 s{S_T0}, s{S_T0}, 7\n  s_lshl_b32 s{S_T0}, s{S_T0}, 7\n  s_add_u32 s{S_T3}, s{S_T0}, s{S_XB}")
    lst = [(p, m) for p in range(2) for m in range(2)]
    for i in which:
        if i < 4:
            p, m = lst[i]
            dma(VX0 if m == 0 else VX1, SRD_X, S_T3, (p + 16 * m) * 1024, L_XL, xl + p * 2048 + m * 1024)
        else:
            A(f"  s_add_u32 s{S_C0}, s{S_T0}, s{S_XH}")
            dma(VXH, SRD_X, S_C0, 0, L_HL, xl)
def issue_group(g):
    curg[0] = g
    t = g >> 1
    if g > 0 and g & 1 == 0: xops(t, [3, 4])
    A(f"""  s_lshr_b32 s{S_T0}, s{S_SEQ}, {4*t}
  s_and_b32 s{S_T0}, s{S_T0}, 7
  s_mul_i32 s{S_T2}, s{S_T0}, 196608
  s_add_u32 s{S_T2}, s{S_T2}, s{S_WB}""")
    wl = (g % NWS) * WSLOT
    for seg in range(3): dma(VW, SRD_W, S_T2, (g & 1) * 32 * 3072 + seg * 1024, L_WL, wl + seg * 4096)
    if g == 0: xops(0, [0, 1, 2, 3, 4])
    elif g & 1 and g < 15: xops(t + 1, [0, 1, 2])
    if g == 2 * args.touch + 1:
        A(f"""  v_lshlrev_b32 v{VTW}, 7, v0
  s_lshl_b32 s{S_T1}, s{S_J}, 14
  s_lshl_b32 s{S_T0}, s{S_WV}, 12
  s_add_u32 s{S_T1}, s{S_T1}, s{S_T0}
  s_mov_b32 exec_hi, 0
  buffer_load_dword v11, v{VTW}, s[{SRD_WO}:{SRD_WO+3}], s{S_T1} offen
  s_mov_b64 exec, -1""")
        return 1
    return 0
XC = lambda i: i * XSLOT + 2048
chunks = [[XC(0), 98304], [114688, XC(1)], [131072, XC(2)], [XC(3), WBASE]]
freeat = [11, 12, 14, 16]
def chunk_sel(bitreg):
    A(f"  s_cmp_eq_u32 s{bitreg}, 0")
    for i in range(4): A(f"  s_mov_b32 s{S_CH+i}, {chunks[i][1]}\n  s_cselect_b32 s{S_CH+i}, {chunks[i][0]}, s{S_CH+i}")
def lsetup():
    build_srds2()
    A(f"  s_and_b32 s{S_T2}, s{S_WV}, 1")
    chunk_sel(S_T2)
    quarters()
    A(f"""  v_lshrrev_b32 v11, 3, v0
  v_and_b32 v12, 7, v0
  v_bfe_u32 v13, v0, 4, 1
  v_lshlrev_b32 v13, 2, v13
  v_xor_b32 v12, v12, v13
  v_lshlrev_b32 v12, 4, v12
  v_lshl_add_u32 v{VWO}, v11, 10, v12
  s_lshl_b32 s{S_A0}, s{S_CB}, 8
  s_lshl_b32 s{S_T0}, s{S_T2}, 7
  s_add_u32 s{S_A0}, s{S_A0}, s{S_T0}
  s_lshr_b32 s{S_T0}, s{S_WV}, 1
  s_lshl_b32 s{S_T1}, s{S_T0}, 16
  s_add_u32 s{S_A0}, s{S_A0}, s{S_T1}
  s_lshl_b32 s{S_T0}, s{S_T0}, 13
  s_add_u32 s{S_CH}, s{S_CH}, s{S_T0}
  s_add_u32 s{S_CH+1}, s{S_CH+1}, s{S_T0}
  s_add_u32 s{S_CH+2}, s{S_CH+2}, s{S_T0}
  s_add_u32 s{S_CH+3}, s{S_CH+3}, s{S_T0}
  s_lshl_b32 s{S_FLG}, s{S_BR}, 7
  s_lshl_b32 s{S_T1}, s{S_RB}, 3
  s_add_u32 s{S_FLG}, s{S_FLG}, s{S_T1}
  s_add_u32 s{S_FLG}, s{S_FLG}, s{S_HG}
  s_lshl_b32 s{S_FLG}, s{S_FLG}, 7
  s_add_u32 s{S_FLG}, s{S_FLG}, {WS_FLG}
  v_mov_b32 v8, 1
  v_mov_b32 v15, 0
  v_and_b32 v{VZ}, 7, v0
  v_lshlrev_b32 v{VZ}, 2, v{VZ}
  v_lshlrev_b32 v6, 7, v0
  v_lshlrev_b32 v7, 4, v0""")
def wo_group(i):
    A(f"  s_lshl_b32 s{S_T0}, s{S_Q+i}, 5\n  s_add_u32 s{S_T2}, s{S_T0}, s{S_A0}")
    for k in range(8): dma(VWO, SRD_WO, S_T2, k * 8192, S_CH + i, k * 1024)
sizes = []
def outstanding_after(kid):
    idx = [i for i, x in enumerate(sizes) if (x[0], x[1]) == kid][0]
    return sum(x[2] for x in sizes[idx + 1:])
def do_group(g):
    e = issue_group(g); sizes.append(("g", g, gsize(g))); sizes.append(("t", g, e))
if args.atouch:
    A(f"""  s_cmp_lg_u32 s{S_BR}, 0
  s_cbranch_scc1 L_notch
  v_and_b32 v11, 31, v0
  v_lshlrev_b32 v11, 10, v11
  v_lshrrev_b32 v12, 5, v0
  v_lshl_add_u32 v11, v12, 7, v11
  s_lshr_b32 s{S_T0}, s{S_XQ}, 1
  s_lshl_b32 s{S_T0}, s{S_T0}, 20
  s_lshl_b32 s{S_T1}, s{S_J}, 15
  s_add_u32 s{S_T0}, s{S_T0}, s{S_T1}
  s_lshl_b32 s{S_T1}, s{S_WV}, 8
  s_add_u32 s{S_T0}, s{S_T0}, s{S_T1}
  v_lshrrev_b32 v12, 2, v0
  v_mul_u32_u24 v12, 3072, v12
  v_and_b32 v13, 3, v0
  v_lshl_add_u32 v12, v13, 7, v12
  s_mul_i32 s{S_T1}, s{S_J}, {16*3072}
  s_and_b32 s{S_T2}, s{S_XQ}, 1
  s_lshl_b32 s{S_T2}, s{S_T2}, 9
  s_add_u32 s{S_T1}, s{S_T1}, s{S_T2}
  s_min_u32 s{S_T2}, s{S_WV}, 2
  s_lshl_b32 s{S_T2}, s{S_T2}, 10
  s_add_u32 s{S_T1}, s{S_T1}, s{S_T2}""")
    R = args.atouch
    masks = {1: [(-1, -1)], 2: [(-1, 0), (0, -1)], 3: [(0xffff, 0), (0xffff0000, 0), (0, -1)], 4: [(0xffff, 0), (0xffff0000, 0), (0, 0xffff), (0, 0xffff0000)]}[R]
    for lo, hi in masks:
        A(f"""  s_mov_b32 exec_lo, {hex(lo & 0xffffffff)}
  s_mov_b32 exec_hi, {hex(hi & 0xffffffff)}
  buffer_load_dword v13, v11, s[{SRD_X}:{SRD_X+3}], s{S_T0} offen
  buffer_load_dword v14, v12, s[{SRD_W}:{SRD_W+3}], s{S_T1} offen
  s_waitcnt vmcnt(0)""")
    A("  s_mov_b64 exec, -1\nL_notch:")
for g in range(args.D0): do_group(g)
lsetup()
nxt = args.D0
for bq in range(17):
    if bq < 16: A(f"  s_waitcnt vmcnt({min(63, outstanding_after(('g', bq)))})")
    A("  s_barrier")
    while nxt < 16 and nxt <= bq + D - 1 and nxt <= bq + 5 and (nxt <= bq + args.D0 or bq >= args.ramp):
        do_group(nxt); nxt += 1
    for i in range(4):
        if freeat[i] == bq: wo_group(i); sizes.append(("w", i, 8))
stamp(6)
def init_check(tag, v, vz):
    A(f"""  s_mov_b32 s{S_T1}, 0x01010101
L_ic{tag}:
  s_waitcnt vmcnt(0)
  v_cmp_ne_u32 vcc, s{S_T1}, v{v}
  s_nop 3
  s_cmp_eq_u64 vcc, 0
  s_cbranch_scc1 L_id{tag}
{spin(f"L_id{tag}")}
  s_sleep 4
  global_load_dword v{v}, v{vz}, s[{S_DBG}:{S_DBG+1}] sc1
  s_branch L_ic{tag}
L_id{tag}:""")
def poll(tag, voff, sreg, val=1):
    A(f"""L_pl{tag}:
  buffer_load_dword v16, v{voff}, s[{SRD_WS}:{SRD_WS+3}], s{sreg} offen sc1
  s_waitcnt vmcnt(0)
  v_cmp_ne_u32 vcc, {val}, v16
  s_and_b64 exec, exec, vcc
  s_cbranch_execz L_po{tag}
{spin(f"L_po{tag}")}
  s_sleep {args.psleep}
  s_branch L_pl{tag}
L_po{tag}:
  s_mov_b64 exec, -1""")
A("  s_barrier")
A(f"""  s_cmp_lg_u32 s{S_WV}, 0
  s_cbranch_scc1 L_nofl
  s_mov_b64 exec, 1
  buffer_store_dword v8, v15, s[{SRD_WS}:{SRD_WS+3}], s{S_FLG} offen sc1
  s_mov_b64 exec, -1
  s_waitcnt vmcnt({outstanding_after(('w', 1)) + 1})
  s_branch L_fl2
L_nofl:
  s_waitcnt vmcnt({outstanding_after(('w', 1))})
L_fl2:
  s_barrier""")
stamp(7)
A(f"""  s_cmp_lg_u32 s{S_WV}, 0
  s_cbranch_scc1 L_await
  s_lshr_b32 s{S_T1}, s{S_RB2}, 1
  s_lshl_b32 s{S_T1}, s{S_T1}, 10
  s_lshl_b32 s{S_T0}, s{S_BR}, 14
  s_add_u32 s{S_T1}, s{S_T1}, s{S_T0}
  s_add_u32 s{S_T1}, s{S_T1}, {WS_FLG}
  s_mov_b64 exec, 0xff""")
poll("R", 6, S_T1)
A(f"""L_await:
  s_lshl_b32 s{S_T3}, s{S_RB2}, 16
  s_lshl_b32 s{S_T0}, s{S_WV}, 14
  s_add_u32 s{S_T3}, s{S_T3}, s{S_T0}
  s_and_b32 s{S_T2}, s{S_WV}, 1
  s_lshl_b32 s{S_T2}, s{S_T2}, 14
  s_lshr_b32 s{S_T0}, s{S_WV}, 1
  s_mul_i32 s{S_T0}, s{S_T0}, {ORH}
  s_add_u32 s{S_T2}, s{S_T2}, s{S_T0}
  s_waitcnt vmcnt(0)
  s_barrier""")
def lfin():
    if NSTAMP:
        A(f"  s_cmp_lg_u32 s{S_WV}, 0\n  s_cbranch_scc1 L_end")
        stamp_flush([6, 7, 8], 12)
    A("  s_endpgm")
A(f"  s_cmp_eq_u32 s{S_BR}, 0\n  s_cbranch_scc1 L_oload")
A(f"""  s_mov_b32 s{S_T1}, {WS_FLG + 128*128}
  s_mov_b32 s{S_T2}, {WS_FLG + 192*128}
  v_lshrrev_b32 v11, 2, v0
  v_lshlrev_b32 v11, 4, v11
  v_bfe_u32 v12, v0, 1, 1
  v_lshl_add_u32 v11, v12, 8, v11
  v_and_b32 v12, 1, v0
  v_lshl_add_u32 v11, v12, 3, v11
  s_lshl_b32 s{S_A0}, s{S_WV}, 3
  s_mul_i32 s{S_A1}, s{S_A0}, {KVH}
  s_add_u32 s{S_A1}, s{S_A1}, {WS_KV}
  v_bfe_u32 v12, v0, 2, 3
  v_mul_u32_u24 v13, {KVH}, v12
  v_and_b32 v14, 3, v0
  v_lshl_add_u32 v13, v14, 4, v13
  v_add_u32 v13, 1024, v13
  v_add_u32 v12, s{S_A0}, v12              ; head
  v_mul_u32_u24 v20, {KVS}, v12
  v_lshl_add_u32 v20, v14, 3, v20
  v_add_u32 v20, {KV0 + 512}, v20
  v_add_u32 v21, {KV1 - KV0}, v20
  v_cmp_lt_u32 vcc, 10, v12
  s_nop 1
  v_cndmask_b32 v20, v20, v21, vcc""")
A(f"  s_lshl_b32 s{S_A2}, s{S_WV}, 10\n  s_add_u32 s{S_A2}, s{S_A2}, {WS_CNT}\n  s_mov_b64 exec, 0xff")
poll("K", 6, S_A2, 16)
stamp(8)
for h in range(8):
    r = 24 + h * 4
    A(f"  s_add_u32 s{S_T1}, s{S_A1}, {h*KVH}\n  buffer_load_dwordx4 v[{r}:{r+3}], v7, s[{SRD_WS}:{SRD_WS+3}], s{S_T1} offen {args.cl}")
A(f"  buffer_load_dwordx4 v[56:59], v13, s[{SRD_WS}:{SRD_WS+3}], s{S_A1} offen {args.cl}")
for h in range(8):
    r = 24 + h * 4
    A(f"""  s_add_u32 s{S_T0}, s{S_A0}, {h}
  s_mul_i32 s{S_T1}, s{S_T0}, {KVS}
  s_cmp_lt_u32 s{S_T0}, 11
  s_cselect_b32 s{S_T0}, 0, {KV1-KV0}
  s_add_u32 s{S_T1}, s{S_T1}, s{S_T0}
  s_add_u32 s{S_T1}, s{S_T1}, {KV0}
  v_add_u32 v{60+h}, s{S_T1}, v11""")
for h in range(8):
    r = 24 + h * 4
    A(f"  s_waitcnt vmcnt({8-h})")
    cvt(r, r)
    A(f"  ds_write_b64 v{60+h}, v[{r}:{r+1}]")
A("  s_waitcnt vmcnt(0)")
cvt(56, 56)
A("  ds_write_b64 v20, v[56:57]\n  s_waitcnt lgkmcnt(0)\n  s_barrier")
if NSTAMP: A("  s_barrier")
lfin()
A("L_oload:")
stamp(8)
def oloads(i):
    A(f"  s_add_u32 s{S_A0}, s{S_T3}, s{S_Q+i}\n  s_add_u32 s{S_A1}, s{S_T2}, s{S_Q+i}")
    for h in range(4):
        A(f"  s_add_u32 s{S_T1}, s{S_A0}, {h*1024}\n  s_add_u32 m0, s{S_A1}, {h*1024}\n  s_nop 0\n  buffer_load_dwordx4 v7, s[{SRD_WS}:{SRD_WS+3}], s{S_T1} offen {args.cl} lds")
oloads(0)
A("  s_waitcnt vmcnt(0)")
oloads(1)
A("  s_barrier")
oloads(2); oloads(3)
for i in (1, 2, 3): A(f"  s_waitcnt vmcnt({4*(3-i)})\n  s_barrier")
lfin()

V_XA = 1; V_WA = 2; V_XA1 = 3; V_ONE = 4; V_OA = 5; V_X0C = 6; V_X1C = 13; V_WC = 14; V_IFA = 15
V_IF = 160; V_DUM = 161; V_NC = 162; V_ONESB = 164
A("L_comp:")
A(f"  s_and_b32 s{S_HH}, s{S_WV}, 3\n  s_lshr_b32 s{S_RH}, s{S_WV}, 2")
if args.codepf:
    A(f"""  s_getpc_b64 s[{S_M0}:{S_M0+1}]
L_pcref:
  s_sub_u32 s{S_M0}, s{S_M0}, L_pcref-{NAME}
  s_subb_u32 s{S_M0+1}, s{S_M0+1}, 0
  s_lshl_b32 s{S_T0}, s{S_J}, 3
  s_add_u32 s{S_T0}, s{S_T0}, s{S_WV}
  s_lshl_b32 s{S_T0}, s{S_T0}, 7
  s_min_u32 s{S_T0}, s{S_T0}, (L_codeend-{NAME}-4)&0xfffffffc
  v_mov_b32 v7, s{S_T0}
  s_mov_b64 exec, 1
  global_load_dword v{V_DUM}, v7, s[{S_M0}:{S_M0+1}]
  s_mov_b64 exec, -1""")
A(f"""  v_and_b32 v7, 15, v0
  v_lshrrev_b32 v8, 4, v0
  v_lshrrev_b32 v9, 1, v7
  v_xor_b32 v9, v9, v8
  v_lshlrev_b32 v9, 4, v9
  v_lshl_add_u32 v{V_XA}, v7, 7, v9
  v_lshrrev_b32 v9, 2, v7
  v_lshl_add_u32 v9, v8, 3, v9
  v_lshrrev_b32 v10, 1, v9
  v_and_b32 v10, 1, v10
  v_and_b32 v11, 1, v8
  v_lshl_or_b32 v10, v11, 1, v10
  v_xor_b32 v10, s{S_HH}, v10
  v_lshlrev_b32 v10, 5, v10
  v_lshl_add_u32 v10, v9, 7, v10
  v_and_b32 v11, 3, v7
  v_lshl_add_u32 v{V_WA}, v11, 3, v10
  v_add_u32 v{V_WA}, {WBASE}, v{V_WA}
  v_mov_b32 v{V_ONE}, 1
  s_lshl_b32 s{S_T0}, s{S_HG}, 2
  s_add_u32 s{S_T0}, s{S_T0}, s{S_HH}
  s_lshl_b32 s{S_OB}, s{S_T0}, 9
  s_lshl_b32 s{S_T1}, s{S_RB}, 17
  s_add_u32 s{S_OB}, s{S_OB}, s{S_T1}
  s_lshl_b32 s{S_T1}, s{S_BR}, 21
  s_add_u32 s{S_OB}, s{S_OB}, s{S_T1}
  s_mul_i32 s{S_C3}, s{S_T0}, {KVH}
  s_add_u32 s{S_C3}, s{S_C3}, {WS_KV}
  s_lshl_b32 s{S_XH2}, s{S_T0}, 7
  s_add_u32 s{S_XH2}, s{S_XH2}, {WS_CNT}
  s_lshl_b32 s{S_FLG}, s{S_BR}, 7
  s_lshl_b32 s{S_T1}, s{S_RB}, 3
  s_add_u32 s{S_FLG}, s{S_FLG}, s{S_T1}
  s_add_u32 s{S_FLG}, s{S_FLG}, s{S_HG}
  s_lshl_b32 s{S_FLG}, s{S_FLG}, 7
  s_add_u32 s{S_FLG}, s{S_FLG}, {WS_FLG}
  s_lshl_b32 s{S_T1}, s{S_WV}, 2
  s_add_u32 s{S_FLG}, s{S_FLG}, s{S_T1}
  v_and_b32 v9, 1, v8
  v_lshlrev_b32 v9, 14, v9
  v_lshrrev_b32 v10, 1, v8
  v_lshl_add_u32 v9, v10, 8, v9
  v_lshl_add_u32 v{V_OA}, v7, 4, v9
  v_and_b32 v{V_IFA}, 7, v0
  v_lshlrev_b32 v{V_IFA}, 2, v{V_IFA}
  s_mov_b32 s{S_IT}, 0
  s_mov_b32 s{S_XO}, 0
  s_mov_b32 s{S_WO}, 0
  v_mov_b32 v{V_WC}, v{V_WA}
  s_waitcnt lgkmcnt(0)""")
build_srds2()
A(f"  s_cmp_eq_u32 s{S_BR}, 0\n  s_cbranch_scc0 L_compB")

wadv_c = [f"  s_add_u32 s{S_WO}, s{S_WO}, {WSLOT}", f"  s_cmp_eq_u32 s{S_WO}, {WSLOT*NWS}", f"  s_cselect_b32 s{S_WO}, 0, s{S_WO}", f"  v_add_u32 v{V_WC}, s{S_WO}, v{V_WA}"]
xadv_c = [f"  s_add_u32 s{S_XO}, s{S_XO}, {XSLOT}", f"  s_cmp_eq_u32 s{S_XO}, {XSLOT*NXS}", f"  s_cselect_b32 s{S_XO}, 0, s{S_XO}",
          f"  v_add_u32 v{V_X0C}, s{S_XO}, v{V_XA}", f"  v_add_u32 v{V_X1C}, s{S_XO}, v{V_XA1}"]
def mainloop(tag, reads, mfmas, extra_adv, tail, bpos):
    A("  s_barrier")
    stamp(1)
    if "cyc" in args.dbg: A(f"  s_memtime s[{sreg(12)}:{sreg(12)+1}]")
    for x in reads(0, 0): A(x)
    for kk in range(2):
        A(f"L_s{kk}{tag}:\n  s_waitcnt lgkmcnt(0)")
        m = mfmas(kk)
        adv = list(wadv_c) + (xadv_c + extra_adv if kk == 1 else [])
        r = reads(1 - kk, 1 - kk)
        if "noreads" in args.dbg: r = []
        ai = 0
        for i in range(bpos):
            A(m[i])
            want = min(len(adv), ((i + 1) * len(adv) + bpos - 2) // max(1, bpos - 1))
            while ai < want: A(adv[ai]); ai += 1
        A("  s_barrier")
        ri = 0; nm = len(m) - bpos
        for i, x in enumerate(m[bpos:]):
            want = min(len(r), ((i + 1) * len(r) + nm - 3) // max(1, nm - 2))
            while ri < want: A(r[ri]); ri += 1
            A(x)
        while ri < len(r): A(r[ri]); ri += 1
    tail()
    A(f"  s_add_u32 s{S_IT}, s{S_IT}, 1\n  s_cmp_lt_u32 s{S_IT}, 8\n  s_cbranch_scc1 L_s0{tag}")
    A(f"  global_load_dword v{V_IF}, v{V_IFA}, s[{S_DBG}:{S_DBG+1}] sc1")
    stamp(2)
    if "cyc" in args.dbg: A(f"  s_memtime s[{sreg(13)}:{sreg(13)+1}]")
    A("  s_waitcnt lgkmcnt(0)")
def trr(d, seg): return [f"  ds_read_b64_tr_b16 v[{d}:{d+1}], v{V_WC} offset:{seg*4096}", f"  ds_read_b64_tr_b16 v[{d+2}:{d+3}], v{V_WC} offset:{seg*4096 + 512}"]
def mm(acc, a, b): return f"  v_mfma_f32_16x16x32_bf16 v[{acc}:{acc+3}], v[{a}:{a+3}], v[{b}:{b+3}], v[{acc}:{acc+3}]"
def store_frags(src, nt, dst):
    for t in range(nt):
        d = dst + 4 * t
        cvt(d, src(2 * t)); cvt(d + 2, src(2 * t + 1))
    A("  s_nop 1")
    for t in range(nt):
        d = dst + 4 * t
        A(f"  v_permlane16_swap_b32 v{d}, v{d+2}\n  v_permlane16_swap_b32 v{d+1}, v{d+3}")
    for t in range(nt):
        d = dst + 4 * t
        A(f"  s_add_u32 s{S_T0}, s{S_OB}, {t*32768}")
        A(f"  buffer_store_dwordx4 v[{d}:{d+3}], v{V_OA}, s[{SRD_WS}:{SRD_WS+3}], s{S_T0} offen sc1")

ACC = 16
AQ = lambda b: ACC + 4 * b
AK = lambda b: ACC + 16 + 4 * b
AV = lambda b: ACC + 36 + 4 * b
FX = lambda buf, b: 72 + 32 * buf + 4 * b
FW = lambda buf, seg: 72 + 32 * buf + 20 + 4 * seg
V_HA = 136; V_H0C = 137; V_H1C = 138
MK = 140; MK0 = 144; V_HI = 148; V_PV = 149; V_ONES = 150
A(f"""  v_mov_b32 v{V_HA}, v{V_XA}
  s_cmp_eq_u32 s{S_RH}, 0
  s_cbranch_scc1 L_h0ok
  v_or_b32 v10, 8, v7
  v_lshrrev_b32 v9, 1, v10
  v_xor_b32 v9, v9, v8
  v_lshlrev_b32 v9, 4, v9
  v_lshl_add_u32 v9, v10, 7, v9
  v_lshrrev_b32 v10, 3, v7
  v_lshlrev_b32 v10, 11, v10
  v_add_u32 v9, v9, v10
  v_add_u32 v{V_HA}, {2048*3}, v9
L_h0ok:
  s_lshl_b32 s{S_T0}, s{S_RH}, 13
  s_add_u32 s{S_T0}, s{S_T0}, 2048
  v_add_u32 v{V_XA}, s{S_T0}, v{V_XA}
  v_xor_b32 v{V_XA1}, 64, v{V_XA}
  v_mov_b32 v{V_X0C}, v{V_XA}
  v_mov_b32 v{V_X1C}, v{V_XA1}
  v_mov_b32 v{V_H0C}, v{V_HA}
  v_xor_b32 v{V_H1C}, 64, v{V_HA}
  s_lshl_b32 s{S_T1}, s{S_RH}, 16
  s_add_u32 s{S_OB}, s{S_OB}, s{S_T1}""")
for r in range(ACC, ACC + 56): A(f"  v_mov_b32 v{r}, 0")
A(f"""  v_lshlrev_b32 v9, 2, v8
  v_sub_u32 v9, v7, v9
  s_mov_b32 s{S_C0}, 0xf149f2ca
  v_mov_b32 v10, s{S_C0}""")
for r in range(4):
    A(f"""  v_subrev_u32 v11, {r}, v9
  v_and_b32 v12, 15, v11
  v_cmp_gt_u32 vcc, 8, v12
  s_nop 1
  v_cndmask_b32 v{MK+r}, v10, 0, vcc
  v_cmp_gt_u32 vcc, 8, v11
  s_nop 1
  v_cndmask_b32 v{MK0+r}, v10, 0, vcc""")
A(f"""  s_or_b32 s{S_T0}, s{S_RB}, s{S_RH}
  s_cmp_eq_u32 s{S_T0}, 0
  s_cbranch_scc1 L_m0
  v_mov_b32 v{MK0}, v{MK}
  v_mov_b32 v{MK0+1}, v{MK+1}
  v_mov_b32 v{MK0+2}, v{MK+2}
  v_mov_b32 v{MK0+3}, v{MK+3}
L_m0:
  v_cmp_lt_u32 s[{S_M0}:{S_M0+1}], 7, v7
  v_cmp_lt_u32 vcc, 1, v8
  s_nop 1
  v_cndmask_b32 v{V_HI}, 0, -1, s[{S_M0}:{S_M0+1}]
  s_andn2_b64 s[{S_M1}:{S_M1+1}], vcc, s[{S_M0}:{S_M0+1}]
  v_mov_b32 v{V_ONES}, 0x3f803f80
  v_mov_b32 v{V_ONES+1}, 0x3f803f80
  v_cndmask_b32 v{V_PV}, 0, -1, s[{S_M1}:{S_M1+1}]
  v_mov_b32 v{V_ONES+2}, 0x3f803f80
  v_mov_b32 v{V_ONES+3}, 0x3f803f80
  s_mov_b32 s{S_C0}, 0x3eb8aa3b""")
def readsA(buf, kk):
    va = V_X0C if kk == 0 else V_X1C
    r = trr(FW(buf, 1), 1) + trr(FW(buf, 2), 2) + trr(FW(buf, 0), 0)
    for b in range(4): r.append(f"  ds_read_b128 v[{FX(buf,b)}:{FX(buf,b)+3}], v{va} offset:{b*2048}")
    r.append(f"  ds_read_b128 v[{FX(buf,4)}:{FX(buf,4)+3}], v{V_H0C if kk == 0 else V_H1C}")
    return r
def mfmasA(buf):
    m = []
    for b in range(4):
        x = FX(buf, b)
        m += [mm(AK(b), FW(buf, 1), x), mm(AV(b), x, FW(buf, 2)), mm(AQ(b), FW(buf, 0), x)]
    x = FX(buf, 4)
    return m + [mm(AK(4), FW(buf, 1), x), mm(AV(4), x, FW(buf, 2))]
mainloop("A", readsA, mfmasA, [f"  v_add_u32 v{V_H0C}, s{S_XO}, v{V_HA}", f"  v_xor_b32 v{V_H1C}, 64, v{V_H0C}"], lambda: None, args.bpos)
K4 = lambda b: 72 + 4 * b
Q4 = lambda b: 88 + 4 * b
VP = lambda p, i: 104 + 6 * p + 2 * i
KH = 116; KH2 = 118; TT = 120
for b in range(4):
    cvt(K4(b), AK(b))
    cvt(VP(b & 1, (b >> 1) + 1), AV(b))
    tt = TT + 2 * (b & 1)
    cvt(tt, AQ(b))
    A(f"  v_and_b32 v{Q4(b)}, v{tt}, v{V_HI}\n  v_and_b32 v{Q4(b)+1}, v{tt+1}, v{V_HI}")
    A(f"  v_xor_b32 v{Q4(b)+2}, v{tt}, v{Q4(b)}\n  v_xor_b32 v{Q4(b)+3}, v{tt+1}, v{Q4(b)+1}")
cvt(KH, AK(4))
cvt(VP(1, 0), AV(4))
A(f"""  s_nop 1
  v_mov_b32_dpp v{KH2}, v{KH} row_ror:8 row_mask:0xf bank_mask:0xf
  v_mov_b32_dpp v{KH2+1}, v{KH+1} row_ror:8 row_mask:0xf bank_mask:0xf
  v_mov_b32 v{VP(0,0)}, v{VP(1,0)}
  v_mov_b32 v{VP(0,0)+1}, v{VP(1,0)+1}
  v_mov_b32 v{TT}, v{VP(1,0)}
  v_mov_b32 v{TT+1}, v{VP(1,0)+1}
  s_nop 1
  v_permlane32_swap_b32 v{VP(0,0)}, v{TT}
  v_permlane32_swap_b32 v{VP(0,0)+1}, v{TT+1}""")
for b in range(4):
    t, p = b >> 1, b & 1
    prev = (KH2 if p == 0 else KH) if t == 0 else K4(p)
    A(f"  v_cndmask_b32 v{K4(b)+2}, v{K4(b)}, v{prev}, s[{S_M0}:{S_M0+1}]\n  v_cndmask_b32 v{K4(b)+3}, v{K4(b)+1}, v{prev+1}, s[{S_M0}:{S_M0+1}]")
A("  s_nop 1")
SS = lambda b: ACC + 4 * b
for b in range(4):
    mk = MK0 if b < 2 else MK
    A(f"  v_mfma_f32_16x16x32_bf16 v[{SS(b)}:{SS(b)+3}], v[{K4(b)}:{K4(b)+3}], v[{Q4(b)}:{Q4(b)+3}], v[{mk}:{mk+3}]")
MX = lambda b: 32 + b
MT = 36
A("  s_nop 7")
for b in range(4): A(f"  v_max3_f32 v{MX(b)}, v{SS(b)}, v{SS(b)+1}, v{SS(b)+2}")
for b in range(4): A(f"  v_max_f32 v{MX(b)}, v{MX(b)}, v{SS(b)+3}")
a, b_, c, d = [MX(i) for i in range(4)]
A(f"""  s_nop 0
  v_permlane32_swap_b32 v{a}, v{b_}
  v_permlane32_swap_b32 v{c}, v{d}
  v_max_f32 v{a}, v{a}, v{b_}
  v_max_f32 v{c}, v{c}, v{d}
  s_nop 1
  v_permlane16_swap_b32 v{a}, v{c}
  v_max_f32 v{a}, v{a}, v{c}
  v_mul_f32 v{a}, s{S_C0}, v{a}
  v_mov_b32 v{c}, v{a}
  s_nop 1
  v_permlane16_swap_b32 v{a}, v{c}
  v_mov_b32 v{b_}, v{a}
  v_mov_b32 v{d}, v{c}
  s_nop 0
  v_permlane32_swap_b32 v{a}, v{b_}
  v_permlane32_swap_b32 v{c}, v{d}""")
for b in range(4):
    for r in range(4): A(f"  v_fma_f32 v{SS(b)+r}, v{SS(b)+r}, s{S_C0}, -v{MX(b)}")
for b in range(4):
    for r in range(4): A(f"  v_exp_f32 v{SS(b)+r}, v{SS(b)+r}")
P4 = lambda b: 40 + 4 * b
for b in range(4):
    tt = MT + 2 * (b & 1)
    cvt(tt, SS(b))
    A(f"  v_and_b32 v{P4(b)}, v{tt}, v{V_PV}\n  v_and_b32 v{P4(b)+1}, v{tt+1}, v{V_PV}")
    A(f"  v_xor_b32 v{P4(b)+2}, v{tt}, v{P4(b)}\n  v_xor_b32 v{P4(b)+3}, v{tt+1}, v{P4(b)+1}")
A("  s_nop 1")
OO = lambda b: 72 + 4 * b
SM = lambda b: 88 + 4 * b
for b in range(4):
    t, p = b >> 1, b & 1
    A(f"  v_mfma_f32_16x16x32_bf16 v[{SM(b)}:{SM(b)+3}], v[{V_ONES}:{V_ONES+3}], v[{P4(b)}:{P4(b)+3}], 0")
    A(f"  v_mfma_f32_16x16x32_bf16 v[{OO(b)}:{OO(b)+3}], v[{VP(p,t)}:{VP(p,t)+3}], v[{P4(b)}:{P4(b)+3}], 0")
A("  s_nop 4")
for b in range(4): A(f"  v_rcp_f32 v{SM(b)}, v{SM(b)}")
for b in range(4):
    for r in (0, 2): A(f"  v_pk_mul_f32 v[{OO(b)+r}:{OO(b)+r+1}], v[{OO(b)+r}:{OO(b)+r+1}], v[{SM(b)}:{SM(b)+1}] op_sel_hi:[1,0]")
store_frags(OO, 2, ACC)
A("  s_branch L_phase2")

A("L_compB:")
A(f"""  s_mov_b32 s{S_C0}, 0x358637bd
  s_mov_b32 s{S_C1}, 0x3fb8aa3b
  s_mov_b32 s{S_C2}, {hex(f2u(-1e-6 * 1.4426950408889634))}
  v_mov_b32 v{V_NC}, s{S_C2}
  v_add_u32 v{V_XA}, 2048, v{V_XA}
  v_xor_b32 v{V_XA1}, 64, v{V_XA}
  v_mov_b32 v{V_X0C}, v{V_XA}
  v_mov_b32 v{V_X1C}, v{V_XA1}""")
for r in range(16, 48): A(f"  v_mov_b32 v{r}, s{S_C0}")
A(f"  s_cmp_lg_u32 s{S_RH}, 0\n  s_cbranch_scc1 L_compQ")
A(f"""  s_cmp_lg_u32 s{S_RB}, 0
  s_cbranch_scc1 L_nozero
  v_mov_b32 v8, 0
  v_mov_b32 v9, 0
  v_mov_b32 v10, 0
  v_mov_b32 v11, 0
  v_lshlrev_b32 v7, 4, v0
  buffer_store_dwordx4 v[8:11], v7, s[{SRD_WS}:{SRD_WS+3}], s{S_C3} offen sc1
  s_mov_b64 exec, 0xff
  buffer_store_dwordx4 v[8:11], v7, s[{SRD_WS}:{SRD_WS+3}], s{S_C3} offen offset:1024 sc1
  s_mov_b64 exec, -1
  s_lshl_b32 s{S_T0}, s{S_HG}, 2
  s_add_u32 s{S_T0}, s{S_T0}, s{S_HH}
  s_mul_i32 s{S_T0}, s{S_T0}, {9*128}
  s_add_u32 s{S_T0}, s{S_T0}, {WS_FLG}
  v_lshlrev_b32 v7, 7, v0
  s_mov_b64 exec, 0x1ff
  buffer_store_dword v8, v7, s[{SRD_WS}:{SRD_WS+3}], s{S_T0} offen sc1
  s_mov_b64 exec, -1
L_nozero:""")
BK = lambda b: 16 + 4 * b
BV = lambda b: 48 + 4 * b
GX = lambda buf, b: 80 + 40 * buf + 4 * b
GW = lambda buf, i: 80 + 40 * buf + 32 + 4 * i
for r in range(48, 80): A(f"  v_mov_b32 v{r}, 0")
for r in range(4): A(f"  v_mov_b32 v{V_ONESB+r}, 0x3f803f80")
def xreads(buf, kk):
    va = V_X0C if kk == 0 else V_X1C
    return [f"  ds_read_b128 v[{GX(buf,b)}:{GX(buf,b)+3}], v{va} offset:{b*2048}" for b in range(8)]
def readsKV(buf, kk): return trr(GW(buf, 0), 1) + trr(GW(buf, 1), 2) + xreads(buf, kk)
def mfmasKV(buf):
    m = []
    for b in range(8): m += [mm(BK(b), GX(buf, b), GW(buf, 0)), mm(BV(b), GX(buf, b), GW(buf, 1))]
    return m
def ack():
    A(f"""  s_or_b32 s{S_T0}, s{S_IT}, s{S_RB}
  s_cmp_lg_u32 s{S_T0}, 0
  s_cbranch_scc1 L_noack
  s_waitcnt vmcnt(0)
  s_lshl_b32 s{S_T0}, s{S_HG}, 2
  s_add_u32 s{S_T0}, s{S_T0}, s{S_HH}
  v_mov_b32 v11, s{S_T0}
  s_mov_b64 exec, 1
  global_store_byte v11, v{V_ONE}, s[{S_DBG}:{S_DBG+1}] sc1
  s_mov_b64 exec, -1
L_noack:""")
mainloop("K", readsKV, mfmasKV, [], ack, args.bpos)
if args.kprio: A("  s_setprio 2")
PK = lambda b: 80 + 2 * b
VV = lambda b: 96 + 2 * b
ET = 112
def phi(acc, n, et):
    for i in range(n): A(f"  v_fma_f32 v{et+i}, v{acc+i}, s{S_C1}, v{V_NC}")
    for i in range(n): A(f"  v_exp_f32 v{et+i}, v{et+i} clamp")
    for i in range(n): A(f"  v_max_f32 v{acc+i}, s{S_C0}, v{acc+i}")
    for i in range(0, n, 2): A(f"  v_pk_add_f32 v[{acc+i}:{acc+i+1}], v[{acc+i}:{acc+i+1}], v[{et+i}:{et+i+1}]")
for b in range(8): cvt(VV(b), BV(b))
phi(BK(0), 32, ET)
for b in range(8): cvt(PK(b), BK(b))
KVA = 144; ZA = 148
A("  s_nop 1")
for i in range(4):
    c = "0" if i == 0 else f"v[{KVA}:{KVA+3}]"
    A(f"  v_mfma_f32_16x16x32_bf16 v[{KVA}:{KVA+3}], v[{VV(2*i)}:{VV(2*i)+3}], v[{PK(2*i)}:{PK(2*i)+3}], {c}")
    c = "0" if i == 0 else f"v[{ZA}:{ZA+3}]"
    A(f"  v_mfma_f32_16x16x32_bf16 v[{ZA}:{ZA+3}], v[{V_ONESB}:{V_ONESB+3}], v[{PK(2*i)}:{PK(2*i)+3}], {c}")
A("""  v_and_b32 v7, 15, v0
  v_lshlrev_b32 v7, 2, v7
  v_lshrrev_b32 v8, 5, v0
  v_lshl_add_u32 v7, v8, 8, v7
  v_bfe_u32 v8, v0, 4, 1
  v_lshl_add_u32 v7, v8, 9, v7""")
init_check("B", V_IF, V_IFA)
A("  s_nop 2")
for r in range(4):
    A(f"  buffer_atomic_add_f32 v{KVA+r}, v7, s[{SRD_WS}:{SRD_WS+3}], s{S_C3} offen offset:{64*r}")
A(f"  s_mov_b64 exec, 0xffff\n  buffer_atomic_add_f32 v{ZA}, v7, s[{SRD_WS}:{SRD_WS+3}], s{S_C3} offen offset:1024\n  s_mov_b64 exec, -1")
A(f"  v_mov_b32 v8, 0\n  s_waitcnt vmcnt(0)\n  s_mov_b64 exec, 1\n  buffer_atomic_add v{V_ONE}, v8, s[{SRD_WS}:{SRD_WS+3}], s{S_XH2} offen\n  s_mov_b64 exec, -1\n  s_mov_b32 s{S_IT}, 99\n  s_setprio 0")
A("  s_branch L_phase2")
A("L_compQ:")
def readsQ(buf, kk): return trr(GW(buf, 0), 0) + xreads(buf, kk)
def mfmasQ(buf): return [mm(BK(b), GW(buf, 0), GX(buf, b)) for b in range(8)]
mainloop("Q", readsQ, mfmasQ, [], lambda: None, min(args.bpos, 2))
A("  s_nop 4")
phi(BK(0), 32, ET)
store_frags(BK, 4, 16)

A("L_phase2:")
stamp(3)
A(f"  s_lshr_b32 s{S_T2}, s{S_HH}, 1")
chunk_sel(S_T2)
quarters()
A(f"""  v_and_b32 v11, 15, v0
  v_lshrrev_b32 v12, 4, v0
  v_lshrrev_b32 v13, 2, v11
  v_lshl_add_u32 v13, v12, 3, v13
  v_and_b32 v14, 3, v11
  v_lshlrev_b32 v14, 4, v14
  v_lshl_add_u32 v14, v13, 7, v14
  v_bfe_u32 v10, v13, 1, 1
  s_and_b32 s{S_T0}, s{S_HH}, 1
  v_xor_b32 v10, s{S_T0}, v10
  v_lshl_add_u32 v6, v10, 6, v14
  v_add_u32 v2, s{S_CH}, v6
  v_add_u32 v3, s{S_CH+1}, v6
  v_lshlrev_b32 v11, 12, v11
  v_lshl_add_u32 v1, v12, 4, v11
  s_lshl_b32 s{S_C2}, s{S_RB2}, 17
  s_lshl_b32 s{S_T0}, s{S_RH}, 16
  s_add_u32 s{S_C2}, s{S_C2}, s{S_T0}
  s_lshl_b32 s{S_T0}, s{S_BR}, 10
  s_add_u32 s{S_C2}, s{S_C2}, s{S_T0}
  s_lshl_b32 s{S_T0}, s{S_CB}, 8
  s_add_u32 s{S_C2}, s{S_C2}, s{S_T0}
  s_lshl_b32 s{S_T0}, s{S_HH}, 6
  s_add_u32 s{S_C2}, s{S_C2}, s{S_T0}
  s_mul_i32 s{S_C3}, s{S_RH}, {ORH}""")
A(f"  s_cmp_eq_u32 s{S_IT}, 99\n  s_cbranch_scc1 L_idP")
init_check("P", V_IF, V_IFA)
stamp(4)
A("  s_barrier\n  s_barrier")
WF = lambda ks, c: 104 + (ks % 8) * 8 + c * 4
def wo_reads(i, va):
    for k in range(4):
        for c in range(2):
            d = WF(4 * i + k, c)
            A(f"  ds_read_b64_tr_b16 v[{d}:{d+1}], v{va} offset:{k*4096 + 8*c}\n  ds_read_b64_tr_b16 v[{d+2}:{d+3}], v{va} offset:{k*4096 + 8*c + 512}")
wo_reads(0, 2); wo_reads(1, 3)
A(f"""  v_lshlrev_b32 v5, 4, v0
  v_add_u32 v5, s{S_C3}, v5
  v_and_b32 v11, 31, v0
  v_lshrrev_b32 v12, 5, v0
  v_lshrrev_b32 v13, 4, v11
  v_lshlrev_b32 v13, 14, v13
  v_lshl_add_u32 v13, v12, 8, v13
  v_and_b32 v14, 15, v11
  v_lshl_add_u32 v7, v14, 4, v13
  v_lshlrev_b32 v13, 4, v14
  v_lshl_add_u32 v13, v12, 8, v13
  v_lshlrev_b32 v10, 4, v12
  v_add_u32 v10, 512, v10
  v_cmp_lt_u32 vcc, 15, v11
  s_nop 1
  v_cndmask_b32 v4, v13, v10, vcc
  s_lshl_b32 s{S_C1}, s{S_RB2}, 16
  s_add_u32 s{S_C1}, s{S_C1}, 0x200000
  s_mov_b32 s{S_C0}, 0x358637bd
  s_waitcnt lgkmcnt(0)""")
stamp(5)
A("  s_barrier")
OA = lambda b, c: 16 + (b * 2 + c) * 4
OF = lambda k, b: 40 + (k % 8) * 8 + 4 * b
def gemm_all(bars):
    q = []
    def rd_o(k):
        i, h = k >> 2, k & 3
        for b in range(2):
            A(f"  ds_read_b128 v[{OF(k,b)}:{OF(k,b)+3}], v{8+i} offset:{b*16384 + h*1024}"); q.append(("o", k))
    def rd_w(k):
        i, h = k >> 2, k & 3
        for c in range(2):
            d = WF(k, c)
            A(f"  ds_read_b64_tr_b16 v[{d}:{d+1}], v{i} offset:{h*4096 + 8*c}"); q.append(("w", k))
            A(f"  ds_read_b64_tr_b16 v[{d+2}:{d+3}], v{i} offset:{h*4096 + 8*c + 512}"); q.append(("w", k))
    if bars: A("  s_barrier"); stamp(9)
    for k in range(4): rd_o(k)
    for k in range(16):
        need = [j for j, t in enumerate(q) if t[1] <= k]
        if need:
            n = len(q) - 1 - need[-1]
            A(f"  s_waitcnt lgkmcnt({min(n, 15)})")
            del q[:need[-1] + 1]
        ms = []
        for b in range(2):
            for c in range(2):
                acc = OA(b, c); wf = WF(k, c); d = OF(k, b)
                cin = "0" if k == 0 else f"v[{acc}:{acc+3}]"
                ms.append(f"  v_mfma_f32_16x16x32_bf16 v[{acc}:{acc+3}], v[{wf}:{wf+3}], v[{d}:{d+3}], {cin}")
        A(ms[0]); A(ms[1])
        kn = k + 4 if not bars else None
        if bars:
            if k % 4 == 1 and k + 3 < 16:
                A("  s_barrier")
                for kk in range(k + 3, k + 5): rd_o(kk)
            elif k % 4 == 2 and k + 4 < 16:
                for kk in range(k + 4, k + 6): rd_o(kk)
        elif k + 4 < 16: rd_o(k + 4)
        A(ms[2]); A(ms[3])
        if k < 8: rd_w(k + 8)
A(f"  v_add_u32 v2, s{S_CH+2}, v6\n  v_add_u32 v3, s{S_CH+3}, v6")
for i in range(4): A(f"  v_add_u32 v{8+i}, s{S_Q+i}, v5")
A(f"  s_cmp_lg_u32 s{S_BR}, 0\n  s_cbranch_scc1 L_p2B")
gemm_all(True)
A("  s_branch L_fin")
A("L_p2B:")
PQ = lambda i, rg: 40 + (i * 2 + rg) * 4
A(f"""  s_lshr_b32 s{S_A0}, s{S_WV}, 1
  s_lshl_b32 s{S_A0}, s{S_A0}, 10
  s_and_b32 s{S_T0}, s{S_WV}, 1
  s_lshl_b32 s{S_T0}, s{S_T0}, 9
  s_add_u32 s{S_A0}, s{S_A0}, s{S_T0}""")
for i in range(4):
    A(f"  s_add_u32 s{S_T2}, s{S_A0}, {i*4096}\n  s_add_u32 s{S_T2}, s{S_T2}, s{S_C1}\n  s_add_u32 s{S_T3}, s{S_T2}, 32768")
    for rg in range(2):
        d = PQ(i, rg)
        A(f"  buffer_load_dwordx4 v[{d}:{d+3}], v7, s[{SRD_WS}:{SRD_WS+3}], s{S_T2 if rg == 0 else S_T3} offen {args.cl}")
for i in range(4):
    A(f"""  s_add_u32 s{S_T0}, s{S_WV}, {8*i}
  s_mul_i32 s{S_T1}, s{S_T0}, {KVS}
  s_cmp_lt_u32 s{S_T0}, 11
  s_cselect_b32 s{S_T0}, 0, {KV1-KV0}
  s_add_u32 s{S_T1}, s{S_T1}, s{S_T0}
  s_add_u32 s{S_T1}, s{S_T1}, {KV0}
  v_add_u32 v{12+i}, s{S_T1}, v4""")
A(f"  v_add_u32 v32, s{S_A0}, v7\n  v_add_u32 v33, {ORH}, v32\n  s_waitcnt vmcnt(0)")
if 'cyc' not in args.dbg: stamp(12)
A("  s_barrier")
if 'cyc' not in args.dbg: stamp(13)
for i in range(4): A(f"  ds_read_b128 v[{16+4*i}:{19+4*i}], v{12+i}")
def pm(u):
    i, rg = u >> 1, u & 1; d = 72 + 16 * rg
    A(f"  v_mfma_f32_32x32x16_bf16 v[{d}:{d+15}], v[{16+4*i}:{19+4*i}], v[{PQ(i,rg)}:{PQ(i,rg)+3}], 0")
def pv(u):
    i, rg = u >> 1, u & 1; d = 72 + 16 * rg
    A(f"  v_add_f32 v{d+8}, s{S_C0}, v{d+8}\n  v_rcp_f32 v{d+8}, v{d+8}\n  s_nop 0")
    for r in range(0, 8, 2):
        A(f"  v_pk_mul_f32 v[{d+r}:{d+r+1}], v[{d+r}:{d+r+1}], v[{d+8}:{d+9}] op_sel_hi:[1,0]")
    o_ = PQ(i, rg)
    cvt(o_, d); cvt(o_ + 2, d + 4)
    A(f"  ds_write_b128 v{32+rg}, v[{o_}:{o_+3}] offset:{i*4096}")
A("  s_waitcnt lgkmcnt(0)")
pm(0); pm(1)
A("  s_nop 10")
for u in range(8):
    pv(u)
    if u + 2 < 8: pm(u + 2)
    if u == 6: A("  s_nop 0")
A("  s_waitcnt lgkmcnt(0)")
stamp(14)
A("  s_barrier")
stamp(9)
gemm_all(False)
A("L_fin:\n  s_nop 7")
for b in range(2):
    d = 32 + 4 * b
    cvt(d, OA(b, 0)); cvt(d + 2, OA(b, 1))
    A(f"  s_add_u32 s{S_T0}, s{S_C2}, {b * 2048}")
    A(f"  buffer_store_dwordx4 v[{d}:{d+3}], v1, s[{SRD_OUT}:{SRD_OUT+3}], s{S_T0} offen {args.ost.replace('_', ' ')}")
stamp(10)
if NSTAMP:
    A("  s_waitcnt vmcnt(0)")
    stamp(11)
    A(f"  s_cmp_lg_u32 s{S_WV}, 0\n  s_cbranch_scc1 L_end")
    stamp_flush([0, 1, 2, 3, 4, 5, 9, 10, 11, 12, 13, 14], 8)
A("L_end:\n  s_endpgm\nL_codeend:")
A(f""".section .rodata,"a"
.p2align 6
.amdhsa_kernel {NAME}
  .amdhsa_next_free_vgpr 168
  .amdhsa_next_free_sgpr 102
  .amdhsa_accum_offset 168
  .amdhsa_group_segment_fixed_size 0
  .amdhsa_kernarg_size 72
  .amdhsa_user_sgpr_count 2
  .amdhsa_user_sgpr_kernarg_segment_ptr 1
  .amdhsa_system_sgpr_workgroup_id_x 1
.end_amdhsa_kernel""")
print("\n".join(out))
```

```python
import sys, argparse, struct
ap = argparse.ArgumentParser()
ap.add_argument("--stamps", type=int, default=0)
ap.add_argument("--order", type=str, default="g4c")
ap.add_argument("--dbg", type=str, default="")
ap.add_argument("--touch", type=int, default=4)
ap.add_argument("--psleep", type=int, default=2)
ap.add_argument("--maxfl", type=int, default=20)
ap.add_argument("--codepf", type=int, default=0)
ap.add_argument("--D", type=int, default=5)
ap.add_argument("--D0", type=int, default=2)
ap.add_argument("--ramp", type=int, default=4)
ap.add_argument("--bpos", type=int, default=3)
ap.add_argument("--ldf", type=str, default="")
ap.add_argument("--ldn", type=int, default=16)
ap.add_argument("--ost", type=str, default="")
ap.add_argument("--cl", type=str, default="")
args = ap.parse_args()
NAME = "concat_heads__sliding_local_dilated__linear_attn_block__prompt_kernel"
out = []
def A(s): out.append(s)
def f2u(x): return struct.unpack("<I", struct.pack("<f", x))[0]
SPINMAX = "0x40000"
XSLOT = 18432; NXS = 4
WBASE = XSLOT * NXS
WSLOT = 12288; NWS = 7
LDS_TOTAL = WBASE + WSLOT * NWS
ORH = 98304
KVS = 544
KV0 = 32768; KV1 = 147456 - 11 * KVS
WS_KV = 4 << 20
KVH = 1152
WS_FLG = (4 << 20) + 65536
STAMP_OFF = 128 << 20
NSTAMP = args.stamps
S_PTR = 4; S_WS = 20; S_FLG = 22; S_SEQ = 23
SRD_X = 24; SRD_W = 28; SRD_WO = 32; SRD_OUT = 36; SRD_WS = 40
S_DBG = 44
S_BR = 46; S_RB = 47; S_HG = 48; S_RB2 = 49; S_CB = 50; S_WV = 51; S_J = 52; S_XQ = 53
S_XB = 54; S_XH = 55; S_WB = 56
S_T0 = 57; S_T1 = 58; S_T2 = 59; S_T3 = 60; S_IT = 61
S_M0 = 62; S_M1 = 64
S_XO = 66; S_WO = 67
S_C0 = 68; S_C1 = 69; S_C2 = 70; S_C3 = 71
S_OB = 72; S_SPIN = 73; S_STB = 74
S_ST = 76
S_CH = 12
S_A0 = 16; S_A1 = 17; S_A2 = 18; S_A3 = 19
S_Q = 4
S_HH = 54; S_RH = 55

def sreg(i): return S_ST + 2 * (i if i < 12 else i - 6)
def stamp(i):
    if i < NSTAMP: A(f"  s_memrealtime s[{sreg(i)}:{sreg(i)+1}]")
def stamp_flush(idxs, vtmp):
    if not NSTAMP: return
    A(f"  s_waitcnt lgkmcnt(0)\n  s_mov_b64 exec, 1\n  v_mov_b32 v{vtmp+2}, 0")
    for i in idxs:
        if i < NSTAMP:
            A(f"  v_mov_b32 v{vtmp}, s{sreg(i)}\n  v_mov_b32 v{vtmp+1}, s{sreg(i)+1}")
            A(f"  global_store_dwordx2 v{vtmp+2}, v[{vtmp}:{vtmp+1}], s[{S_STB}:{S_STB+1}] offset:{8*i}\n  s_nop 1")
    A("  s_mov_b64 exec, -1")
def spin(lbl_out):
    return f"  s_add_u32 s{S_SPIN}, s{S_SPIN}, 1\n  s_cmp_gt_u32 s{S_SPIN}, {SPINMAX}\n  s_cbranch_scc1 {lbl_out}"
def cvt(d, a):
    A(f"  v_cvt_pk_bf16_f32 v{d}, v{a}, v{a+1}\n  v_cvt_pk_bf16_f32 v{d+1}, v{a+2}, v{a+3}")
def quarters():
    for i in range(4):
        A(f"  s_add_u32 s{S_T0}, s{S_CB}, {i}\n  s_and_b32 s{S_T0}, s{S_T0}, 3\n  s_lshl_b32 s{S_Q+i}, s{S_T0}, 12")

A(f"; @launch grid=(256,1,1) block=(768,1,1) lds={LDS_TOTAL}")
A('.amdgcn_target "amdgcn-amd-amdhsa--gfx950"\n.text\n.globl %s\n.p2align 8\n.type %s,@function\n%s:' % (NAME, NAME, NAME))
A("  s_cmp_ge_u32 s2, 256\n  s_cbranch_scc1 L_end")
A(f"  s_load_dwordx16 s[{S_PTR}:{S_PTR+15}], s[0:1], 0\n  s_load_dwordx2 s[{S_WS}:{S_WS+1}], s[0:1], 64")
stamp(0)
A(f"""  v_lshrrev_b32 v1, 6, v0
  v_and_b32 v0, 63, v0
  v_readfirstlane_b32 s{S_WV}, v1
  s_and_b32 s{S_T0}, s2, 7
  s_lshr_b32 s{S_J}, s2, 3
  s_lshr_b32 s{S_BR}, s{S_T0}, 2
  s_and_b32 s{S_XQ}, s{S_T0}, 3
  s_lshr_b32 s{S_T1}, s{S_XQ}, 1
  s_lshl_b32 s{S_T1}, s{S_T1}, 3
  s_lshr_b32 s{S_T2}, s{S_J}, 2
  s_add_u32 s{S_RB}, s{S_T1}, s{S_T2}
  s_and_b32 s{S_T1}, s{S_XQ}, 1
  s_lshl_b32 s{S_T1}, s{S_T1}, 2
  s_and_b32 s{S_CB}, s{S_J}, 3
  s_add_u32 s{S_HG}, s{S_T1}, s{S_CB}
  s_lshl_b32 s{S_T1}, s{S_XQ}, 3
  s_add_u32 s{S_RB2}, s{S_T1}, s{S_T2}
  s_mov_b32 s{S_SPIN}, 0
  s_cmp_lt_u32 s{S_WV}, 8
  s_cbranch_scc1 L_comp""")

VX0 = 1; VX1 = 2; VW = 3; VXH = 4; VWO = 5; VTW = 9; VZ = 10
L_HL = S_C3; L_XL = S_C2; L_WL = S_C1
def seq_pack(l): return sum(x << (4 * i) for i, x in enumerate(l))
o = args.order
A(f"""  s_sub_u32 s{S_WV}, s{S_WV}, 8
  v_lshrrev_b32 v11, 3, v0
  v_and_b32 v12, 7, v0
  v_lshrrev_b32 v13, 4, v0
  v_xor_b32 v14, v12, v13
  v_lshlrev_b32 v14, 4, v14
  v_lshl_add_u32 v{VX0}, v11, 11, v14
  v_xor_b32 v{VX1}, 64, v{VX0}
  v_and_b32 v13, 1, v13
  v_lshlrev_b32 v13, 1, v13
  v_xor_b32 v14, v12, v13
  v_lshlrev_b32 v14, 4, v14
  v_mul_u32_u24 v{VW}, 3072, v11
  v_add_u32 v{VW}, v{VW}, v14
  s_and_b32 s{S_T0}, s{S_WV}, 1
  s_lshl_b32 s{S_T1}, s{S_T0}, 6
  v_xor_b32 v{VW}, s{S_T1}, v{VW}
  v_xor_b32 v{VXH}, s{S_T1}, v{VX0}
  s_lshl_b32 s{S_XB}, s{S_RB}, 17
  s_sub_u32 s{S_XH}, s{S_XB}, 16384
  s_max_i32 s{S_XH}, s{S_XH}, 0
  s_lshl_b32 s{L_HL}, s{S_T0}, 10
  s_add_u32 s{S_XH}, s{S_XH}, s{L_HL}
  s_lshl_b32 s{S_T1}, s{S_WV}, 15
  s_add_u32 s{S_XB}, s{S_XB}, s{S_T1}
  s_lshl_b32 s{L_XL}, s{S_WV}, 12
  s_add_u32 s{L_XL}, s{L_XL}, 2048
  s_lshl_b32 s{S_WB}, s{S_HG}, 7
  s_mul_i32 s{S_T1}, s{S_WV}, 24576
  s_add_u32 s{S_WB}, s{S_WB}, s{S_T1}
  s_lshl_b32 s{L_WL}, s{S_WV}, 10
  s_add_u32 s{L_WL}, s{L_WL}, {WBASE}""")
if o == "plain":
    A(f"  s_mov_b32 s{S_SEQ}, {hex(seq_pack(range(8)))}")
elif o == "rot8":
    A(f"""  s_lshl_b32 s{S_T1}, s{S_CB}, 1
  s_add_u32 s{S_T1}, s{S_T1}, s{S_T2}
  s_and_b32 s{S_T1}, s{S_T1}, 7
  s_mul_i32 s{S_T1}, s{S_T1}, 0x11111111
  s_add_u32 s{S_SEQ}, s{S_T1}, {hex(seq_pack(range(8)))}
  s_and_b32 s{S_SEQ}, s{S_SEQ}, 0x77777777""")
elif o.startswith("g2"):
    seqs = {"g2a": "a0 a1 b0 a2 b1 a3 b2 b3", "g2b": "a0 a1 a2 a3 b0 b1 b2 b3", "g2c": "a0 b0 a1 b1 a2 b2 a3 b3", "g2d": "a0 a1 a2 b0 b1 a3 b2 b3"}
    l = [2 * int(x[1]) + (x[0] == 'b') for x in seqs[o].split()]
    A(f"  s_add_u32 s{S_T1}, s{S_T2}, s{S_CB}\n  s_and_b32 s{S_T1}, s{S_T1}, 1\n  s_mul_i32 s{S_T1}, s{S_T1}, 0x11111111\n  s_xor_b32 s{S_SEQ}, s{S_T1}, {hex(seq_pack(l))}")
elif o.startswith("g4"):
    seqs = {"g4a": "00 01 02 10 03 11 12 13", "g4b": "00 10 01 02 03 11 12 13", "g4c": "00 01 10 02 03 11 12 13", "g4d": "00 01 02 03 10 11 12 13"}
    l = [4 * int(x[0]) + int(x[1]) for x in seqs[o].split()]
    A(f"  s_add_u32 s{S_T1}, s{S_T2}, s{S_CB}\n  s_and_b32 s{S_T1}, s{S_T1}, 3\n  s_mul_i32 s{S_T1}, s{S_T1}, 0x11111111\n  s_xor_b32 s{S_SEQ}, s{S_T1}, {hex(seq_pack(l))}")
def build_srds():
    A(f"""  s_waitcnt lgkmcnt(0)
  s_cmp_eq_u32 s{S_BR}, 0
  s_cselect_b32 s{SRD_X}, s{S_PTR+0}, s{S_PTR+6}
  s_cselect_b32 s{SRD_X+1}, s{S_PTR+1}, s{S_PTR+7}
  s_cselect_b32 s{SRD_W}, s{S_PTR+2}, s{S_PTR+8}
  s_cselect_b32 s{SRD_W+1}, s{S_PTR+3}, s{S_PTR+9}
  s_mov_b32 s{SRD_X+2}, 0x200000
  s_mov_b32 s{SRD_X+3}, 0x20000
  s_mov_b32 s{SRD_W+2}, 0x180000
  s_mov_b32 s{SRD_W+3}, 0x20000""")
def build_srds2():
    A(f"""  s_cmp_eq_u32 s{S_BR}, 0
  s_cselect_b32 s{SRD_WO}, s{S_PTR+4}, s{S_PTR+10}
  s_cselect_b32 s{SRD_WO+1}, s{S_PTR+5}, s{S_PTR+11}
  s_mov_b32 s{SRD_WO+2}, 0x80000
  s_mov_b32 s{SRD_WO+3}, 0x20000
  s_mov_b32 s{SRD_OUT}, s{S_PTR+12}
  s_mov_b32 s{SRD_OUT+1}, s{S_PTR+13}
  s_mov_b32 s{SRD_OUT+2}, 0x400000
  s_mov_b32 s{SRD_OUT+3}, 0x20000
  s_mov_b32 s{SRD_WS}, s{S_WS}
  s_mov_b32 s{SRD_WS+1}, s{S_WS+1}
  s_mov_b32 s{SRD_WS+2}, 0x500000
  s_mov_b32 s{SRD_WS+3}, 0x20000
  s_mov_b32 s{S_DBG}, s{S_PTR+14}
  s_mov_b32 s{S_DBG+1}, s{S_PTR+15}""")
    if NSTAMP:
        A(f"""  s_add_u32 s{S_STB}, s{S_WS}, {STAMP_OFF}
  s_addc_u32 s{S_STB+1}, s{S_WS+1}, 0
  s_mul_i32 s{S_T1}, s2, {8*NSTAMP}
  s_add_u32 s{S_STB}, s{S_STB}, s{S_T1}
  s_addc_u32 s{S_STB+1}, s{S_STB+1}, 0""")
build_srds()
curg = [0]
def dma(vo, srd, sreg, imm, lreg, limm, extra=""):
    if srd in (SRD_X, SRD_W) and args.ldf and curg[0] < args.ldn: extra = " " + args.ldf.replace("_", " ")
    A(f"  s_add_u32 s{S_T1}, s{sreg}, {imm}\n  s_add_u32 m0, s{lreg}, {limm}\n  s_waitcnt vmcnt({args.maxfl-1})\n  buffer_load_dwordx4 v{vo}, s[{srd}:{srd+3}], s{S_T1} offen{extra} lds")
D = args.D
def gsize(g): return 8 if g == 0 else (3 if g == 15 else (6 if g & 1 else 5))
def xops(t, which):
    xl = (t % NXS) * XSLOT
    A(f"  s_lshr_b32 s{S_T0}, s{S_SEQ}, {4*t}\n  s_and_b32 s{S_T0}, s{S_T0}, 7\n  s_lshl_b32 s{S_T0}, s{S_T0}, 7\n  s_add_u32 s{S_T3}, s{S_T0}, s{S_XB}")
    lst = [(p, m) for p in range(2) for m in range(2)]
    for i in which:
        if i < 4:
            p, m = lst[i]
            dma(VX0 if m == 0 else VX1, SRD_X, S_T3, (p + 16 * m) * 1024, L_XL, xl + p * 2048 + m * 1024)
        else:
            A(f"  s_add_u32 s{S_C0}, s{S_T0}, s{S_XH}")
            dma(VXH, SRD_X, S_C0, 0, L_HL, xl)
def issue_group(g):
    curg[0] = g
    t = g >> 1
    if g > 0 and g & 1 == 0: xops(t, [3, 4])
    A(f"""  s_lshr_b32 s{S_T0}, s{S_SEQ}, {4*t}
  s_and_b32 s{S_T0}, s{S_T0}, 7
  s_mul_i32 s{S_T2}, s{S_T0}, 196608
  s_add_u32 s{S_T2}, s{S_T2}, s{S_WB}""")
    wl = (g % NWS) * WSLOT
    for seg in range(3): dma(VW, SRD_W, S_T2, (g & 1) * 32 * 3072 + seg * 1024, L_WL, wl + seg * 4096)
    if g == 0: xops(0, [0, 1, 2, 3, 4])
    elif g & 1 and g < 15: xops(t + 1, [0, 1, 2])
    if g == 2 * args.touch + 1:
        A(f"""  v_lshlrev_b32 v{VTW}, 7, v0
  s_lshl_b32 s{S_T1}, s{S_J}, 14
  s_lshl_b32 s{S_T0}, s{S_WV}, 12
  s_add_u32 s{S_T1}, s{S_T1}, s{S_T0}
  s_mov_b32 exec_hi, 0
  buffer_load_dword v11, v{VTW}, s[{SRD_WO}:{SRD_WO+3}], s{S_T1} offen
  s_mov_b64 exec, -1""")
        return 1
    return 0
XC = lambda i: i * XSLOT + 2048
chunks = [[XC(0), 98304], [114688, XC(1)], [131072, XC(2)], [XC(3), WBASE]]
freeat = [11, 12, 14, 16]
def chunk_sel(bitreg):
    A(f"  s_cmp_eq_u32 s{bitreg}, 0")
    for i in range(4): A(f"  s_mov_b32 s{S_CH+i}, {chunks[i][1]}\n  s_cselect_b32 s{S_CH+i}, {chunks[i][0]}, s{S_CH+i}")
def lsetup():
    build_srds2()
    A(f"  s_and_b32 s{S_T2}, s{S_WV}, 1")
    chunk_sel(S_T2)
    quarters()
    A(f"""  v_lshrrev_b32 v11, 3, v0
  v_and_b32 v12, 7, v0
  v_bfe_u32 v13, v0, 4, 1
  v_lshlrev_b32 v13, 2, v13
  v_xor_b32 v12, v12, v13
  v_lshlrev_b32 v12, 4, v12
  v_lshl_add_u32 v{VWO}, v11, 10, v12
  s_lshl_b32 s{S_A0}, s{S_CB}, 8
  s_lshl_b32 s{S_T0}, s{S_T2}, 7
  s_add_u32 s{S_A0}, s{S_A0}, s{S_T0}
  s_lshr_b32 s{S_T0}, s{S_WV}, 1
  s_lshl_b32 s{S_T1}, s{S_T0}, 16
  s_add_u32 s{S_A0}, s{S_A0}, s{S_T1}
  s_lshl_b32 s{S_T0}, s{S_T0}, 13
  s_add_u32 s{S_CH}, s{S_CH}, s{S_T0}
  s_add_u32 s{S_CH+1}, s{S_CH+1}, s{S_T0}
  s_add_u32 s{S_CH+2}, s{S_CH+2}, s{S_T0}
  s_add_u32 s{S_CH+3}, s{S_CH+3}, s{S_T0}
  s_lshl_b32 s{S_FLG}, s{S_BR}, 7
  s_lshl_b32 s{S_T1}, s{S_RB}, 3
  s_add_u32 s{S_FLG}, s{S_FLG}, s{S_T1}
  s_add_u32 s{S_FLG}, s{S_FLG}, s{S_HG}
  s_lshl_b32 s{S_FLG}, s{S_FLG}, 7
  s_add_u32 s{S_FLG}, s{S_FLG}, {WS_FLG}
  v_mov_b32 v8, 1
  v_mov_b32 v15, 0
  v_and_b32 v{VZ}, 7, v0
  v_lshlrev_b32 v{VZ}, 2, v{VZ}
  v_lshlrev_b32 v6, 7, v0
  v_lshlrev_b32 v7, 4, v0""")
def wo_group(i):
    A(f"  s_lshl_b32 s{S_T0}, s{S_Q+i}, 5\n  s_add_u32 s{S_T2}, s{S_T0}, s{S_A0}")
    for k in range(8): dma(VWO, SRD_WO, S_T2, k * 8192, S_CH + i, k * 1024)
sizes = []
def outstanding_after(kid):
    idx = [i for i, x in enumerate(sizes) if (x[0], x[1]) == kid][0]
    return sum(x[2] for x in sizes[idx + 1:])
def do_group(g):
    e = issue_group(g); sizes.append(("g", g, gsize(g))); sizes.append(("t", g, e))
for g in range(args.D0): do_group(g)
lsetup()
nxt = args.D0
for bq in range(17):
    if bq < 16: A(f"  s_waitcnt vmcnt({min(63, outstanding_after(('g', bq)))})")
    A("  s_barrier")
    while nxt < 16 and nxt <= bq + D - 1 and nxt <= bq + 5 and (nxt <= bq + args.D0 or bq >= args.ramp):
        do_group(nxt); nxt += 1
    for i in range(4):
        if freeat[i] == bq: wo_group(i); sizes.append(("w", i, 8))
stamp(6)
def init_check(tag, v, vz):
    A(f"""  s_mov_b32 s{S_T1}, 0x01010101
L_ic{tag}:
  s_waitcnt vmcnt(0)
  v_cmp_ne_u32 vcc, s{S_T1}, v{v}
  s_nop 3
  s_cmp_eq_u64 vcc, 0
  s_cbranch_scc1 L_id{tag}
{spin(f"L_id{tag}")}
  s_sleep 4
  global_load_dword v{v}, v{vz}, s[{S_DBG}:{S_DBG+1}] sc1
  s_branch L_ic{tag}
L_id{tag}:""")
def poll(tag, voff, sreg, val=1):
    A(f"""L_pl{tag}:
  buffer_load_dword v16, v{voff}, s[{SRD_WS}:{SRD_WS+3}], s{sreg} offen sc1
  s_waitcnt vmcnt(0)
  v_cmp_ne_u32 vcc, {val}, v16
  s_and_b64 exec, exec, vcc
  s_cbranch_execz L_po{tag}
{spin(f"L_po{tag}")}
  s_sleep {args.psleep}
  s_branch L_pl{tag}
L_po{tag}:
  s_mov_b64 exec, -1""")
A("  s_barrier")
A(f"""  s_cmp_lg_u32 s{S_WV}, 0
  s_cbranch_scc1 L_nofl
  s_mov_b64 exec, 1
  buffer_store_dword v8, v15, s[{SRD_WS}:{SRD_WS+3}], s{S_FLG} offen sc1
  s_mov_b64 exec, -1
  s_waitcnt vmcnt({outstanding_after(('w', 1)) + 1})
  s_branch L_fl2
L_nofl:
  s_waitcnt vmcnt({outstanding_after(('w', 1))})
L_fl2:
  s_barrier""")
stamp(7)
A(f"""  s_cmp_lg_u32 s{S_WV}, 0
  s_cbranch_scc1 L_await
  s_lshr_b32 s{S_T1}, s{S_RB2}, 1
  s_lshl_b32 s{S_T1}, s{S_T1}, 10
  s_lshl_b32 s{S_T0}, s{S_BR}, 14
  s_add_u32 s{S_T1}, s{S_T1}, s{S_T0}
  s_add_u32 s{S_T1}, s{S_T1}, {WS_FLG}
  s_mov_b64 exec, 0xff""")
poll("R", 6, S_T1)
A(f"""L_await:
  s_lshl_b32 s{S_T3}, s{S_RB2}, 16
  s_lshl_b32 s{S_T0}, s{S_WV}, 14
  s_add_u32 s{S_T3}, s{S_T3}, s{S_T0}
  s_and_b32 s{S_T2}, s{S_WV}, 1
  s_lshl_b32 s{S_T2}, s{S_T2}, 14
  s_lshr_b32 s{S_T0}, s{S_WV}, 1
  s_mul_i32 s{S_T0}, s{S_T0}, {ORH}
  s_add_u32 s{S_T2}, s{S_T2}, s{S_T0}
  s_waitcnt vmcnt(0)
  s_barrier""")
def lfin():
    if NSTAMP:
        A(f"  s_cmp_lg_u32 s{S_WV}, 0\n  s_cbranch_scc1 L_end")
        stamp_flush([6, 7, 8], 12)
    A("  s_endpgm")
A(f"  s_cmp_eq_u32 s{S_BR}, 0\n  s_cbranch_scc1 L_oload")
A(f"""  s_mov_b32 s{S_T1}, {WS_FLG + 128*128}
  s_mov_b32 s{S_T2}, {WS_FLG + 192*128}
  v_lshrrev_b32 v11, 2, v0
  v_lshlrev_b32 v11, 4, v11
  v_bfe_u32 v12, v0, 1, 1
  v_lshl_add_u32 v11, v12, 8, v11
  v_and_b32 v12, 1, v0
  v_lshl_add_u32 v11, v12, 3, v11
  s_lshl_b32 s{S_A0}, s{S_WV}, 3
  s_mul_i32 s{S_A1}, s{S_A0}, {KVH}
  s_add_u32 s{S_A1}, s{S_A1}, {WS_KV}
  v_bfe_u32 v12, v0, 2, 3
  v_mul_u32_u24 v13, {KVH}, v12
  v_and_b32 v14, 3, v0
  v_lshl_add_u32 v13, v14, 4, v13
  v_add_u32 v13, 1024, v13
  v_add_u32 v12, s{S_A0}, v12              ; head
  v_mul_u32_u24 v20, {KVS}, v12
  v_lshl_add_u32 v20, v14, 3, v20
  v_add_u32 v20, {KV0 + 512}, v20
  v_add_u32 v21, {KV1 - KV0}, v20
  v_cmp_lt_u32 vcc, 10, v12
  s_nop 1
  v_cndmask_b32 v20, v20, v21, vcc""")
A(f"  v_mul_u32_u24 v21, {KVH}, v0\n  v_add_u32 v21, 1088, v21\n  s_mov_b64 exec, 0xff")
poll("K", 21, S_A1, 16)
stamp(8)
for h in range(8):
    r = 24 + h * 4
    A(f"  s_add_u32 s{S_T1}, s{S_A1}, {h*KVH}\n  buffer_load_dwordx4 v[{r}:{r+3}], v7, s[{SRD_WS}:{SRD_WS+3}], s{S_T1} offen {args.cl}")
A(f"  buffer_load_dwordx4 v[56:59], v13, s[{SRD_WS}:{SRD_WS+3}], s{S_A1} offen {args.cl}")
for h in range(8):
    r = 24 + h * 4
    A(f"""  s_add_u32 s{S_T0}, s{S_A0}, {h}
  s_mul_i32 s{S_T1}, s{S_T0}, {KVS}
  s_cmp_lt_u32 s{S_T0}, 11
  s_cselect_b32 s{S_T0}, 0, {KV1-KV0}
  s_add_u32 s{S_T1}, s{S_T1}, s{S_T0}
  s_add_u32 s{S_T1}, s{S_T1}, {KV0}
  v_add_u32 v{60+h}, s{S_T1}, v11""")
for h in range(8):
    r = 24 + h * 4
    A(f"  s_waitcnt vmcnt({8-h})")
    cvt(r, r)
    A(f"  ds_write_b64 v{60+h}, v[{r}:{r+1}]")
A("  s_waitcnt vmcnt(0)")
cvt(56, 56)
A("  ds_write_b64 v20, v[56:57]\n  s_waitcnt lgkmcnt(0)\n  s_barrier")
if NSTAMP: A("  s_barrier")
lfin()
A("L_oload:")
stamp(8)
def oloads(i):
    A(f"  s_add_u32 s{S_A0}, s{S_T3}, s{S_Q+i}\n  s_add_u32 s{S_A1}, s{S_T2}, s{S_Q+i}")
    for h in range(4):
        A(f"  s_add_u32 s{S_T1}, s{S_A0}, {h*1024}\n  s_add_u32 m0, s{S_A1}, {h*1024}\n  s_nop 0\n  buffer_load_dwordx4 v7, s[{SRD_WS}:{SRD_WS+3}], s{S_T1} offen {args.cl} lds")
oloads(0)
A("  s_waitcnt vmcnt(0)")
oloads(1)
A("  s_barrier")
oloads(2); oloads(3)
for i in (1, 2, 3): A(f"  s_waitcnt vmcnt({4*(3-i)})\n  s_barrier")
lfin()

V_XA = 1; V_WA = 2; V_XA1 = 3; V_ONE = 4; V_OA = 5; V_X0C = 6; V_X1C = 13; V_WC = 14; V_IFA = 15
V_IF = 160; V_DUM = 161; V_NC = 162; V_ONESB = 164
A("L_comp:")
A(f"  s_and_b32 s{S_HH}, s{S_WV}, 3\n  s_lshr_b32 s{S_RH}, s{S_WV}, 2")
if args.codepf:
    A(f"""  s_getpc_b64 s[{S_M0}:{S_M0+1}]
L_pcref:
  s_sub_u32 s{S_M0}, s{S_M0}, L_pcref-{NAME}
  s_subb_u32 s{S_M0+1}, s{S_M0+1}, 0
  s_lshl_b32 s{S_T0}, s{S_J}, 3
  s_add_u32 s{S_T0}, s{S_T0}, s{S_WV}
  s_lshl_b32 s{S_T0}, s{S_T0}, 7
  s_min_u32 s{S_T0}, s{S_T0}, (L_codeend-{NAME}-4)&0xfffffffc
  v_mov_b32 v7, s{S_T0}
  s_mov_b64 exec, 1
  global_load_dword v{V_DUM}, v7, s[{S_M0}:{S_M0+1}]
  s_mov_b64 exec, -1""")
A(f"""  v_and_b32 v7, 15, v0
  v_lshrrev_b32 v8, 4, v0
  v_lshrrev_b32 v9, 1, v7
  v_xor_b32 v9, v9, v8
  v_lshlrev_b32 v9, 4, v9
  v_lshl_add_u32 v{V_XA}, v7, 7, v9
  v_lshrrev_b32 v9, 2, v7
  v_lshl_add_u32 v9, v8, 3, v9
  v_lshrrev_b32 v10, 1, v9
  v_and_b32 v10, 1, v10
  v_and_b32 v11, 1, v8
  v_lshl_or_b32 v10, v11, 1, v10
  v_xor_b32 v10, s{S_HH}, v10
  v_lshlrev_b32 v10, 5, v10
  v_lshl_add_u32 v10, v9, 7, v10
  v_and_b32 v11, 3, v7
  v_lshl_add_u32 v{V_WA}, v11, 3, v10
  v_add_u32 v{V_WA}, {WBASE}, v{V_WA}
  v_mov_b32 v{V_ONE}, 1
  s_lshl_b32 s{S_T0}, s{S_HG}, 2
  s_add_u32 s{S_T0}, s{S_T0}, s{S_HH}
  s_lshl_b32 s{S_OB}, s{S_T0}, 9
  s_lshl_b32 s{S_T1}, s{S_RB}, 17
  s_add_u32 s{S_OB}, s{S_OB}, s{S_T1}
  s_lshl_b32 s{S_T1}, s{S_BR}, 21
  s_add_u32 s{S_OB}, s{S_OB}, s{S_T1}
  s_mul_i32 s{S_C3}, s{S_T0}, {KVH}
  s_add_u32 s{S_C3}, s{S_C3}, {WS_KV}
  s_lshl_b32 s{S_FLG}, s{S_BR}, 7
  s_lshl_b32 s{S_T1}, s{S_RB}, 3
  s_add_u32 s{S_FLG}, s{S_FLG}, s{S_T1}
  s_add_u32 s{S_FLG}, s{S_FLG}, s{S_HG}
  s_lshl_b32 s{S_FLG}, s{S_FLG}, 7
  s_add_u32 s{S_FLG}, s{S_FLG}, {WS_FLG}
  s_lshl_b32 s{S_T1}, s{S_WV}, 2
  s_add_u32 s{S_FLG}, s{S_FLG}, s{S_T1}
  v_and_b32 v9, 1, v8
  v_lshlrev_b32 v9, 14, v9
  v_lshrrev_b32 v10, 1, v8
  v_lshl_add_u32 v9, v10, 8, v9
  v_lshl_add_u32 v{V_OA}, v7, 4, v9
  v_and_b32 v{V_IFA}, 7, v0
  v_lshlrev_b32 v{V_IFA}, 2, v{V_IFA}
  s_mov_b32 s{S_IT}, 0
  s_mov_b32 s{S_XO}, 0
  s_mov_b32 s{S_WO}, 0
  v_mov_b32 v{V_WC}, v{V_WA}
  s_waitcnt lgkmcnt(0)""")
build_srds2()
A(f"  s_cmp_eq_u32 s{S_BR}, 0\n  s_cbranch_scc0 L_compB")

wadv_c = [f"  s_add_u32 s{S_WO}, s{S_WO}, {WSLOT}", f"  s_cmp_eq_u32 s{S_WO}, {WSLOT*NWS}", f"  s_cselect_b32 s{S_WO}, 0, s{S_WO}", f"  v_add_u32 v{V_WC}, s{S_WO}, v{V_WA}"]
xadv_c = [f"  s_add_u32 s{S_XO}, s{S_XO}, {XSLOT}", f"  s_cmp_eq_u32 s{S_XO}, {XSLOT*NXS}", f"  s_cselect_b32 s{S_XO}, 0, s{S_XO}",
          f"  v_add_u32 v{V_X0C}, s{S_XO}, v{V_XA}", f"  v_add_u32 v{V_X1C}, s{S_XO}, v{V_XA1}"]
def mainloop(tag, reads, mfmas, extra_adv, tail, bpos):
    A("  s_barrier")
    stamp(1)
    for x in reads(0, 0): A(x)
    for kk in range(2):
        A(f"L_s{kk}{tag}:\n  s_waitcnt lgkmcnt(0)")
        m = mfmas(kk)
        adv = list(wadv_c) + (xadv_c + extra_adv if kk == 1 else [])
        r = reads(1 - kk, 1 - kk)
        ai = 0
        for i in range(bpos):
            A(m[i])
            want = min(len(adv), ((i + 1) * len(adv) + bpos - 2) // max(1, bpos - 1))
            while ai < want: A(adv[ai]); ai += 1
        A("  s_barrier")
        ri = 0; nm = len(m) - bpos
        for i, x in enumerate(m[bpos:]):
            want = min(len(r), ((i + 1) * len(r) + nm - 3) // max(1, nm - 2))
            while ri < want: A(r[ri]); ri += 1
            A(x)
        while ri < len(r): A(r[ri]); ri += 1
    tail()
    A(f"  s_add_u32 s{S_IT}, s{S_IT}, 1\n  s_cmp_lt_u32 s{S_IT}, 8\n  s_cbranch_scc1 L_s0{tag}")
    A(f"  global_load_dword v{V_IF}, v{V_IFA}, s[{S_DBG}:{S_DBG+1}] sc1")
    stamp(2)
    A("  s_waitcnt lgkmcnt(0)")
def trr(d, seg): return [f"  ds_read_b64_tr_b16 v[{d}:{d+1}], v{V_WC} offset:{seg*4096}", f"  ds_read_b64_tr_b16 v[{d+2}:{d+3}], v{V_WC} offset:{seg*4096 + 512}"]
def mm(acc, a, b): return f"  v_mfma_f32_16x16x32_bf16 v[{acc}:{acc+3}], v[{a}:{a+3}], v[{b}:{b+3}], v[{acc}:{acc+3}]"
def store_frags(src, nt, dst):
    for t in range(nt):
        d = dst + 4 * t
        cvt(d, src(2 * t)); cvt(d + 2, src(2 * t + 1))
    A("  s_nop 1")
    for t in range(nt):
        d = dst + 4 * t
        A(f"  v_permlane16_swap_b32 v{d}, v{d+2}\n  v_permlane16_swap_b32 v{d+1}, v{d+3}")
    for t in range(nt):
        d = dst + 4 * t
        A(f"  s_add_u32 s{S_T0}, s{S_OB}, {t*32768}")
        A(f"  buffer_store_dwordx4 v[{d}:{d+3}], v{V_OA}, s[{SRD_WS}:{SRD_WS+3}], s{S_T0} offen sc1")

ACC = 16
AQ = lambda b: ACC + 4 * b
AK = lambda b: ACC + 16 + 4 * b
AV = lambda b: ACC + 36 + 4 * b
FX = lambda buf, b: 72 + 32 * buf + 4 * b
FW = lambda buf, seg: 72 + 32 * buf + 20 + 4 * seg
V_HA = 136; V_H0C = 137; V_H1C = 138
MK = 140; MK0 = 144; V_HI = 148; V_PV = 149; V_ONES = 150
A(f"""  v_mov_b32 v{V_HA}, v{V_XA}
  s_cmp_eq_u32 s{S_RH}, 0
  s_cbranch_scc1 L_h0ok
  v_or_b32 v10, 8, v7
  v_lshrrev_b32 v9, 1, v10
  v_xor_b32 v9, v9, v8
  v_lshlrev_b32 v9, 4, v9
  v_lshl_add_u32 v9, v10, 7, v9
  v_lshrrev_b32 v10, 3, v7
  v_lshlrev_b32 v10, 11, v10
  v_add_u32 v9, v9, v10
  v_add_u32 v{V_HA}, {2048*3}, v9
L_h0ok:
  s_lshl_b32 s{S_T0}, s{S_RH}, 13
  s_add_u32 s{S_T0}, s{S_T0}, 2048
  v_add_u32 v{V_XA}, s{S_T0}, v{V_XA}
  v_xor_b32 v{V_XA1}, 64, v{V_XA}
  v_mov_b32 v{V_X0C}, v{V_XA}
  v_mov_b32 v{V_X1C}, v{V_XA1}
  v_mov_b32 v{V_H0C}, v{V_HA}
  v_xor_b32 v{V_H1C}, 64, v{V_HA}
  s_lshl_b32 s{S_T1}, s{S_RH}, 16
  s_add_u32 s{S_OB}, s{S_OB}, s{S_T1}""")
for r in range(ACC, ACC + 56): A(f"  v_mov_b32 v{r}, 0")
A(f"""  v_lshlrev_b32 v9, 2, v8
  v_sub_u32 v9, v7, v9
  s_mov_b32 s{S_C0}, 0xf149f2ca
  v_mov_b32 v10, s{S_C0}""")
for r in range(4):
    A(f"""  v_subrev_u32 v11, {r}, v9
  v_and_b32 v12, 15, v11
  v_cmp_gt_u32 vcc, 8, v12
  s_nop 1
  v_cndmask_b32 v{MK+r}, v10, 0, vcc
  v_cmp_gt_u32 vcc, 8, v11
  s_nop 1
  v_cndmask_b32 v{MK0+r}, v10, 0, vcc""")
A(f"""  s_or_b32 s{S_T0}, s{S_RB}, s{S_RH}
  s_cmp_eq_u32 s{S_T0}, 0
  s_cbranch_scc1 L_m0
  v_mov_b32 v{MK0}, v{MK}
  v_mov_b32 v{MK0+1}, v{MK+1}
  v_mov_b32 v{MK0+2}, v{MK+2}
  v_mov_b32 v{MK0+3}, v{MK+3}
L_m0:
  v_cmp_lt_u32 s[{S_M0}:{S_M0+1}], 7, v7
  v_cmp_lt_u32 vcc, 1, v8
  s_nop 1
  v_cndmask_b32 v{V_HI}, 0, -1, s[{S_M0}:{S_M0+1}]
  s_andn2_b64 s[{S_M1}:{S_M1+1}], vcc, s[{S_M0}:{S_M0+1}]
  v_mov_b32 v{V_ONES}, 0x3f803f80
  v_mov_b32 v{V_ONES+1}, 0x3f803f80
  v_cndmask_b32 v{V_PV}, 0, -1, s[{S_M1}:{S_M1+1}]
  v_mov_b32 v{V_ONES+2}, 0x3f803f80
  v_mov_b32 v{V_ONES+3}, 0x3f803f80
  s_mov_b32 s{S_C0}, 0x3eb8aa3b""")
def readsA(buf, kk):
    va = V_X0C if kk == 0 else V_X1C
    r = trr(FW(buf, 1), 1) + trr(FW(buf, 2), 2) + trr(FW(buf, 0), 0)
    for b in range(4): r.append(f"  ds_read_b128 v[{FX(buf,b)}:{FX(buf,b)+3}], v{va} offset:{b*2048}")
    r.append(f"  ds_read_b128 v[{FX(buf,4)}:{FX(buf,4)+3}], v{V_H0C if kk == 0 else V_H1C}")
    return r
def mfmasA(buf):
    m = []
    for b in range(4):
        x = FX(buf, b)
        m += [mm(AK(b), FW(buf, 1), x), mm(AV(b), x, FW(buf, 2)), mm(AQ(b), FW(buf, 0), x)]
    x = FX(buf, 4)
    return m + [mm(AK(4), FW(buf, 1), x), mm(AV(4), x, FW(buf, 2))]
mainloop("A", readsA, mfmasA, [f"  v_add_u32 v{V_H0C}, s{S_XO}, v{V_HA}", f"  v_xor_b32 v{V_H1C}, 64, v{V_H0C}"], lambda: None, args.bpos)
K4 = lambda b: 72 + 4 * b
Q4 = lambda b: 88 + 4 * b
VP = lambda p, i: 104 + 6 * p + 2 * i
KH = 116; KH2 = 118; TT = 120
for b in range(4):
    cvt(K4(b), AK(b))
    cvt(VP(b & 1, (b >> 1) + 1), AV(b))
    tt = TT + 2 * (b & 1)
    cvt(tt, AQ(b))
    A(f"  v_and_b32 v{Q4(b)}, v{tt}, v{V_HI}\n  v_and_b32 v{Q4(b)+1}, v{tt+1}, v{V_HI}")
    A(f"  v_xor_b32 v{Q4(b)+2}, v{tt}, v{Q4(b)}\n  v_xor_b32 v{Q4(b)+3}, v{tt+1}, v{Q4(b)+1}")
cvt(KH, AK(4))
cvt(VP(1, 0), AV(4))
A(f"""  s_nop 1
  v_mov_b32_dpp v{KH2}, v{KH} row_ror:8 row_mask:0xf bank_mask:0xf
  v_mov_b32_dpp v{KH2+1}, v{KH+1} row_ror:8 row_mask:0xf bank_mask:0xf
  v_mov_b32 v{VP(0,0)}, v{VP(1,0)}
  v_mov_b32 v{VP(0,0)+1}, v{VP(1,0)+1}
  v_mov_b32 v{TT}, v{VP(1,0)}
  v_mov_b32 v{TT+1}, v{VP(1,0)+1}
  s_nop 1
  v_permlane32_swap_b32 v{VP(0,0)}, v{TT}
  v_permlane32_swap_b32 v{VP(0,0)+1}, v{TT+1}""")
for b in range(4):
    t, p = b >> 1, b & 1
    prev = (KH2 if p == 0 else KH) if t == 0 else K4(p)
    A(f"  v_cndmask_b32 v{K4(b)+2}, v{K4(b)}, v{prev}, s[{S_M0}:{S_M0+1}]\n  v_cndmask_b32 v{K4(b)+3}, v{K4(b)+1}, v{prev+1}, s[{S_M0}:{S_M0+1}]")
A("  s_nop 1")
SS = lambda b: ACC + 4 * b
for b in range(4):
    mk = MK0 if b < 2 else MK
    A(f"  v_mfma_f32_16x16x32_bf16 v[{SS(b)}:{SS(b)+3}], v[{K4(b)}:{K4(b)+3}], v[{Q4(b)}:{Q4(b)+3}], v[{mk}:{mk+3}]")
MX = lambda b: 32 + b
MT = 36
A("  s_nop 7")
for b in range(4): A(f"  v_max3_f32 v{MX(b)}, v{SS(b)}, v{SS(b)+1}, v{SS(b)+2}")
for b in range(4): A(f"  v_max_f32 v{MX(b)}, v{MX(b)}, v{SS(b)+3}")
a, b_, c, d = [MX(i) for i in range(4)]
A(f"""  s_nop 0
  v_permlane32_swap_b32 v{a}, v{b_}
  v_permlane32_swap_b32 v{c}, v{d}
  v_max_f32 v{a}, v{a}, v{b_}
  v_max_f32 v{c}, v{c}, v{d}
  s_nop 1
  v_permlane16_swap_b32 v{a}, v{c}
  v_max_f32 v{a}, v{a}, v{c}
  v_mul_f32 v{a}, s{S_C0}, v{a}
  v_mov_b32 v{c}, v{a}
  s_nop 1
  v_permlane16_swap_b32 v{a}, v{c}
  v_mov_b32 v{b_}, v{a}
  v_mov_b32 v{d}, v{c}
  s_nop 0
  v_permlane32_swap_b32 v{a}, v{b_}
  v_permlane32_swap_b32 v{c}, v{d}""")
for b in range(4):
    for r in range(4): A(f"  v_fma_f32 v{SS(b)+r}, v{SS(b)+r}, s{S_C0}, -v{MX(b)}")
for b in range(4):
    for r in range(4): A(f"  v_exp_f32 v{SS(b)+r}, v{SS(b)+r}")
P4 = lambda b: 40 + 4 * b
for b in range(4):
    tt = MT + 2 * (b & 1)
    cvt(tt, SS(b))
    A(f"  v_and_b32 v{P4(b)}, v{tt}, v{V_PV}\n  v_and_b32 v{P4(b)+1}, v{tt+1}, v{V_PV}")
    A(f"  v_xor_b32 v{P4(b)+2}, v{tt}, v{P4(b)}\n  v_xor_b32 v{P4(b)+3}, v{tt+1}, v{P4(b)+1}")
A("  s_nop 1")
OO = lambda b: 72 + 4 * b
SM = lambda b: 88 + 4 * b
for b in range(4):
    t, p = b >> 1, b & 1
    A(f"  v_mfma_f32_16x16x32_bf16 v[{SM(b)}:{SM(b)+3}], v[{V_ONES}:{V_ONES+3}], v[{P4(b)}:{P4(b)+3}], 0")
    A(f"  v_mfma_f32_16x16x32_bf16 v[{OO(b)}:{OO(b)+3}], v[{VP(p,t)}:{VP(p,t)+3}], v[{P4(b)}:{P4(b)+3}], 0")
A("  s_nop 4")
for b in range(4): A(f"  v_rcp_f32 v{SM(b)}, v{SM(b)}")
for b in range(4):
    for r in range(4): A(f"  v_mul_f32 v{OO(b)+r}, v{OO(b)+r}, v{SM(b)}")
store_frags(OO, 2, ACC)
A("  s_branch L_phase2")

A("L_compB:")
A(f"""  s_mov_b32 s{S_C0}, 0x358637bd
  s_mov_b32 s{S_C1}, 0x3fb8aa3b
  s_mov_b32 s{S_C2}, {hex(f2u(-1e-6 * 1.4426950408889634))}
  v_mov_b32 v{V_NC}, s{S_C2}
  v_add_u32 v{V_XA}, 2048, v{V_XA}
  v_xor_b32 v{V_XA1}, 64, v{V_XA}
  v_mov_b32 v{V_X0C}, v{V_XA}
  v_mov_b32 v{V_X1C}, v{V_XA1}""")
for r in range(16, 48): A(f"  v_mov_b32 v{r}, s{S_C0}")
A(f"  s_cmp_lg_u32 s{S_RH}, 0\n  s_cbranch_scc1 L_compQ")
A(f"""  s_cmp_lg_u32 s{S_RB}, 0
  s_cbranch_scc1 L_nozero
  v_mov_b32 v8, 0
  v_mov_b32 v9, 0
  v_mov_b32 v10, 0
  v_mov_b32 v11, 0
  v_lshlrev_b32 v7, 4, v0
  buffer_store_dwordx4 v[8:11], v7, s[{SRD_WS}:{SRD_WS+3}], s{S_C3} offen sc1
  s_mov_b64 exec, 0xff
  buffer_store_dwordx4 v[8:11], v7, s[{SRD_WS}:{SRD_WS+3}], s{S_C3} offen offset:1024 sc1
  s_mov_b64 exec, -1
  s_lshl_b32 s{S_T0}, s{S_HG}, 12
  s_lshl_b32 s{S_T1}, s{S_HH}, 10
  s_add_u32 s{S_T0}, s{S_T0}, s{S_T1}
  s_add_u32 s{S_T0}, s{S_T0}, {WS_FLG}
  buffer_store_dwordx4 v[8:11], v7, s[{SRD_WS}:{SRD_WS+3}], s{S_T0} offen sc1
L_nozero:""")
BK = lambda b: 16 + 4 * b
BV = lambda b: 48 + 4 * b
GX = lambda buf, b: 80 + 40 * buf + 4 * b
GW = lambda buf, i: 80 + 40 * buf + 32 + 4 * i
for r in range(48, 80): A(f"  v_mov_b32 v{r}, 0")
for r in range(4): A(f"  v_mov_b32 v{V_ONESB+r}, 0x3f803f80")
def xreads(buf, kk):
    va = V_X0C if kk == 0 else V_X1C
    return [f"  ds_read_b128 v[{GX(buf,b)}:{GX(buf,b)+3}], v{va} offset:{b*2048}" for b in range(8)]
def readsKV(buf, kk): return trr(GW(buf, 0), 1) + trr(GW(buf, 1), 2) + xreads(buf, kk)
def mfmasKV(buf):
    m = []
    for b in range(8): m += [mm(BK(b), GX(buf, b), GW(buf, 0)), mm(BV(b), GX(buf, b), GW(buf, 1))]
    return m
def ack():
    A(f"""  s_or_b32 s{S_T0}, s{S_IT}, s{S_RB}
  s_cmp_lg_u32 s{S_T0}, 0
  s_cbranch_scc1 L_noack
  s_waitcnt vmcnt(0)
  s_lshl_b32 s{S_T0}, s{S_HG}, 2
  s_add_u32 s{S_T0}, s{S_T0}, s{S_HH}
  v_mov_b32 v11, s{S_T0}
  s_mov_b64 exec, 1
  global_store_byte v11, v{V_ONE}, s[{S_DBG}:{S_DBG+1}] sc1
  s_mov_b64 exec, -1
L_noack:""")
mainloop("K", readsKV, mfmasKV, [], ack, args.bpos)
PK = lambda b: 80 + 2 * b
VV = lambda b: 96 + 2 * b
ET = 112
def phi(acc, n, et):
    for i in range(n): A(f"  v_fma_f32 v{et+i}, v{acc+i}, s{S_C1}, v{V_NC}")
    for i in range(n): A(f"  v_exp_f32 v{et+i}, v{et+i} clamp")
    for i in range(n): A(f"  v_max_f32 v{acc+i}, s{S_C0}, v{acc+i}")
    for i in range(n): A(f"  v_add_f32 v{acc+i}, v{acc+i}, v{et+i}")
for b in range(8): cvt(VV(b), BV(b))
phi(BK(0), 32, ET)
for b in range(8): cvt(PK(b), BK(b))
KVA = 144; ZA = 148
A("  s_nop 1")
for i in range(4):
    c = "0" if i == 0 else f"v[{KVA}:{KVA+3}]"
    A(f"  v_mfma_f32_16x16x32_bf16 v[{KVA}:{KVA+3}], v[{VV(2*i)}:{VV(2*i)+3}], v[{PK(2*i)}:{PK(2*i)+3}], {c}")
    c = "0" if i == 0 else f"v[{ZA}:{ZA+3}]"
    A(f"  v_mfma_f32_16x16x32_bf16 v[{ZA}:{ZA+3}], v[{V_ONESB}:{V_ONESB+3}], v[{PK(2*i)}:{PK(2*i)+3}], {c}")
A("""  v_and_b32 v7, 15, v0
  v_lshlrev_b32 v7, 2, v7
  v_lshrrev_b32 v8, 5, v0
  v_lshl_add_u32 v7, v8, 8, v7
  v_bfe_u32 v8, v0, 4, 1
  v_lshl_add_u32 v7, v8, 9, v7""")
init_check("B", V_IF, V_IFA)
A("  s_nop 2")
for r in range(4):
    A(f"  buffer_atomic_add_f32 v{KVA+r}, v7, s[{SRD_WS}:{SRD_WS+3}], s{S_C3} offen offset:{64*r}")
A(f"  s_mov_b64 exec, 0xffff\n  buffer_atomic_add_f32 v{ZA}, v7, s[{SRD_WS}:{SRD_WS+3}], s{S_C3} offen offset:1024\n  s_mov_b64 exec, -1")
A(f"  v_mov_b32 v8, 0\n  s_waitcnt vmcnt(0)\n  s_mov_b64 exec, 1\n  buffer_atomic_add v{V_ONE}, v8, s[{SRD_WS}:{SRD_WS+3}], s{S_C3} offen offset:1088\n  s_mov_b64 exec, -1")
A("  s_branch L_phase2")
A("L_compQ:")
def readsQ(buf, kk): return trr(GW(buf, 0), 0) + xreads(buf, kk)
def mfmasQ(buf): return [mm(BK(b), GW(buf, 0), GX(buf, b)) for b in range(8)]
mainloop("Q", readsQ, mfmasQ, [], lambda: None, min(args.bpos, 2))
A("  s_nop 4")
phi(BK(0), 32, ET)
store_frags(BK, 4, 16)

A("L_phase2:")
stamp(3)
A(f"  s_lshr_b32 s{S_T2}, s{S_HH}, 1")
chunk_sel(S_T2)
quarters()
A(f"""  v_and_b32 v11, 15, v0
  v_lshrrev_b32 v12, 4, v0
  v_lshrrev_b32 v13, 2, v11
  v_lshl_add_u32 v13, v12, 3, v13
  v_and_b32 v14, 3, v11
  v_lshlrev_b32 v14, 4, v14
  v_lshl_add_u32 v14, v13, 7, v14
  v_bfe_u32 v10, v13, 1, 1
  s_and_b32 s{S_T0}, s{S_HH}, 1
  v_xor_b32 v10, s{S_T0}, v10
  v_lshl_add_u32 v6, v10, 6, v14
  v_add_u32 v2, s{S_CH}, v6
  v_add_u32 v3, s{S_CH+1}, v6
  v_lshlrev_b32 v11, 12, v11
  v_lshl_add_u32 v1, v12, 4, v11
  s_lshl_b32 s{S_C2}, s{S_RB2}, 17
  s_lshl_b32 s{S_T0}, s{S_RH}, 16
  s_add_u32 s{S_C2}, s{S_C2}, s{S_T0}
  s_lshl_b32 s{S_T0}, s{S_BR}, 10
  s_add_u32 s{S_C2}, s{S_C2}, s{S_T0}
  s_lshl_b32 s{S_T0}, s{S_CB}, 8
  s_add_u32 s{S_C2}, s{S_C2}, s{S_T0}
  s_lshl_b32 s{S_T0}, s{S_HH}, 6
  s_add_u32 s{S_C2}, s{S_C2}, s{S_T0}
  s_mul_i32 s{S_C3}, s{S_RH}, {ORH}""")
init_check("P", V_IF, V_IFA)
stamp(4)
A("  s_barrier\n  s_barrier")
WF = lambda ks, c: 104 + (ks % 8) * 8 + c * 4
def wo_reads(i, va):
    for k in range(4):
        for c in range(2):
            d = WF(4 * i + k, c)
            A(f"  ds_read_b64_tr_b16 v[{d}:{d+1}], v{va} offset:{k*4096 + 8*c}\n  ds_read_b64_tr_b16 v[{d+2}:{d+3}], v{va} offset:{k*4096 + 8*c + 512}")
wo_reads(0, 2); wo_reads(1, 3)
A(f"""  v_lshlrev_b32 v5, 4, v0
  v_add_u32 v5, s{S_C3}, v5
  v_and_b32 v11, 31, v0
  v_lshrrev_b32 v12, 5, v0
  v_lshrrev_b32 v13, 4, v11
  v_lshlrev_b32 v13, 14, v13
  v_lshl_add_u32 v13, v12, 8, v13
  v_and_b32 v14, 15, v11
  v_lshl_add_u32 v7, v14, 4, v13
  v_lshlrev_b32 v13, 4, v14
  v_lshl_add_u32 v13, v12, 8, v13
  v_lshlrev_b32 v10, 4, v12
  v_add_u32 v10, 512, v10
  v_cmp_lt_u32 vcc, 15, v11
  s_nop 1
  v_cndmask_b32 v4, v13, v10, vcc
  s_lshl_b32 s{S_C1}, s{S_RB2}, 16
  s_add_u32 s{S_C1}, s{S_C1}, 0x200000
  s_mov_b32 s{S_C0}, 0x358637bd
  s_waitcnt lgkmcnt(0)""")
stamp(5)
A("  s_barrier")
OA = lambda b, c: 16 + (b * 2 + c) * 4
OF = lambda k, b: 40 + (k % 8) * 8 + 4 * b
def gemm_all(bars):
    q = []
    def rd_o(k):
        i, h = k >> 2, k & 3
        for b in range(2):
            A(f"  ds_read_b128 v[{OF(k,b)}:{OF(k,b)+3}], v{8+i} offset:{b*16384 + h*1024}"); q.append(("o", k))
    def rd_w(k):
        i, h = k >> 2, k & 3
        for c in range(2):
            d = WF(k, c)
            A(f"  ds_read_b64_tr_b16 v[{d}:{d+1}], v{i} offset:{h*4096 + 8*c}"); q.append(("w", k))
            A(f"  ds_read_b64_tr_b16 v[{d+2}:{d+3}], v{i} offset:{h*4096 + 8*c + 512}"); q.append(("w", k))
    if bars: A("  s_barrier"); stamp(9)
    for k in range(4): rd_o(k)
    for k in range(16):
        need = [j for j, t in enumerate(q) if t[1] <= k]
        if need:
            n = len(q) - 1 - need[-1]
            A(f"  s_waitcnt lgkmcnt({min(n, 15)})")
            del q[:need[-1] + 1]
        ms = []
        for b in range(2):
            for c in range(2):
                acc = OA(b, c); wf = WF(k, c); d = OF(k, b)
                cin = "0" if k == 0 else f"v[{acc}:{acc+3}]"
                ms.append(f"  v_mfma_f32_16x16x32_bf16 v[{acc}:{acc+3}], v[{wf}:{wf+3}], v[{d}:{d+3}], {cin}")
        A(ms[0]); A(ms[1])
        kn = k + 4 if not bars else None
        if bars:
            if k % 4 == 1 and k + 3 < 16:
                A("  s_barrier")
                for kk in range(k + 3, k + 5): rd_o(kk)
            elif k % 4 == 2 and k + 4 < 16:
                for kk in range(k + 4, k + 6): rd_o(kk)
        elif k + 4 < 16: rd_o(k + 4)
        A(ms[2]); A(ms[3])
        if k < 8: rd_w(k + 8)
A(f"  v_add_u32 v2, s{S_CH+2}, v6\n  v_add_u32 v3, s{S_CH+3}, v6")
for i in range(4): A(f"  v_add_u32 v{8+i}, s{S_Q+i}, v5")
A(f"  s_cmp_lg_u32 s{S_BR}, 0\n  s_cbranch_scc1 L_p2B")
gemm_all(True)
A("  s_branch L_fin")
A("L_p2B:")
PQ = lambda i, rg: 40 + (i * 2 + rg) * 4
A(f"""  s_lshr_b32 s{S_A0}, s{S_WV}, 1
  s_lshl_b32 s{S_A0}, s{S_A0}, 10
  s_and_b32 s{S_T0}, s{S_WV}, 1
  s_lshl_b32 s{S_T0}, s{S_T0}, 9
  s_add_u32 s{S_A0}, s{S_A0}, s{S_T0}""")
for i in range(4):
    A(f"  s_add_u32 s{S_T2}, s{S_A0}, {i*4096}\n  s_add_u32 s{S_T2}, s{S_T2}, s{S_C1}\n  s_add_u32 s{S_T3}, s{S_T2}, 32768")
    for rg in range(2):
        d = PQ(i, rg)
        A(f"  buffer_load_dwordx4 v[{d}:{d+3}], v7, s[{SRD_WS}:{SRD_WS+3}], s{S_T2 if rg == 0 else S_T3} offen {args.cl}")
for i in range(4):
    A(f"""  s_add_u32 s{S_T0}, s{S_WV}, {8*i}
  s_mul_i32 s{S_T1}, s{S_T0}, {KVS}
  s_cmp_lt_u32 s{S_T0}, 11
  s_cselect_b32 s{S_T0}, 0, {KV1-KV0}
  s_add_u32 s{S_T1}, s{S_T1}, s{S_T0}
  s_add_u32 s{S_T1}, s{S_T1}, {KV0}
  v_add_u32 v{12+i}, s{S_T1}, v4""")
A(f"  v_add_u32 v32, s{S_A0}, v7\n  v_add_u32 v33, {ORH}, v32\n  s_waitcnt vmcnt(0)")
stamp(12)
A("  s_barrier")
stamp(13)
for i in range(4): A(f"  ds_read_b128 v[{16+4*i}:{19+4*i}], v{12+i}")
def pm(u):
    i, rg = u >> 1, u & 1; d = 72 + 16 * rg
    A(f"  v_mfma_f32_32x32x16_bf16 v[{d}:{d+15}], v[{16+4*i}:{19+4*i}], v[{PQ(i,rg)}:{PQ(i,rg)+3}], 0")
def pv(u):
    i, rg = u >> 1, u & 1; d = 72 + 16 * rg
    A(f"  v_add_f32 v{d+8}, s{S_C0}, v{d+8}\n  v_rcp_f32 v{d+8}, v{d+8}\n  s_nop 0")
    for r in range(0, 8, 2):
        A(f"  v_pk_mul_f32 v[{d+r}:{d+r+1}], v[{d+r}:{d+r+1}], v[{d+8}:{d+9}] op_sel_hi:[1,0]")
    o_ = PQ(i, rg)
    cvt(o_, d); cvt(o_ + 2, d + 4)
    A(f"  ds_write_b128 v{32+rg}, v[{o_}:{o_+3}] offset:{i*4096}")
A("  s_waitcnt lgkmcnt(0)")
pm(0); pm(1)
A("  s_nop 10")
for u in range(8):
    pv(u)
    if u + 2 < 8: pm(u + 2)
    if u == 6: A("  s_nop 0")
A("  s_waitcnt lgkmcnt(0)")
stamp(14)
A("  s_barrier")
stamp(9)
gemm_all(False)
A("L_fin:\n  s_nop 7")
for b in range(2):
    d = 32 + 4 * b
    cvt(d, OA(b, 0)); cvt(d + 2, OA(b, 1))
    A(f"  s_add_u32 s{S_T0}, s{S_C2}, {b * 2048}")
    A(f"  buffer_store_dwordx4 v[{d}:{d+3}], v1, s[{SRD_OUT}:{SRD_OUT+3}], s{S_T0} offen {args.ost.replace('_', ' ')}")
stamp(10)
if NSTAMP:
    A("  s_waitcnt vmcnt(0)")
    stamp(11)
    A(f"  s_cmp_lg_u32 s{S_WV}, 0\n  s_cbranch_scc1 L_end")
    stamp_flush([0, 1, 2, 3, 4, 5, 9, 10, 11, 12, 13, 14], 8)
A("L_end:\n  s_endpgm\nL_codeend:")
A(f""".section .rodata,"a"
.p2align 6
.amdhsa_kernel {NAME}
  .amdhsa_next_free_vgpr 168
  .amdhsa_next_free_sgpr 102
  .amdhsa_accum_offset 168
  .amdhsa_group_segment_fixed_size 0
  .amdhsa_kernarg_size 72
  .amdhsa_user_sgpr_count 2
  .amdhsa_user_sgpr_kernarg_segment_ptr 1
  .amdhsa_system_sgpr_workgroup_id_x 1
.end_amdhsa_kernel""")
print("\n".join(out))
```

```python
import sys, argparse, struct
ap = argparse.ArgumentParser()
ap.add_argument("--stamps", type=int, default=0)
ap.add_argument("--order", type=str, default="g4c")
ap.add_argument("--dbg", type=str, default="")
ap.add_argument("--touch", type=int, default=4)
ap.add_argument("--psleep", type=int, default=2)
ap.add_argument("--maxfl", type=int, default=20)
ap.add_argument("--codepf", type=int, default=0)
ap.add_argument("--D", type=int, default=5)
ap.add_argument("--D0", type=int, default=2)
ap.add_argument("--ramp", type=int, default=4)
ap.add_argument("--bpos", type=int, default=3)
ap.add_argument("--ldf", type=str, default="")
ap.add_argument("--ldn", type=int, default=6)
ap.add_argument("--atouch", type=int, default=0)
ap.add_argument("--kprio", type=int, default=1)
ap.add_argument("--ost", type=str, default="sc1")
ap.add_argument("--tlb", type=int, default=0)
ap.add_argument("--cl", type=str, default="")
args = ap.parse_args()
NAME = "concat_heads__sliding_local_dilated__linear_attn_block__prompt_kernel"
out = []
def A(s): out.append(s)
def f2u(x): return struct.unpack("<I", struct.pack("<f", x))[0]
SPINMAX = "0x40000"
XSLOT = 18432; NXS = 4
WBASE = XSLOT * NXS
WSLOT = 12288; NWS = 7
LDS_TOTAL = WBASE + WSLOT * NWS
ORH = 98304
KVS = 544
KV0 = 32768; KV1 = 147456 - 11 * KVS
WS_KV = 4 << 20
KVH = 1152
WS_FLG = (4 << 20) + 65536
WS_CNT = WS_FLG + 256 * 128
STAMP_OFF = 128 << 20
NSTAMP = args.stamps
S_PTR = 4; S_WS = 20; S_FLG = 22; S_SEQ = 23
SRD_X = 24; SRD_W = 28; SRD_WO = 32; SRD_OUT = 36; SRD_WS = 40
S_DBG = 44
S_BR = 46; S_RB = 47; S_HG = 48; S_RB2 = 49; S_CB = 50; S_WV = 51; S_J = 52; S_XQ = 53
S_XB = 54; S_XH = 55; S_WB = 56
S_T0 = 57; S_T1 = 58; S_T2 = 59; S_T3 = 60; S_IT = 61
S_M0 = 62; S_M1 = 64
S_XO = 66; S_WO = 67
S_C0 = 68; S_C1 = 69; S_C2 = 70; S_C3 = 71
S_OB = 72; S_SPIN = 73; S_STB = 74
S_ST = 76
S_CH = 12
S_A0 = 16; S_A1 = 17; S_A2 = 18; S_A3 = 19
S_Q = 4
S_HH = 54; S_RH = 55; S_XH2 = 56

def sreg(i): return S_ST + 2 * (i if i < 12 else i - 6)
def stamp(i):
    if i < NSTAMP: A(f"  s_memrealtime s[{sreg(i)}:{sreg(i)+1}]")
def stamp_flush(idxs, vtmp):
    if not NSTAMP: return
    A(f"  s_waitcnt lgkmcnt(0)\n  s_mov_b64 exec, 1\n  v_mov_b32 v{vtmp+2}, 0")
    for i in idxs:
        if i < NSTAMP:
            A(f"  v_mov_b32 v{vtmp}, s{sreg(i)}\n  v_mov_b32 v{vtmp+1}, s{sreg(i)+1}")
            A(f"  global_store_dwordx2 v{vtmp+2}, v[{vtmp}:{vtmp+1}], s[{S_STB}:{S_STB+1}] offset:{8*i}\n  s_nop 1")
    A("  s_mov_b64 exec, -1")
def spin(lbl_out):
    return f"  s_add_u32 s{S_SPIN}, s{S_SPIN}, 1\n  s_cmp_gt_u32 s{S_SPIN}, {SPINMAX}\n  s_cbranch_scc1 {lbl_out}"
def cvt(d, a):
    A(f"  v_cvt_pk_bf16_f32 v{d}, v{a}, v{a+1}\n  v_cvt_pk_bf16_f32 v{d+1}, v{a+2}, v{a+3}")
def quarters():
    for i in range(4):
        A(f"  s_add_u32 s{S_T0}, s{S_CB}, {i}\n  s_and_b32 s{S_T0}, s{S_T0}, 3\n  s_lshl_b32 s{S_Q+i}, s{S_T0}, 12")

A(f"; @launch grid=(256,1,1) block=(768,1,1) lds={LDS_TOTAL}")
A('.amdgcn_target "amdgcn-amd-amdhsa--gfx950"\n.text\n.globl %s\n.p2align 8\n.type %s,@function\n%s:' % (NAME, NAME, NAME))
A("  s_cmp_ge_u32 s2, 256\n  s_cbranch_scc1 L_end")
A(f"  s_load_dwordx16 s[{S_PTR}:{S_PTR+15}], s[0:1], 0\n  s_load_dwordx2 s[{S_WS}:{S_WS+1}], s[0:1], 64")
stamp(0)
A(f"""  v_lshrrev_b32 v1, 6, v0
  v_and_b32 v0, 63, v0
  v_readfirstlane_b32 s{S_WV}, v1
  s_and_b32 s{S_T0}, s2, 7
  s_lshr_b32 s{S_J}, s2, 3
  s_lshr_b32 s{S_BR}, s{S_T0}, 2
  s_and_b32 s{S_XQ}, s{S_T0}, 3
  s_lshr_b32 s{S_T1}, s{S_XQ}, 1
  s_lshl_b32 s{S_T1}, s{S_T1}, 3
  s_lshr_b32 s{S_T2}, s{S_J}, 2
  s_add_u32 s{S_RB}, s{S_T1}, s{S_T2}
  s_and_b32 s{S_T1}, s{S_XQ}, 1
  s_lshl_b32 s{S_T1}, s{S_T1}, 2
  s_and_b32 s{S_CB}, s{S_J}, 3
  s_add_u32 s{S_HG}, s{S_T1}, s{S_CB}
  s_lshl_b32 s{S_T1}, s{S_XQ}, 3
  s_add_u32 s{S_RB2}, s{S_T1}, s{S_T2}
  s_mov_b32 s{S_SPIN}, 0
  s_cmp_lt_u32 s{S_WV}, 8
  s_cbranch_scc1 L_comp""")

VX0 = 1; VX1 = 2; VW = 3; VXH = 4; VWO = 5; VTW = 9; VZ = 10
L_HL = S_C3; L_XL = S_C2; L_WL = S_C1
def seq_pack(l): return sum(x << (4 * i) for i, x in enumerate(l))
o = args.order
A(f"""  s_sub_u32 s{S_WV}, s{S_WV}, 8
  v_lshrrev_b32 v11, 3, v0
  v_and_b32 v12, 7, v0
  v_lshrrev_b32 v13, 4, v0
  v_xor_b32 v14, v12, v13
  v_lshlrev_b32 v14, 4, v14
  v_lshl_add_u32 v{VX0}, v11, 11, v14
  v_xor_b32 v{VX1}, 64, v{VX0}
  v_and_b32 v13, 1, v13
  v_lshlrev_b32 v13, 1, v13
  v_xor_b32 v14, v12, v13
  v_lshlrev_b32 v14, 4, v14
  v_mul_u32_u24 v{VW}, 3072, v11
  v_add_u32 v{VW}, v{VW}, v14
  s_and_b32 s{S_T0}, s{S_WV}, 1
  s_lshl_b32 s{S_T1}, s{S_T0}, 6
  v_xor_b32 v{VW}, s{S_T1}, v{VW}
  v_xor_b32 v{VXH}, s{S_T1}, v{VX0}
  s_lshl_b32 s{S_XB}, s{S_RB}, 17
  s_sub_u32 s{S_XH}, s{S_XB}, 16384
  s_max_i32 s{S_XH}, s{S_XH}, 0
  s_lshl_b32 s{L_HL}, s{S_T0}, 10
  s_add_u32 s{S_XH}, s{S_XH}, s{L_HL}
  s_lshl_b32 s{S_T1}, s{S_WV}, 15
  s_add_u32 s{S_XB}, s{S_XB}, s{S_T1}
  s_lshl_b32 s{L_XL}, s{S_WV}, 12
  s_add_u32 s{L_XL}, s{L_XL}, 2048
  s_lshl_b32 s{S_WB}, s{S_HG}, 7
  s_mul_i32 s{S_T1}, s{S_WV}, 24576
  s_add_u32 s{S_WB}, s{S_WB}, s{S_T1}
  s_lshl_b32 s{L_WL}, s{S_WV}, 10
  s_add_u32 s{L_WL}, s{L_WL}, {WBASE}""")
def order_code(o, reg):
    if o == "plain":
        A(f"  s_mov_b32 s{reg}, {hex(seq_pack(range(8)))}")
    elif o == "rot8":
        A(f"""  s_lshl_b32 s{S_T1}, s{S_CB}, 1
  s_add_u32 s{S_T1}, s{S_T1}, s{S_T2}
  s_and_b32 s{S_T1}, s{S_T1}, 7
  s_mul_i32 s{S_T1}, s{S_T1}, 0x11111111
  s_add_u32 s{reg}, s{S_T1}, {hex(seq_pack(range(8)))}
  s_and_b32 s{reg}, s{reg}, 0x77777777""")
    elif o.startswith("g2"):
        seqs = {"g2a": "a0 a1 b0 a2 b1 a3 b2 b3", "g2b": "a0 a1 a2 a3 b0 b1 b2 b3", "g2c": "a0 b0 a1 b1 a2 b2 a3 b3", "g2d": "a0 a1 a2 b0 b1 a3 b2 b3"}
        l = [2 * int(x[1]) + (x[0] == 'b') for x in seqs[o].split()]
        A(f"  s_add_u32 s{S_T1}, s{S_T2}, s{S_CB}\n  s_and_b32 s{S_T1}, s{S_T1}, 1\n  s_mul_i32 s{S_T1}, s{S_T1}, 0x11111111\n  s_xor_b32 s{reg}, s{S_T1}, {hex(seq_pack(l))}")
    elif o.startswith("g4"):
        seqs = {"g4a": "00 01 02 10 03 11 12 13", "g4b": "00 10 01 02 03 11 12 13", "g4c": "00 01 10 02 03 11 12 13", "g4d": "00 01 02 03 10 11 12 13"}
        l = [4 * int(x[0]) + int(x[1]) for x in seqs[o].split()]
        A(f"  s_add_u32 s{S_T1}, s{S_T2}, s{S_CB}\n  s_and_b32 s{S_T1}, s{S_T1}, 3\n  s_mul_i32 s{S_T1}, s{S_T1}, 0x11111111\n  s_xor_b32 s{reg}, s{S_T1}, {hex(seq_pack(l))}")
oa, ob = (o.split(",") + [o])[:2]
order_code(oa, S_SEQ)
if ob != oa:
    order_code(ob, S_IT)
    A(f"  s_cmp_eq_u32 s{S_BR}, 0\n  s_cselect_b32 s{S_SEQ}, s{S_SEQ}, s{S_IT}")
def build_srds():
    A(f"""  s_waitcnt lgkmcnt(0)
  s_cmp_eq_u32 s{S_BR}, 0
  s_cselect_b32 s{SRD_X}, s{S_PTR+0}, s{S_PTR+6}
  s_cselect_b32 s{SRD_X+1}, s{S_PTR+1}, s{S_PTR+7}
  s_cselect_b32 s{SRD_W}, s{S_PTR+2}, s{S_PTR+8}
  s_cselect_b32 s{SRD_W+1}, s{S_PTR+3}, s{S_PTR+9}
  s_mov_b32 s{SRD_X+2}, 0x200000
  s_mov_b32 s{SRD_X+3}, 0x20000
  s_mov_b32 s{SRD_W+2}, 0x180000
  s_mov_b32 s{SRD_W+3}, 0x20000""")
def build_srds2():
    A(f"""  s_cmp_eq_u32 s{S_BR}, 0
  s_cselect_b32 s{SRD_WO}, s{S_PTR+4}, s{S_PTR+10}
  s_cselect_b32 s{SRD_WO+1}, s{S_PTR+5}, s{S_PTR+11}
  s_mov_b32 s{SRD_WO+2}, 0x80000
  s_mov_b32 s{SRD_WO+3}, 0x20000
  s_mov_b32 s{SRD_OUT}, s{S_PTR+12}
  s_mov_b32 s{SRD_OUT+1}, s{S_PTR+13}
  s_mov_b32 s{SRD_OUT+2}, 0x400000
  s_mov_b32 s{SRD_OUT+3}, 0x20000
  s_mov_b32 s{SRD_WS}, s{S_WS}
  s_mov_b32 s{SRD_WS+1}, s{S_WS+1}
  s_mov_b32 s{SRD_WS+2}, 0x500000
  s_mov_b32 s{SRD_WS+3}, 0x20000
  s_mov_b32 s{S_DBG}, s{S_PTR+14}
  s_mov_b32 s{S_DBG+1}, s{S_PTR+15}""")
    if NSTAMP:
        A(f"""  s_add_u32 s{S_STB}, s{S_WS}, {STAMP_OFF}
  s_addc_u32 s{S_STB+1}, s{S_WS+1}, 0
  s_mul_i32 s{S_T1}, s2, {8*NSTAMP}
  s_add_u32 s{S_STB}, s{S_STB}, s{S_T1}
  s_addc_u32 s{S_STB+1}, s{S_STB+1}, 0""")
build_srds()
curg = [0]
def dma(vo, srd, sreg, imm, lreg, limm, extra=""):
    if "noload" in args.dbg and srd in (SRD_X, SRD_W): return
    if srd in (SRD_X, SRD_W) and args.ldf and curg[0] < args.ldn: extra = " " + args.ldf.replace("_", " ")
    A(f"  s_add_u32 s{S_T1}, s{sreg}, {imm}\n  s_add_u32 m0, s{lreg}, {limm}\n  s_waitcnt vmcnt({args.maxfl-1})\n  buffer_load_dwordx4 v{vo}, s[{srd}:{srd+3}], s{S_T1} offen{extra} lds")
D = args.D
def gsize(g): return 8 if g == 0 else (3 if g == 15 else (6 if g & 1 else 5))
def xops(t, which):
    xl = (t % NXS) * XSLOT
    A(f"  s_lshr_b32 s{S_T0}, s{S_SEQ}, {4*t}\n  s_and_b32 s{S_T0}, s{S_T0}, 7\n  s_lshl_b32 s{S_T0}, s{S_T0}, 7\n  s_add_u32 s{S_T3}, s{S_T0}, s{S_XB}")
    lst = [(p, m) for p in range(2) for m in range(2)]
    for i in which:
        if i < 4:
            p, m = lst[i]
            dma(VX0 if m == 0 else VX1, SRD_X, S_T3, (p + 16 * m) * 1024, L_XL, xl + p * 2048 + m * 1024)
        else:
            A(f"  s_add_u32 s{S_C0}, s{S_T0}, s{S_XH}")
            dma(VXH, SRD_X, S_C0, 0, L_HL, xl)
def issue_group(g):
    curg[0] = g
    t = g >> 1
    if g > 0 and g & 1 == 0: xops(t, [3, 4])
    A(f"""  s_lshr_b32 s{S_T0}, s{S_SEQ}, {4*t}
  s_and_b32 s{S_T0}, s{S_T0}, 7
  s_mul_i32 s{S_T2}, s{S_T0}, 196608
  s_add_u32 s{S_T2}, s{S_T2}, s{S_WB}""")
    wl = (g % NWS) * WSLOT
    for seg in range(3): dma(VW, SRD_W, S_T2, (g & 1) * 32 * 3072 + seg * 1024, L_WL, wl + seg * 4096)
    if g == 0: xops(0, [0, 1, 2, 3, 4])
    elif g & 1 and g < 15: xops(t + 1, [0, 1, 2])
    if g == 2 * args.touch + 1:
        A(f"""  v_lshlrev_b32 v{VTW}, 7, v0
  s_lshl_b32 s{S_T1}, s{S_J}, 14
  s_lshl_b32 s{S_T0}, s{S_WV}, 12
  s_add_u32 s{S_T1}, s{S_T1}, s{S_T0}
  s_mov_b32 exec_hi, 0
  buffer_load_dword v11, v{VTW}, s[{SRD_WO}:{SRD_WO+3}], s{S_T1} offen
  s_mov_b64 exec, -1""")
        return 1
    return 0
XC = lambda i: i * XSLOT + 2048
chunks = [[XC(0), 98304], [114688, XC(1)], [131072, XC(2)], [XC(3), WBASE]]
freeat = [11, 12, 14, 16]
def chunk_sel(bitreg):
    A(f"  s_cmp_eq_u32 s{bitreg}, 0")
    for i in range(4): A(f"  s_mov_b32 s{S_CH+i}, {chunks[i][1]}\n  s_cselect_b32 s{S_CH+i}, {chunks[i][0]}, s{S_CH+i}")
def lsetup():
    build_srds2()
    A(f"  s_and_b32 s{S_T2}, s{S_WV}, 1")
    chunk_sel(S_T2)
    quarters()
    A(f"""  v_lshrrev_b32 v11, 3, v0
  v_and_b32 v12, 7, v0
  v_bfe_u32 v13, v0, 4, 1
  v_lshlrev_b32 v13, 2, v13
  v_xor_b32 v12, v12, v13
  v_lshlrev_b32 v12, 4, v12
  v_lshl_add_u32 v{VWO}, v11, 10, v12
  s_lshl_b32 s{S_A0}, s{S_CB}, 8
  s_lshl_b32 s{S_T0}, s{S_T2}, 7
  s_add_u32 s{S_A0}, s{S_A0}, s{S_T0}
  s_lshr_b32 s{S_T0}, s{S_WV}, 1
  s_lshl_b32 s{S_T1}, s{S_T0}, 16
  s_add_u32 s{S_A0}, s{S_A0}, s{S_T1}
  s_lshl_b32 s{S_T0}, s{S_T0}, 13
  s_add_u32 s{S_CH}, s{S_CH}, s{S_T0}
  s_add_u32 s{S_CH+1}, s{S_CH+1}, s{S_T0}
  s_add_u32 s{S_CH+2}, s{S_CH+2}, s{S_T0}
  s_add_u32 s{S_CH+3}, s{S_CH+3}, s{S_T0}
  s_lshl_b32 s{S_FLG}, s{S_BR}, 7
  s_lshl_b32 s{S_T1}, s{S_RB}, 3
  s_add_u32 s{S_FLG}, s{S_FLG}, s{S_T1}
  s_add_u32 s{S_FLG}, s{S_FLG}, s{S_HG}
  s_lshl_b32 s{S_FLG}, s{S_FLG}, 7
  s_add_u32 s{S_FLG}, s{S_FLG}, {WS_FLG}
  v_mov_b32 v8, 1
  v_mov_b32 v15, 0
  v_and_b32 v{VZ}, 7, v0
  v_lshlrev_b32 v{VZ}, 2, v{VZ}
  v_lshlrev_b32 v6, 7, v0
  v_lshlrev_b32 v7, 4, v0""")
def wo_group(i):
    A(f"  s_lshl_b32 s{S_T0}, s{S_Q+i}, 5\n  s_add_u32 s{S_T2}, s{S_T0}, s{S_A0}")
    for k in range(8): dma(VWO, SRD_WO, S_T2, k * 8192, S_CH + i, k * 1024)
sizes = []
def outstanding_after(kid):
    idx = [i for i, x in enumerate(sizes) if (x[0], x[1]) == kid][0]
    return sum(x[2] for x in sizes[idx + 1:])
def do_group(g):
    e = issue_group(g); sizes.append(("g", g, gsize(g))); sizes.append(("t", g, e))
if args.atouch:
    A(f"""  s_cmp_lg_u32 s{S_BR}, 0
  s_cbranch_scc1 L_notch
  v_and_b32 v11, 31, v0
  v_lshlrev_b32 v11, 10, v11
  v_lshrrev_b32 v12, 5, v0
  v_lshl_add_u32 v11, v12, 7, v11
  s_lshr_b32 s{S_T0}, s{S_XQ}, 1
  s_lshl_b32 s{S_T0}, s{S_T0}, 20
  s_lshl_b32 s{S_T1}, s{S_J}, 15
  s_add_u32 s{S_T0}, s{S_T0}, s{S_T1}
  s_lshl_b32 s{S_T1}, s{S_WV}, 8
  s_add_u32 s{S_T0}, s{S_T0}, s{S_T1}
  v_lshrrev_b32 v12, 2, v0
  v_mul_u32_u24 v12, 3072, v12
  v_and_b32 v13, 3, v0
  v_lshl_add_u32 v12, v13, 7, v12
  s_mul_i32 s{S_T1}, s{S_J}, {16*3072}
  s_and_b32 s{S_T2}, s{S_XQ}, 1
  s_lshl_b32 s{S_T2}, s{S_T2}, 9
  s_add_u32 s{S_T1}, s{S_T1}, s{S_T2}
  s_min_u32 s{S_T2}, s{S_WV}, 2
  s_lshl_b32 s{S_T2}, s{S_T2}, 10
  s_add_u32 s{S_T1}, s{S_T1}, s{S_T2}""")
    R = args.atouch
    masks = {1: [(-1, -1)], 2: [(-1, 0), (0, -1)], 3: [(0xffff, 0), (0xffff0000, 0), (0, -1)], 4: [(0xffff, 0), (0xffff0000, 0), (0, 0xffff), (0, 0xffff0000)]}[R]
    for lo, hi in masks:
        A(f"""  s_mov_b32 exec_lo, {hex(lo & 0xffffffff)}
  s_mov_b32 exec_hi, {hex(hi & 0xffffffff)}
  buffer_load_dword v13, v11, s[{SRD_X}:{SRD_X+3}], s{S_T0} offen
  buffer_load_dword v14, v12, s[{SRD_W}:{SRD_W+3}], s{S_T1} offen
  s_waitcnt vmcnt(0)""")
    A("  s_mov_b64 exec, -1\nL_notch:")
for g in range(args.D0): do_group(g)
lsetup()
nxt = args.D0
for bq in range(17):
    if bq < 16: A(f"  s_waitcnt vmcnt({min(63, outstanding_after(('g', bq)))})")
    A("  s_barrier")
    while nxt < 16 and nxt <= bq + D - 1 and nxt <= bq + 5 and (nxt <= bq + args.D0 or bq >= args.ramp):
        do_group(nxt); nxt += 1
    for i in range(4):
        if freeat[i] == bq: wo_group(i); sizes.append(("w", i, 8))
stamp(6)
def init_check(tag, v, vz):
    A(f"""  s_mov_b32 s{S_T1}, 0x01010101
L_ic{tag}:
  s_waitcnt vmcnt(0)
  v_cmp_ne_u32 vcc, s{S_T1}, v{v}
  s_nop 3
  s_cmp_eq_u64 vcc, 0
  s_cbranch_scc1 L_id{tag}
{spin(f"L_id{tag}")}
  s_sleep 4
  global_load_dword v{v}, v{vz}, s[{S_DBG}:{S_DBG+1}] sc1
  s_branch L_ic{tag}
L_id{tag}:""")
def poll(tag, voff, sreg, val=1):
    A(f"""L_pl{tag}:
  buffer_load_dword v16, v{voff}, s[{SRD_WS}:{SRD_WS+3}], s{sreg} offen sc1
  s_waitcnt vmcnt(0)
  v_cmp_ne_u32 vcc, {val}, v16
  s_and_b64 exec, exec, vcc
  s_cbranch_execz L_po{tag}
{spin(f"L_po{tag}")}
  s_sleep {args.psleep}
  s_branch L_pl{tag}
L_po{tag}:
  s_mov_b64 exec, -1""")
A("  s_barrier")
A(f"""  s_cmp_lg_u32 s{S_WV}, 0
  s_cbranch_scc1 L_nofl
  s_mov_b64 exec, 1
  buffer_store_dword v8, v15, s[{SRD_WS}:{SRD_WS+3}], s{S_FLG} offen sc1
  s_mov_b64 exec, -1
  s_waitcnt vmcnt({outstanding_after(('w', 1)) + 1})
  s_branch L_fl2
L_nofl:
  s_waitcnt vmcnt({outstanding_after(('w', 1))})
L_fl2:
  s_barrier""")
stamp(7)
A(f"""  s_cmp_lg_u32 s{S_WV}, 0
  s_cbranch_scc1 L_await
  s_lshr_b32 s{S_T1}, s{S_RB2}, 1
  s_lshl_b32 s{S_T1}, s{S_T1}, 10
  s_lshl_b32 s{S_T0}, s{S_BR}, 14
  s_add_u32 s{S_T1}, s{S_T1}, s{S_T0}
  s_add_u32 s{S_T1}, s{S_T1}, {WS_FLG}
  s_mov_b64 exec, 0xff""")
poll("R", 6, S_T1)
A(f"""L_await:
  s_lshl_b32 s{S_T3}, s{S_RB2}, 16
  s_lshl_b32 s{S_T0}, s{S_WV}, 14
  s_add_u32 s{S_T3}, s{S_T3}, s{S_T0}
  s_and_b32 s{S_T2}, s{S_WV}, 1
  s_lshl_b32 s{S_T2}, s{S_T2}, 14
  s_lshr_b32 s{S_T0}, s{S_WV}, 1
  s_mul_i32 s{S_T0}, s{S_T0}, {ORH}
  s_add_u32 s{S_T2}, s{S_T2}, s{S_T0}
  s_waitcnt vmcnt(0)
  s_barrier""")
def lfin():
    if NSTAMP:
        A(f"  s_cmp_lg_u32 s{S_WV}, 0\n  s_cbranch_scc1 L_end")
        stamp_flush([6, 7, 8], 12)
    A("  s_endpgm")
A(f"  s_cmp_eq_u32 s{S_BR}, 0\n  s_cbranch_scc1 L_oload")
A(f"""  s_mov_b32 s{S_T1}, {WS_FLG + 128*128}
  s_mov_b32 s{S_T2}, {WS_FLG + 192*128}
  v_lshrrev_b32 v11, 2, v0
  v_lshlrev_b32 v11, 4, v11
  v_bfe_u32 v12, v0, 1, 1
  v_lshl_add_u32 v11, v12, 8, v11
  v_and_b32 v12, 1, v0
  v_lshl_add_u32 v11, v12, 3, v11
  s_lshl_b32 s{S_A0}, s{S_WV}, 3
  s_mul_i32 s{S_A1}, s{S_A0}, {KVH}
  s_add_u32 s{S_A1}, s{S_A1}, {WS_KV}
  v_bfe_u32 v12, v0, 2, 3
  v_mul_u32_u24 v13, {KVH}, v12
  v_and_b32 v14, 3, v0
  v_lshl_add_u32 v13, v14, 4, v13
  v_add_u32 v13, 1024, v13
  v_add_u32 v12, s{S_A0}, v12              ; head
  v_mul_u32_u24 v20, {KVS}, v12
  v_lshl_add_u32 v20, v14, 3, v20
  v_add_u32 v20, {KV0 + 512}, v20
  v_add_u32 v21, {KV1 - KV0}, v20
  v_cmp_lt_u32 vcc, 10, v12
  s_nop 1
  v_cndmask_b32 v20, v20, v21, vcc""")
A(f"  s_lshl_b32 s{S_A2}, s{S_WV}, 10\n  s_add_u32 s{S_A2}, s{S_A2}, {WS_CNT}\n  s_mov_b64 exec, 0xff")
poll("K", 6, S_A2, 16)
stamp(8)
for h in range(8):
    r = 24 + h * 4
    A(f"  s_add_u32 s{S_T1}, s{S_A1}, {h*KVH}\n  buffer_load_dwordx4 v[{r}:{r+3}], v7, s[{SRD_WS}:{SRD_WS+3}], s{S_T1} offen {args.cl}")
A(f"  buffer_load_dwordx4 v[56:59], v13, s[{SRD_WS}:{SRD_WS+3}], s{S_A1} offen {args.cl}")
for h in range(8):
    r = 24 + h * 4
    A(f"""  s_add_u32 s{S_T0}, s{S_A0}, {h}
  s_mul_i32 s{S_T1}, s{S_T0}, {KVS}
  s_cmp_lt_u32 s{S_T0}, 11
  s_cselect_b32 s{S_T0}, 0, {KV1-KV0}
  s_add_u32 s{S_T1}, s{S_T1}, s{S_T0}
  s_add_u32 s{S_T1}, s{S_T1}, {KV0}
  v_add_u32 v{60+h}, s{S_T1}, v11""")
for h in range(8):
    r = 24 + h * 4
    A(f"  s_waitcnt vmcnt({8-h})")
    cvt(r, r)
    A(f"  ds_write_b64 v{60+h}, v[{r}:{r+1}]")
A("  s_waitcnt vmcnt(0)")
cvt(56, 56)
A("  ds_write_b64 v20, v[56:57]\n  s_waitcnt lgkmcnt(0)\n  s_barrier")
if NSTAMP: A("  s_barrier")
lfin()
A("L_oload:")
stamp(8)
def oloads(i):
    A(f"  s_add_u32 s{S_A0}, s{S_T3}, s{S_Q+i}\n  s_add_u32 s{S_A1}, s{S_T2}, s{S_Q+i}")
    for h in range(4):
        A(f"  s_add_u32 s{S_T1}, s{S_A0}, {h*1024}\n  s_add_u32 m0, s{S_A1}, {h*1024}\n  s_nop 0\n  buffer_load_dwordx4 v7, s[{SRD_WS}:{SRD_WS+3}], s{S_T1} offen {args.cl} lds")
oloads(0)
A("  s_waitcnt vmcnt(0)")
oloads(1)
A("  s_barrier")
oloads(2); oloads(3)
for i in (1, 2, 3): A(f"  s_waitcnt vmcnt({4*(3-i)})\n  s_barrier")
lfin()

V_XA = 1; V_WA = 2; V_XA1 = 3; V_ONE = 4; V_OA = 5; V_X0C = 6; V_X1C = 13; V_WC = 14; V_IFA = 15
V_IF = 160; V_DUM = 161; V_NC = 162; V_ONESB = 164
A("L_comp:")
A(f"  s_and_b32 s{S_HH}, s{S_WV}, 3\n  s_lshr_b32 s{S_RH}, s{S_WV}, 2")
if args.codepf:
    A(f"""  s_getpc_b64 s[{S_M0}:{S_M0+1}]
L_pcref:
  s_sub_u32 s{S_M0}, s{S_M0}, L_pcref-{NAME}
  s_subb_u32 s{S_M0+1}, s{S_M0+1}, 0
  s_lshl_b32 s{S_T0}, s{S_J}, 3
  s_add_u32 s{S_T0}, s{S_T0}, s{S_WV}
  s_lshl_b32 s{S_T0}, s{S_T0}, 7
  s_min_u32 s{S_T0}, s{S_T0}, (L_codeend-{NAME}-4)&0xfffffffc
  v_mov_b32 v7, s{S_T0}
  s_mov_b64 exec, 1
  global_load_dword v{V_DUM}, v7, s[{S_M0}:{S_M0+1}]
  s_mov_b64 exec, -1""")
A(f"""  v_and_b32 v7, 15, v0
  v_lshrrev_b32 v8, 4, v0
  v_lshrrev_b32 v9, 1, v7
  v_xor_b32 v9, v9, v8
  v_lshlrev_b32 v9, 4, v9
  v_lshl_add_u32 v{V_XA}, v7, 7, v9
  v_lshrrev_b32 v9, 2, v7
  v_lshl_add_u32 v9, v8, 3, v9
  v_lshrrev_b32 v10, 1, v9
  v_and_b32 v10, 1, v10
  v_and_b32 v11, 1, v8
  v_lshl_or_b32 v10, v11, 1, v10
  v_xor_b32 v10, s{S_HH}, v10
  v_lshlrev_b32 v10, 5, v10
  v_lshl_add_u32 v10, v9, 7, v10
  v_and_b32 v11, 3, v7
  v_lshl_add_u32 v{V_WA}, v11, 3, v10
  v_add_u32 v{V_WA}, {WBASE}, v{V_WA}
  v_mov_b32 v{V_ONE}, 1
  s_lshl_b32 s{S_T0}, s{S_HG}, 2
  s_add_u32 s{S_T0}, s{S_T0}, s{S_HH}
  s_lshl_b32 s{S_OB}, s{S_T0}, 9
  s_lshl_b32 s{S_T1}, s{S_RB}, 17
  s_add_u32 s{S_OB}, s{S_OB}, s{S_T1}
  s_lshl_b32 s{S_T1}, s{S_BR}, 21
  s_add_u32 s{S_OB}, s{S_OB}, s{S_T1}
  s_mul_i32 s{S_C3}, s{S_T0}, {KVH}
  s_add_u32 s{S_C3}, s{S_C3}, {WS_KV}
  s_lshl_b32 s{S_XH2}, s{S_T0}, 7
  s_add_u32 s{S_XH2}, s{S_XH2}, {WS_CNT}
  s_lshl_b32 s{S_FLG}, s{S_BR}, 7
  s_lshl_b32 s{S_T1}, s{S_RB}, 3
  s_add_u32 s{S_FLG}, s{S_FLG}, s{S_T1}
  s_add_u32 s{S_FLG}, s{S_FLG}, s{S_HG}
  s_lshl_b32 s{S_FLG}, s{S_FLG}, 7
  s_add_u32 s{S_FLG}, s{S_FLG}, {WS_FLG}
  s_lshl_b32 s{S_T1}, s{S_WV}, 2
  s_add_u32 s{S_FLG}, s{S_FLG}, s{S_T1}
  v_and_b32 v9, 1, v8
  v_lshlrev_b32 v9, 14, v9
  v_lshrrev_b32 v10, 1, v8
  v_lshl_add_u32 v9, v10, 8, v9
  v_lshl_add_u32 v{V_OA}, v7, 4, v9
  v_and_b32 v{V_IFA}, 7, v0
  v_lshlrev_b32 v{V_IFA}, 2, v{V_IFA}
  s_mov_b32 s{S_IT}, 0
  s_mov_b32 s{S_XO}, 0
  s_mov_b32 s{S_WO}, 0
  v_mov_b32 v{V_WC}, v{V_WA}
  s_waitcnt lgkmcnt(0)""")
build_srds2()
if args.tlb:
    A(f"""  s_cmp_lg_u32 s{S_WV}, 7
  s_cbranch_scc1 L_notlb
  v_mov_b32 v9, 0
  s_lshl_b32 s{S_T0}, s{S_RB2}, 17
  s_lshl_b32 s{S_T1}, s{S_RB2}, 16
  s_lshl_b32 s{S_T2}, s{S_BR}, 21
  s_add_u32 s{S_T1}, s{S_T1}, s{S_T2}
  s_mov_b64 exec, 1
  buffer_load_dword v{V_DUM}, v9, s[{SRD_WS}:{SRD_WS+3}], s{S_OB} offen sc1
  buffer_load_dword v{V_DUM}, v9, s[{SRD_WS}:{SRD_WS+3}], s{S_FLG} offen sc1
  buffer_load_dword v{V_DUM}, v9, s[{SRD_OUT}:{SRD_OUT+3}], s{S_T0} offen sc1
  buffer_load_dword v{V_DUM}, v9, s[{SRD_WO}:{SRD_WO+3}], 0 offen
  s_mov_b64 exec, -1
L_notlb:""")
A(f"  s_cmp_eq_u32 s{S_BR}, 0\n  s_cbranch_scc0 L_compB")

wadv_c = [f"  s_add_u32 s{S_WO}, s{S_WO}, {WSLOT}", f"  s_cmp_eq_u32 s{S_WO}, {WSLOT*NWS}", f"  s_cselect_b32 s{S_WO}, 0, s{S_WO}", f"  v_add_u32 v{V_WC}, s{S_WO}, v{V_WA}"]
xadv_c = [f"  s_add_u32 s{S_XO}, s{S_XO}, {XSLOT}", f"  s_cmp_eq_u32 s{S_XO}, {XSLOT*NXS}", f"  s_cselect_b32 s{S_XO}, 0, s{S_XO}",
          f"  v_add_u32 v{V_X0C}, s{S_XO}, v{V_XA}", f"  v_add_u32 v{V_X1C}, s{S_XO}, v{V_XA1}"]
def mainloop(tag, reads, mfmas, extra_adv, tail, bpos):
    A("  s_barrier")
    stamp(1)
    if "cyc" in args.dbg: A(f"  s_memtime s[{sreg(12)}:{sreg(12)+1}]")
    for x in reads(0, 0): A(x)
    for kk in range(2):
        A(f"L_s{kk}{tag}:\n  s_waitcnt lgkmcnt(0)")
        m = mfmas(kk)
        adv = list(wadv_c) + (xadv_c + extra_adv if kk == 1 else [])
        r = reads(1 - kk, 1 - kk)
        if "noreads" in args.dbg: r = []
        ai = 0
        for i in range(bpos):
            A(m[i])
            want = min(len(adv), ((i + 1) * len(adv) + bpos - 2) // max(1, bpos - 1))
            while ai < want: A(adv[ai]); ai += 1
        A("  s_barrier")
        ri = 0; nm = len(m) - bpos
        for i, x in enumerate(m[bpos:]):
            want = min(len(r), ((i + 1) * len(r) + nm - 3) // max(1, nm - 2))
            while ri < want: A(r[ri]); ri += 1
            A(x)
        while ri < len(r): A(r[ri]); ri += 1
    tail()
    A(f"  s_add_u32 s{S_IT}, s{S_IT}, 1\n  s_cmp_lt_u32 s{S_IT}, 8\n  s_cbranch_scc1 L_s0{tag}")
    A(f"  global_load_dword v{V_IF}, v{V_IFA}, s[{S_DBG}:{S_DBG+1}] sc1")
    stamp(2)
    if "cyc" in args.dbg: A(f"  s_memtime s[{sreg(13)}:{sreg(13)+1}]")
    A("  s_waitcnt lgkmcnt(0)")
def trr(d, seg): return [f"  ds_read_b64_tr_b16 v[{d}:{d+1}], v{V_WC} offset:{seg*4096}", f"  ds_read_b64_tr_b16 v[{d+2}:{d+3}], v{V_WC} offset:{seg*4096 + 512}"]
def mm(acc, a, b): return f"  v_mfma_f32_16x16x32_bf16 v[{acc}:{acc+3}], v[{a}:{a+3}], v[{b}:{b+3}], v[{acc}:{acc+3}]"
def store_frags(src, nt, dst):
    for t in range(nt):
        d = dst + 4 * t
        cvt(d, src(2 * t)); cvt(d + 2, src(2 * t + 1))
    A("  s_nop 1")
    for t in range(nt):
        d = dst + 4 * t
        A(f"  v_permlane16_swap_b32 v{d}, v{d+2}\n  v_permlane16_swap_b32 v{d+1}, v{d+3}")
    for t in range(nt):
        d = dst + 4 * t
        A(f"  s_add_u32 s{S_T0}, s{S_OB}, {t*32768}")
        A(f"  buffer_store_dwordx4 v[{d}:{d+3}], v{V_OA}, s[{SRD_WS}:{SRD_WS+3}], s{S_T0} offen sc1")

ACC = 16
AQ = lambda b: ACC + 4 * b
AK = lambda b: ACC + 16 + 4 * b
AV = lambda b: ACC + 36 + 4 * b
FX = lambda buf, b: 72 + 32 * buf + 4 * b
FW = lambda buf, seg: 72 + 32 * buf + 20 + 4 * seg
V_HA = 136; V_H0C = 137; V_H1C = 138
MK = 140; MK0 = 144; V_HI = 148; V_PV = 149; V_ONES = 150
A(f"""  v_mov_b32 v{V_HA}, v{V_XA}
  s_cmp_eq_u32 s{S_RH}, 0
  s_cbranch_scc1 L_h0ok
  v_or_b32 v10, 8, v7
  v_lshrrev_b32 v9, 1, v10
  v_xor_b32 v9, v9, v8
  v_lshlrev_b32 v9, 4, v9
  v_lshl_add_u32 v9, v10, 7, v9
  v_lshrrev_b32 v10, 3, v7
  v_lshlrev_b32 v10, 11, v10
  v_add_u32 v9, v9, v10
  v_add_u32 v{V_HA}, {2048*3}, v9
L_h0ok:
  s_lshl_b32 s{S_T0}, s{S_RH}, 13
  s_add_u32 s{S_T0}, s{S_T0}, 2048
  v_add_u32 v{V_XA}, s{S_T0}, v{V_XA}
  v_xor_b32 v{V_XA1}, 64, v{V_XA}
  v_mov_b32 v{V_X0C}, v{V_XA}
  v_mov_b32 v{V_X1C}, v{V_XA1}
  v_mov_b32 v{V_H0C}, v{V_HA}
  v_xor_b32 v{V_H1C}, 64, v{V_HA}
  s_lshl_b32 s{S_T1}, s{S_RH}, 16
  s_add_u32 s{S_OB}, s{S_OB}, s{S_T1}""")
for r in range(ACC, ACC + 56): A(f"  v_mov_b32 v{r}, 0")
A(f"""  v_lshlrev_b32 v9, 2, v8
  v_sub_u32 v9, v7, v9
  s_mov_b32 s{S_C0}, 0xf149f2ca
  v_mov_b32 v10, s{S_C0}""")
for r in range(4):
    A(f"""  v_subrev_u32 v11, {r}, v9
  v_and_b32 v12, 15, v11
  v_cmp_gt_u32 vcc, 8, v12
  s_nop 1
  v_cndmask_b32 v{MK+r}, v10, 0, vcc
  v_cmp_gt_u32 vcc, 8, v11
  s_nop 1
  v_cndmask_b32 v{MK0+r}, v10, 0, vcc""")
A(f"""  s_or_b32 s{S_T0}, s{S_RB}, s{S_RH}
  s_cmp_eq_u32 s{S_T0}, 0
  s_cbranch_scc1 L_m0
  v_mov_b32 v{MK0}, v{MK}
  v_mov_b32 v{MK0+1}, v{MK+1}
  v_mov_b32 v{MK0+2}, v{MK+2}
  v_mov_b32 v{MK0+3}, v{MK+3}
L_m0:
  v_cmp_lt_u32 s[{S_M0}:{S_M0+1}], 7, v7
  v_cmp_lt_u32 vcc, 1, v8
  s_nop 1
  v_cndmask_b32 v{V_HI}, 0, -1, s[{S_M0}:{S_M0+1}]
  s_andn2_b64 s[{S_M1}:{S_M1+1}], vcc, s[{S_M0}:{S_M0+1}]
  v_mov_b32 v{V_ONES}, 0x3f803f80
  v_mov_b32 v{V_ONES+1}, 0x3f803f80
  v_cndmask_b32 v{V_PV}, 0, -1, s[{S_M1}:{S_M1+1}]
  v_mov_b32 v{V_ONES+2}, 0x3f803f80
  v_mov_b32 v{V_ONES+3}, 0x3f803f80
  s_mov_b32 s{S_C0}, 0x3eb8aa3b""")
def readsA(buf, kk):
    va = V_X0C if kk == 0 else V_X1C
    r = trr(FW(buf, 1), 1) + trr(FW(buf, 2), 2) + trr(FW(buf, 0), 0)
    for b in range(4): r.append(f"  ds_read_b128 v[{FX(buf,b)}:{FX(buf,b)+3}], v{va} offset:{b*2048}")
    r.append(f"  ds_read_b128 v[{FX(buf,4)}:{FX(buf,4)+3}], v{V_H0C if kk == 0 else V_H1C}")
    return r
def mfmasA(buf):
    m = []
    for b in range(4):
        x = FX(buf, b)
        m += [mm(AK(b), FW(buf, 1), x), mm(AV(b), x, FW(buf, 2)), mm(AQ(b), FW(buf, 0), x)]
    x = FX(buf, 4)
    return m + [mm(AK(4), FW(buf, 1), x), mm(AV(4), x, FW(buf, 2))]
mainloop("A", readsA, mfmasA, [f"  v_add_u32 v{V_H0C}, s{S_XO}, v{V_HA}", f"  v_xor_b32 v{V_H1C}, 64, v{V_H0C}"], lambda: None, args.bpos)
K4 = lambda b: 72 + 4 * b
Q4 = lambda b: 88 + 4 * b
VP = lambda p, i: 104 + 6 * p + 2 * i
KH = 116; KH2 = 118; TT = 120
for b in range(4):
    cvt(K4(b), AK(b))
    cvt(VP(b & 1, (b >> 1) + 1), AV(b))
    tt = TT + 2 * (b & 1)
    cvt(tt, AQ(b))
    A(f"  v_and_b32 v{Q4(b)}, v{tt}, v{V_HI}\n  v_and_b32 v{Q4(b)+1}, v{tt+1}, v{V_HI}")
    A(f"  v_xor_b32 v{Q4(b)+2}, v{tt}, v{Q4(b)}\n  v_xor_b32 v{Q4(b)+3}, v{tt+1}, v{Q4(b)+1}")
cvt(KH, AK(4))
cvt(VP(1, 0), AV(4))
A(f"""  s_nop 1
  v_mov_b32_dpp v{KH2}, v{KH} row_ror:8 row_mask:0xf bank_mask:0xf
  v_mov_b32_dpp v{KH2+1}, v{KH+1} row_ror:8 row_mask:0xf bank_mask:0xf
  v_mov_b32 v{VP(0,0)}, v{VP(1,0)}
  v_mov_b32 v{VP(0,0)+1}, v{VP(1,0)+1}
  v_mov_b32 v{TT}, v{VP(1,0)}
  v_mov_b32 v{TT+1}, v{VP(1,0)+1}
  s_nop 1
  v_permlane32_swap_b32 v{VP(0,0)}, v{TT}
  v_permlane32_swap_b32 v{VP(0,0)+1}, v{TT+1}""")
for b in range(4):
    t, p = b >> 1, b & 1
    prev = (KH2 if p == 0 else KH) if t == 0 else K4(p)
    A(f"  v_cndmask_b32 v{K4(b)+2}, v{K4(b)}, v{prev}, s[{S_M0}:{S_M0+1}]\n  v_cndmask_b32 v{K4(b)+3}, v{K4(b)+1}, v{prev+1}, s[{S_M0}:{S_M0+1}]")
A("  s_nop 1")
SS = lambda b: ACC + 4 * b
for b in range(4):
    mk = MK0 if b < 2 else MK
    A(f"  v_mfma_f32_16x16x32_bf16 v[{SS(b)}:{SS(b)+3}], v[{K4(b)}:{K4(b)+3}], v[{Q4(b)}:{Q4(b)+3}], v[{mk}:{mk+3}]")
MX = lambda b: 32 + b
MT = 36
A("  s_nop 7")
for b in range(4): A(f"  v_max3_f32 v{MX(b)}, v{SS(b)}, v{SS(b)+1}, v{SS(b)+2}")
for b in range(4): A(f"  v_max_f32 v{MX(b)}, v{MX(b)}, v{SS(b)+3}")
a, b_, c, d = [MX(i) for i in range(4)]
A(f"""  s_nop 0
  v_permlane32_swap_b32 v{a}, v{b_}
  v_permlane32_swap_b32 v{c}, v{d}
  v_max_f32 v{a}, v{a}, v{b_}
  v_max_f32 v{c}, v{c}, v{d}
  s_nop 1
  v_permlane16_swap_b32 v{a}, v{c}
  v_max_f32 v{a}, v{a}, v{c}
  v_mul_f32 v{a}, s{S_C0}, v{a}
  v_mov_b32 v{c}, v{a}
  s_nop 1
  v_permlane16_swap_b32 v{a}, v{c}
  v_mov_b32 v{b_}, v{a}
  v_mov_b32 v{d}, v{c}
  s_nop 0
  v_permlane32_swap_b32 v{a}, v{b_}
  v_permlane32_swap_b32 v{c}, v{d}""")
for b in range(4):
    for r in range(4): A(f"  v_fma_f32 v{SS(b)+r}, v{SS(b)+r}, s{S_C0}, -v{MX(b)}")
for b in range(4):
    for r in range(4): A(f"  v_exp_f32 v{SS(b)+r}, v{SS(b)+r}")
P4 = lambda b: 40 + 4 * b
for b in range(4):
    tt = MT + 2 * (b & 1)
    cvt(tt, SS(b))
    A(f"  v_and_b32 v{P4(b)}, v{tt}, v{V_PV}\n  v_and_b32 v{P4(b)+1}, v{tt+1}, v{V_PV}")
    A(f"  v_xor_b32 v{P4(b)+2}, v{tt}, v{P4(b)}\n  v_xor_b32 v{P4(b)+3}, v{tt+1}, v{P4(b)+1}")
A("  s_nop 1")
OO = lambda b: 72 + 4 * b
SM = lambda b: 88 + 4 * b
for b in range(4):
    t, p = b >> 1, b & 1
    A(f"  v_mfma_f32_16x16x32_bf16 v[{SM(b)}:{SM(b)+3}], v[{V_ONES}:{V_ONES+3}], v[{P4(b)}:{P4(b)+3}], 0")
    A(f"  v_mfma_f32_16x16x32_bf16 v[{OO(b)}:{OO(b)+3}], v[{VP(p,t)}:{VP(p,t)+3}], v[{P4(b)}:{P4(b)+3}], 0")
A("  s_nop 4")
for b in range(4): A(f"  v_rcp_f32 v{SM(b)}, v{SM(b)}")
for b in range(4):
    for r in (0, 2): A(f"  v_pk_mul_f32 v[{OO(b)+r}:{OO(b)+r+1}], v[{OO(b)+r}:{OO(b)+r+1}], v[{SM(b)}:{SM(b)+1}] op_sel_hi:[1,0]")
store_frags(OO, 2, ACC)
A("  s_branch L_phase2")

A("L_compB:")
A(f"""  s_mov_b32 s{S_C0}, 0x358637bd
  s_mov_b32 s{S_C1}, 0x3fb8aa3b
  s_mov_b32 s{S_C2}, {hex(f2u(-1e-6 * 1.4426950408889634))}
  v_mov_b32 v{V_NC}, s{S_C2}
  v_add_u32 v{V_XA}, 2048, v{V_XA}
  v_xor_b32 v{V_XA1}, 64, v{V_XA}
  v_mov_b32 v{V_X0C}, v{V_XA}
  v_mov_b32 v{V_X1C}, v{V_XA1}""")
for r in range(16, 48): A(f"  v_mov_b32 v{r}, s{S_C0}")
A(f"  s_cmp_lg_u32 s{S_RH}, 0\n  s_cbranch_scc1 L_compQ")
A(f"""  s_cmp_lg_u32 s{S_RB}, 0
  s_cbranch_scc1 L_nozero
  v_mov_b32 v8, 0
  v_mov_b32 v9, 0
  v_mov_b32 v10, 0
  v_mov_b32 v11, 0
  v_lshlrev_b32 v7, 4, v0
  buffer_store_dwordx4 v[8:11], v7, s[{SRD_WS}:{SRD_WS+3}], s{S_C3} offen sc1
  s_mov_b64 exec, 0xff
  buffer_store_dwordx4 v[8:11], v7, s[{SRD_WS}:{SRD_WS+3}], s{S_C3} offen offset:1024 sc1
  s_mov_b64 exec, -1
  s_lshl_b32 s{S_T0}, s{S_HG}, 2
  s_add_u32 s{S_T0}, s{S_T0}, s{S_HH}
  s_mul_i32 s{S_T0}, s{S_T0}, {9*128}
  s_add_u32 s{S_T0}, s{S_T0}, {WS_FLG}
  v_lshlrev_b32 v7, 7, v0
  s_mov_b64 exec, 0x1ff
  buffer_store_dword v8, v7, s[{SRD_WS}:{SRD_WS+3}], s{S_T0} offen sc1
  s_mov_b64 exec, -1
L_nozero:""")
BK = lambda b: 16 + 4 * b
BV = lambda b: 48 + 4 * b
GX = lambda buf, b: 80 + 40 * buf + 4 * b
GW = lambda buf, i: 80 + 40 * buf + 32 + 4 * i
for r in range(48, 80): A(f"  v_mov_b32 v{r}, 0")
for r in range(4): A(f"  v_mov_b32 v{V_ONESB+r}, 0x3f803f80")
def xreads(buf, kk):
    va = V_X0C if kk == 0 else V_X1C
    return [f"  ds_read_b128 v[{GX(buf,b)}:{GX(buf,b)+3}], v{va} offset:{b*2048}" for b in range(8)]
def readsKV(buf, kk): return trr(GW(buf, 0), 1) + trr(GW(buf, 1), 2) + xreads(buf, kk)
def mfmasKV(buf):
    m = []
    for b in range(8): m += [mm(BK(b), GX(buf, b), GW(buf, 0)), mm(BV(b), GX(buf, b), GW(buf, 1))]
    return m
def ack():
    A(f"""  s_or_b32 s{S_T0}, s{S_IT}, s{S_RB}
  s_cmp_lg_u32 s{S_T0}, 0
  s_cbranch_scc1 L_noack
  s_waitcnt vmcnt(0)
  s_lshl_b32 s{S_T0}, s{S_HG}, 2
  s_add_u32 s{S_T0}, s{S_T0}, s{S_HH}
  v_mov_b32 v11, s{S_T0}
  s_mov_b64 exec, 1
  global_store_byte v11, v{V_ONE}, s[{S_DBG}:{S_DBG+1}] sc1
  s_mov_b64 exec, -1
L_noack:""")
mainloop("K", readsKV, mfmasKV, [], ack, args.bpos)
if args.kprio: A("  s_setprio 2")
PK = lambda b: 80 + 2 * b
VV = lambda b: 96 + 2 * b
ET = 112
def phi(acc, n, et):
    for i in range(n): A(f"  v_fma_f32 v{et+i}, v{acc+i}, s{S_C1}, v{V_NC}")
    for i in range(n): A(f"  v_exp_f32 v{et+i}, v{et+i} clamp")
    for i in range(n): A(f"  v_max_f32 v{acc+i}, s{S_C0}, v{acc+i}")
    for i in range(0, n, 2): A(f"  v_pk_add_f32 v[{acc+i}:{acc+i+1}], v[{acc+i}:{acc+i+1}], v[{et+i}:{et+i+1}]")
for b in range(8): cvt(VV(b), BV(b))
phi(BK(0), 32, ET)
for b in range(8): cvt(PK(b), BK(b))
KVA = 144; ZA = 148
A("  s_nop 1")
for i in range(4):
    c = "0" if i == 0 else f"v[{KVA}:{KVA+3}]"
    A(f"  v_mfma_f32_16x16x32_bf16 v[{KVA}:{KVA+3}], v[{VV(2*i)}:{VV(2*i)+3}], v[{PK(2*i)}:{PK(2*i)+3}], {c}")
    c = "0" if i == 0 else f"v[{ZA}:{ZA+3}]"
    A(f"  v_mfma_f32_16x16x32_bf16 v[{ZA}:{ZA+3}], v[{V_ONESB}:{V_ONESB+3}], v[{PK(2*i)}:{PK(2*i)+3}], {c}")
A("""  v_and_b32 v7, 15, v0
  v_lshlrev_b32 v7, 2, v7
  v_lshrrev_b32 v8, 5, v0
  v_lshl_add_u32 v7, v8, 8, v7
  v_bfe_u32 v8, v0, 4, 1
  v_lshl_add_u32 v7, v8, 9, v7""")
init_check("B", V_IF, V_IFA)
A("  s_nop 2")
for r in range(4):
    A(f"  buffer_atomic_add_f32 v{KVA+r}, v7, s[{SRD_WS}:{SRD_WS+3}], s{S_C3} offen offset:{64*r}")
A(f"  s_mov_b64 exec, 0xffff\n  buffer_atomic_add_f32 v{ZA}, v7, s[{SRD_WS}:{SRD_WS+3}], s{S_C3} offen offset:1024\n  s_mov_b64 exec, -1")
A(f"  v_mov_b32 v8, 0\n  s_waitcnt vmcnt(0)\n  s_mov_b64 exec, 1\n  buffer_atomic_add v{V_ONE}, v8, s[{SRD_WS}:{SRD_WS+3}], s{S_XH2} offen\n  s_mov_b64 exec, -1\n  s_mov_b32 s{S_IT}, 99\n  s_setprio 0")
A("  s_branch L_phase2")
A("L_compQ:")
def readsQ(buf, kk): return trr(GW(buf, 0), 0) + xreads(buf, kk)
def mfmasQ(buf): return [mm(BK(b), GW(buf, 0), GX(buf, b)) for b in range(8)]
mainloop("Q", readsQ, mfmasQ, [], lambda: None, min(args.bpos, 2))
A("  s_nop 4")
phi(BK(0), 32, ET)
store_frags(BK, 4, 16)

A("L_phase2:")
stamp(3)
A(f"  s_lshr_b32 s{S_T2}, s{S_HH}, 1")
chunk_sel(S_T2)
quarters()
A(f"""  v_and_b32 v11, 15, v0
  v_lshrrev_b32 v12, 4, v0
  v_lshrrev_b32 v13, 2, v11
  v_lshl_add_u32 v13, v12, 3, v13
  v_and_b32 v14, 3, v11
  v_lshlrev_b32 v14, 4, v14
  v_lshl_add_u32 v14, v13, 7, v14
  v_bfe_u32 v10, v13, 1, 1
  s_and_b32 s{S_T0}, s{S_HH}, 1
  v_xor_b32 v10, s{S_T0}, v10
  v_lshl_add_u32 v6, v10, 6, v14
  v_add_u32 v2, s{S_CH}, v6
  v_add_u32 v3, s{S_CH+1}, v6
  v_lshlrev_b32 v11, 12, v11
  v_lshl_add_u32 v1, v12, 4, v11
  s_lshl_b32 s{S_C2}, s{S_RB2}, 17
  s_lshl_b32 s{S_T0}, s{S_RH}, 16
  s_add_u32 s{S_C2}, s{S_C2}, s{S_T0}
  s_lshl_b32 s{S_T0}, s{S_BR}, 10
  s_add_u32 s{S_C2}, s{S_C2}, s{S_T0}
  s_lshl_b32 s{S_T0}, s{S_CB}, 8
  s_add_u32 s{S_C2}, s{S_C2}, s{S_T0}
  s_lshl_b32 s{S_T0}, s{S_HH}, 6
  s_add_u32 s{S_C2}, s{S_C2}, s{S_T0}
  s_mul_i32 s{S_C3}, s{S_RH}, {ORH}""")
A(f"  s_cmp_eq_u32 s{S_IT}, 99\n  s_cbranch_scc1 L_idP")
init_check("P", V_IF, V_IFA)
stamp(4)
A("  s_barrier\n  s_barrier")
WF = lambda ks, c: 104 + (ks % 8) * 8 + c * 4
def wo_reads(i, va):
    for k in range(4):
        for c in range(2):
            d = WF(4 * i + k, c)
            A(f"  ds_read_b64_tr_b16 v[{d}:{d+1}], v{va} offset:{k*4096 + 8*c}\n  ds_read_b64_tr_b16 v[{d+2}:{d+3}], v{va} offset:{k*4096 + 8*c + 512}")
wo_reads(0, 2); wo_reads(1, 3)
A(f"""  v_lshlrev_b32 v5, 4, v0
  v_add_u32 v5, s{S_C3}, v5
  v_and_b32 v11, 31, v0
  v_lshrrev_b32 v12, 5, v0
  v_lshrrev_b32 v13, 4, v11
  v_lshlrev_b32 v13, 14, v13
  v_lshl_add_u32 v13, v12, 8, v13
  v_and_b32 v14, 15, v11
  v_lshl_add_u32 v7, v14, 4, v13
  v_lshlrev_b32 v13, 4, v14
  v_lshl_add_u32 v13, v12, 8, v13
  v_lshlrev_b32 v10, 4, v12
  v_add_u32 v10, 512, v10
  v_cmp_lt_u32 vcc, 15, v11
  s_nop 1
  v_cndmask_b32 v4, v13, v10, vcc
  s_lshl_b32 s{S_C1}, s{S_RB2}, 16
  s_add_u32 s{S_C1}, s{S_C1}, 0x200000
  s_mov_b32 s{S_C0}, 0x358637bd
  s_waitcnt lgkmcnt(0)""")
stamp(5)
A("  s_barrier")
OA = lambda b, c: 16 + (b * 2 + c) * 4
OF = lambda k, b: 40 + (k % 8) * 8 + 4 * b
def gemm_all(bars):
    q = []
    def rd_o(k):
        i, h = k >> 2, k & 3
        for b in range(2):
            A(f"  ds_read_b128 v[{OF(k,b)}:{OF(k,b)+3}], v{8+i} offset:{b*16384 + h*1024}"); q.append(("o", k))
    def rd_w(k):
        i, h = k >> 2, k & 3
        for c in range(2):
            d = WF(k, c)
            A(f"  ds_read_b64_tr_b16 v[{d}:{d+1}], v{i} offset:{h*4096 + 8*c}"); q.append(("w", k))
            A(f"  ds_read_b64_tr_b16 v[{d+2}:{d+3}], v{i} offset:{h*4096 + 8*c + 512}"); q.append(("w", k))
    if bars: A("  s_barrier"); stamp(9)
    for k in range(4): rd_o(k)
    for k in range(16):
        need = [j for j, t in enumerate(q) if t[1] <= k]
        if need:
            n = len(q) - 1 - need[-1]
            A(f"  s_waitcnt lgkmcnt({min(n, 15)})")
            del q[:need[-1] + 1]
        ms = []
        for b in range(2):
            for c in range(2):
                acc = OA(b, c); wf = WF(k, c); d = OF(k, b)
                cin = "0" if k == 0 else f"v[{acc}:{acc+3}]"
                ms.append(f"  v_mfma_f32_16x16x32_bf16 v[{acc}:{acc+3}], v[{wf}:{wf+3}], v[{d}:{d+3}], {cin}")
        A(ms[0]); A(ms[1])
        kn = k + 4 if not bars else None
        if bars:
            if k % 4 == 1 and k + 3 < 16:
                A("  s_barrier")
                for kk in range(k + 3, k + 5): rd_o(kk)
            elif k % 4 == 2 and k + 4 < 16:
                for kk in range(k + 4, k + 6): rd_o(kk)
        elif k + 4 < 16: rd_o(k + 4)
        A(ms[2]); A(ms[3])
        if k < 8: rd_w(k + 8)
A(f"  v_add_u32 v2, s{S_CH+2}, v6\n  v_add_u32 v3, s{S_CH+3}, v6")
for i in range(4): A(f"  v_add_u32 v{8+i}, s{S_Q+i}, v5")
A(f"  s_cmp_lg_u32 s{S_BR}, 0\n  s_cbranch_scc1 L_p2B")
gemm_all(True)
A("  s_branch L_fin")
A("L_p2B:")
PQ = lambda i, rg: 40 + (i * 2 + rg) * 4
A(f"""  s_lshr_b32 s{S_A0}, s{S_WV}, 1
  s_lshl_b32 s{S_A0}, s{S_A0}, 10
  s_and_b32 s{S_T0}, s{S_WV}, 1
  s_lshl_b32 s{S_T0}, s{S_T0}, 9
  s_add_u32 s{S_A0}, s{S_A0}, s{S_T0}""")
for i in range(4):
    A(f"  s_add_u32 s{S_T2}, s{S_A0}, {i*4096}\n  s_add_u32 s{S_T2}, s{S_T2}, s{S_C1}\n  s_add_u32 s{S_T3}, s{S_T2}, 32768")
    for rg in range(2):
        d = PQ(i, rg)
        A(f"  buffer_load_dwordx4 v[{d}:{d+3}], v7, s[{SRD_WS}:{SRD_WS+3}], s{S_T2 if rg == 0 else S_T3} offen {args.cl}")
for i in range(4):
    A(f"""  s_add_u32 s{S_T0}, s{S_WV}, {8*i}
  s_mul_i32 s{S_T1}, s{S_T0}, {KVS}
  s_cmp_lt_u32 s{S_T0}, 11
  s_cselect_b32 s{S_T0}, 0, {KV1-KV0}
  s_add_u32 s{S_T1}, s{S_T1}, s{S_T0}
  s_add_u32 s{S_T1}, s{S_T1}, {KV0}
  v_add_u32 v{12+i}, s{S_T1}, v4""")
A(f"  v_add_u32 v32, s{S_A0}, v7\n  v_add_u32 v33, {ORH}, v32\n  s_waitcnt vmcnt(0)")
if 'cyc' not in args.dbg: stamp(12)
A("  s_barrier")
if 'cyc' not in args.dbg: stamp(13)
for i in range(4): A(f"  ds_read_b128 v[{16+4*i}:{19+4*i}], v{12+i}")
def pm(u):
    i, rg = u >> 1, u & 1; d = 72 + 16 * rg
    A(f"  v_mfma_f32_32x32x16_bf16 v[{d}:{d+15}], v[{16+4*i}:{19+4*i}], v[{PQ(i,rg)}:{PQ(i,rg)+3}], 0")
def pv(u):
    i, rg = u >> 1, u & 1; d = 72 + 16 * rg
    A(f"  v_add_f32 v{d+8}, s{S_C0}, v{d+8}\n  v_rcp_f32 v{d+8}, v{d+8}\n  s_nop 0")
    for r in range(0, 8, 2):
        A(f"  v_pk_mul_f32 v[{d+r}:{d+r+1}], v[{d+r}:{d+r+1}], v[{d+8}:{d+9}] op_sel_hi:[1,0]")
    o_ = PQ(i, rg)
    cvt(o_, d); cvt(o_ + 2, d + 4)
    A(f"  ds_write_b128 v{32+rg}, v[{o_}:{o_+3}] offset:{i*4096}")
A("  s_waitcnt lgkmcnt(0)")
pm(0); pm(1)
A("  s_nop 10")
for u in range(8):
    pv(u)
    if u + 2 < 8: pm(u + 2)
    if u == 6: A("  s_nop 0")
A("  s_waitcnt lgkmcnt(0)")
stamp(14)
A("  s_barrier")
stamp(9)
gemm_all(False)
A("L_fin:\n  s_nop 7")
for b in range(2):
    d = 32 + 4 * b
    cvt(d, OA(b, 0)); cvt(d + 2, OA(b, 1))
    A(f"  s_add_u32 s{S_T0}, s{S_C2}, {b * 2048}")
    A(f"  buffer_store_dwordx4 v[{d}:{d+3}], v1, s[{SRD_OUT}:{SRD_OUT+3}], s{S_T0} offen {args.ost.replace('_', ' ')}")
stamp(10)
if NSTAMP:
    A("  s_waitcnt vmcnt(0)")
    stamp(11)
    A(f"  s_cmp_lg_u32 s{S_WV}, 0\n  s_cbranch_scc1 L_end")
    stamp_flush([0, 1, 2, 3, 4, 5, 9, 10, 11, 12, 13, 14], 8)
A("L_end:\n  s_endpgm\nL_codeend:")
A(f""".section .rodata,"a"
.p2align 6
.amdhsa_kernel {NAME}
  .amdhsa_next_free_vgpr 168
  .amdhsa_next_free_sgpr 102
  .amdhsa_accum_offset 168
  .amdhsa_group_segment_fixed_size 0
  .amdhsa_kernarg_size 72
  .amdhsa_user_sgpr_count 2
  .amdhsa_user_sgpr_kernarg_segment_ptr 1
  .amdhsa_system_sgpr_workgroup_id_x 1
.end_amdhsa_kernel""")
print("\n".join(out))
```

```python
import sys, argparse, struct
ap = argparse.ArgumentParser()
ap.add_argument("--stamps", type=int, default=0)
ap.add_argument("--order", type=str, default="g4c")
ap.add_argument("--dbg", type=str, default="")
ap.add_argument("--touch", type=int, default=4)
ap.add_argument("--psleep", type=int, default=2)
ap.add_argument("--maxfl", type=int, default=20)
ap.add_argument("--codepf", type=int, default=0)
ap.add_argument("--D", type=int, default=5)
ap.add_argument("--D0", type=int, default=2)
ap.add_argument("--ramp", type=int, default=4)
ap.add_argument("--bpos", type=int, default=3)
ap.add_argument("--ldf", type=str, default="")
ap.add_argument("--ldn", type=int, default=6)
ap.add_argument("--atouch", type=int, default=0)
ap.add_argument("--kprio", type=int, default=1)
ap.add_argument("--ost", type=str, default="sc1")
ap.add_argument("--diag", type=int, default=0)
ap.add_argument("--tlb", type=int, default=0)
ap.add_argument("--cl", type=str, default="")
args = ap.parse_args()
NAME = "concat_heads__sliding_local_dilated__linear_attn_block__prompt_kernel"
out = []
def A(s): out.append(s)
def f2u(x): return struct.unpack("<I", struct.pack("<f", x))[0]
SPINMAX = "0x40000"
XSLOT = 18432; NXS = 4
WBASE = XSLOT * NXS
WSLOT = 12288; NWS = 7
LDS_TOTAL = WBASE + WSLOT * NWS
ORH = 98304
KVS = 544
KV0 = 32768; KV1 = 147456 - 11 * KVS
WS_KV = 4 << 20
KVH = 1152
WS_FLG = (4 << 20) + 65536
WS_CNT = WS_FLG + 256 * 128
STAMP_OFF = 128 << 20
NSTAMP = args.stamps
S_PTR = 4; S_WS = 20; S_FLG = 22; S_SEQ = 23
SRD_X = 24; SRD_W = 28; SRD_WO = 32; SRD_OUT = 36; SRD_WS = 40
S_DBG = 44
S_BR = 46; S_RB = 47; S_HG = 48; S_RB2 = 49; S_CB = 50; S_WV = 51; S_J = 52; S_XQ = 53
S_XB = 54; S_XH = 55; S_WB = 56
S_T0 = 57; S_T1 = 58; S_T2 = 59; S_T3 = 60; S_IT = 61
S_M0 = 62; S_M1 = 64
S_XO = 66; S_WO = 67
S_C0 = 68; S_C1 = 69; S_C2 = 70; S_C3 = 71
S_OB = 72; S_SPIN = 73; S_STB = 74
S_ST = 76
S_CH = 12
S_A0 = 16; S_A1 = 17; S_A2 = 18; S_A3 = 19
S_Q = 4
S_HH = 54; S_RH = 55; S_XH2 = 56

def sreg(i): return S_ST + 2 * (i if i < 12 else i - 6)
def stamp(i):
    if i < NSTAMP: A(f"  s_memrealtime s[{sreg(i)}:{sreg(i)+1}]")
def stamp_flush(idxs, vtmp):
    if not NSTAMP: return
    A(f"  s_waitcnt lgkmcnt(0)\n  s_mov_b64 exec, 1\n  v_mov_b32 v{vtmp+2}, 0")
    for i in idxs:
        if i < NSTAMP:
            A(f"  v_mov_b32 v{vtmp}, s{sreg(i)}\n  v_mov_b32 v{vtmp+1}, s{sreg(i)+1}")
            A(f"  global_store_dwordx2 v{vtmp+2}, v[{vtmp}:{vtmp+1}], s[{S_STB}:{S_STB+1}] offset:{8*i}\n  s_nop 1")
    A("  s_mov_b64 exec, -1")
def spin(lbl_out):
    return f"  s_add_u32 s{S_SPIN}, s{S_SPIN}, 1\n  s_cmp_gt_u32 s{S_SPIN}, {SPINMAX}\n  s_cbranch_scc1 {lbl_out}"
def cvt(d, a):
    A(f"  v_cvt_pk_bf16_f32 v{d}, v{a}, v{a+1}\n  v_cvt_pk_bf16_f32 v{d+1}, v{a+2}, v{a+3}")
def quarters():
    for i in range(4):
        A(f"  s_add_u32 s{S_T0}, s{S_CB}, {i}\n  s_and_b32 s{S_T0}, s{S_T0}, 3\n  s_lshl_b32 s{S_Q+i}, s{S_T0}, 12")

A(f"; @launch grid=(256,1,1) block=(768,1,1) lds={LDS_TOTAL}")
A('.amdgcn_target "amdgcn-amd-amdhsa--gfx950"\n.text\n.globl %s\n.p2align 8\n.type %s,@function\n%s:' % (NAME, NAME, NAME))
A("  s_cmp_ge_u32 s2, 256\n  s_cbranch_scc1 L_end")
A(f"  s_load_dwordx16 s[{S_PTR}:{S_PTR+15}], s[0:1], 0\n  s_load_dwordx2 s[{S_WS}:{S_WS+1}], s[0:1], 64")
stamp(0)
if args.diag: A("  s_memrealtime s[98:99]")
A(f"""  v_lshrrev_b32 v1, 6, v0
  v_and_b32 v0, 63, v0
  v_readfirstlane_b32 s{S_WV}, v1
  s_and_b32 s{S_T0}, s2, 7
  s_lshr_b32 s{S_J}, s2, 3
  s_lshr_b32 s{S_BR}, s{S_T0}, 2
  s_and_b32 s{S_XQ}, s{S_T0}, 3
  s_lshr_b32 s{S_T1}, s{S_XQ}, 1
  s_lshl_b32 s{S_T1}, s{S_T1}, 3
  s_lshr_b32 s{S_T2}, s{S_J}, 2
  s_add_u32 s{S_RB}, s{S_T1}, s{S_T2}
  s_and_b32 s{S_T1}, s{S_XQ}, 1
  s_lshl_b32 s{S_T1}, s{S_T1}, 2
  s_and_b32 s{S_CB}, s{S_J}, 3
  s_add_u32 s{S_HG}, s{S_T1}, s{S_CB}
  s_lshl_b32 s{S_T1}, s{S_XQ}, 3
  s_add_u32 s{S_RB2}, s{S_T1}, s{S_T2}
  s_mov_b32 s{S_SPIN}, 0
  s_cmp_lt_u32 s{S_WV}, 8
  s_cbranch_scc1 L_comp""")

VX0 = 1; VX1 = 2; VW = 3; VXH = 4; VWO = 5; VTW = 9; VZ = 10
L_HL = S_C3; L_XL = S_C2; L_WL = S_C1
def seq_pack(l): return sum(x << (4 * i) for i, x in enumerate(l))
o = args.order
A(f"""  s_sub_u32 s{S_WV}, s{S_WV}, 8
  v_lshrrev_b32 v11, 3, v0
  v_and_b32 v12, 7, v0
  v_lshrrev_b32 v13, 4, v0
  v_xor_b32 v14, v12, v13
  v_lshlrev_b32 v14, 4, v14
  v_lshl_add_u32 v{VX0}, v11, 11, v14
  v_xor_b32 v{VX1}, 64, v{VX0}
  v_and_b32 v13, 1, v13
  v_lshlrev_b32 v13, 1, v13
  v_xor_b32 v14, v12, v13
  v_lshlrev_b32 v14, 4, v14
  v_mul_u32_u24 v{VW}, 3072, v11
  v_add_u32 v{VW}, v{VW}, v14
  s_and_b32 s{S_T0}, s{S_WV}, 1
  s_lshl_b32 s{S_T1}, s{S_T0}, 6
  v_xor_b32 v{VW}, s{S_T1}, v{VW}
  v_xor_b32 v{VXH}, s{S_T1}, v{VX0}
  s_lshl_b32 s{S_XB}, s{S_RB}, 17
  s_sub_u32 s{S_XH}, s{S_XB}, 16384
  s_max_i32 s{S_XH}, s{S_XH}, 0
  s_lshl_b32 s{L_HL}, s{S_T0}, 10
  s_add_u32 s{S_XH}, s{S_XH}, s{L_HL}
  s_lshl_b32 s{S_T1}, s{S_WV}, 15
  s_add_u32 s{S_XB}, s{S_XB}, s{S_T1}
  s_lshl_b32 s{L_XL}, s{S_WV}, 12
  s_add_u32 s{L_XL}, s{L_XL}, 2048
  s_lshl_b32 s{S_WB}, s{S_HG}, 7
  s_mul_i32 s{S_T1}, s{S_WV}, 24576
  s_add_u32 s{S_WB}, s{S_WB}, s{S_T1}
  s_lshl_b32 s{L_WL}, s{S_WV}, 10
  s_add_u32 s{L_WL}, s{L_WL}, {WBASE}""")
def order_code(o, reg):
    if o == "plain":
        A(f"  s_mov_b32 s{reg}, {hex(seq_pack(range(8)))}")
    elif o == "rot8":
        A(f"""  s_lshl_b32 s{S_T1}, s{S_CB}, 1
  s_add_u32 s{S_T1}, s{S_T1}, s{S_T2}
  s_and_b32 s{S_T1}, s{S_T1}, 7
  s_mul_i32 s{S_T1}, s{S_T1}, 0x11111111
  s_add_u32 s{reg}, s{S_T1}, {hex(seq_pack(range(8)))}
  s_and_b32 s{reg}, s{reg}, 0x77777777""")
    elif o.startswith("g2"):
        seqs = {"g2a": "a0 a1 b0 a2 b1 a3 b2 b3", "g2b": "a0 a1 a2 a3 b0 b1 b2 b3", "g2c": "a0 b0 a1 b1 a2 b2 a3 b3", "g2d": "a0 a1 a2 b0 b1 a3 b2 b3"}
        l = [2 * int(x[1]) + (x[0] == 'b') for x in seqs[o].split()]
        A(f"  s_add_u32 s{S_T1}, s{S_T2}, s{S_CB}\n  s_and_b32 s{S_T1}, s{S_T1}, 1\n  s_mul_i32 s{S_T1}, s{S_T1}, 0x11111111\n  s_xor_b32 s{reg}, s{S_T1}, {hex(seq_pack(l))}")
    elif o.startswith("g4"):
        seqs = {"g4a": "00 01 02 10 03 11 12 13", "g4b": "00 10 01 02 03 11 12 13", "g4c": "00 01 10 02 03 11 12 13", "g4d": "00 01 02 03 10 11 12 13"}
        l = [4 * int(x[0]) + int(x[1]) for x in seqs[o].split()]
        A(f"  s_add_u32 s{S_T1}, s{S_T2}, s{S_CB}\n  s_and_b32 s{S_T1}, s{S_T1}, 3\n  s_mul_i32 s{S_T1}, s{S_T1}, 0x11111111\n  s_xor_b32 s{reg}, s{S_T1}, {hex(seq_pack(l))}")
oa, ob = (o.split(",") + [o])[:2]
order_code(oa, S_SEQ)
if ob != oa:
    order_code(ob, S_IT)
    A(f"  s_cmp_eq_u32 s{S_BR}, 0\n  s_cselect_b32 s{S_SEQ}, s{S_SEQ}, s{S_IT}")
def build_srds():
    A(f"""  s_waitcnt lgkmcnt(0)
  s_cmp_eq_u32 s{S_BR}, 0
  s_cselect_b32 s{SRD_X}, s{S_PTR+0}, s{S_PTR+6}
  s_cselect_b32 s{SRD_X+1}, s{S_PTR+1}, s{S_PTR+7}
  s_cselect_b32 s{SRD_W}, s{S_PTR+2}, s{S_PTR+8}
  s_cselect_b32 s{SRD_W+1}, s{S_PTR+3}, s{S_PTR+9}
  s_mov_b32 s{SRD_X+2}, 0x200000
  s_mov_b32 s{SRD_X+3}, 0x20000
  s_mov_b32 s{SRD_W+2}, 0x180000
  s_mov_b32 s{SRD_W+3}, 0x20000""")
def build_srds2():
    A(f"""  s_cmp_eq_u32 s{S_BR}, 0
  s_cselect_b32 s{SRD_WO}, s{S_PTR+4}, s{S_PTR+10}
  s_cselect_b32 s{SRD_WO+1}, s{S_PTR+5}, s{S_PTR+11}
  s_mov_b32 s{SRD_WO+2}, 0x80000
  s_mov_b32 s{SRD_WO+3}, 0x20000
  s_mov_b32 s{SRD_OUT}, s{S_PTR+12}
  s_mov_b32 s{SRD_OUT+1}, s{S_PTR+13}
  s_mov_b32 s{SRD_OUT+2}, 0x400000
  s_mov_b32 s{SRD_OUT+3}, 0x20000
  s_mov_b32 s{SRD_WS}, s{S_WS}
  s_mov_b32 s{SRD_WS+1}, s{S_WS+1}
  s_mov_b32 s{SRD_WS+2}, 0x500000
  s_mov_b32 s{SRD_WS+3}, 0x20000
  s_mov_b32 s{S_DBG}, s{S_PTR+14}
  s_mov_b32 s{S_DBG+1}, s{S_PTR+15}""")
    if NSTAMP:
        A(f"""  s_add_u32 s{S_STB}, s{S_WS}, {STAMP_OFF}
  s_addc_u32 s{S_STB+1}, s{S_WS+1}, 0
  s_mul_i32 s{S_T1}, s2, {8*NSTAMP}
  s_add_u32 s{S_STB}, s{S_STB}, s{S_T1}
  s_addc_u32 s{S_STB+1}, s{S_STB+1}, 0""")
build_srds()
curg = [0]
def dma(vo, srd, sreg, imm, lreg, limm, extra=""):
    if "noload" in args.dbg and srd in (SRD_X, SRD_W): return
    if srd in (SRD_X, SRD_W) and args.ldf and curg[0] < args.ldn: extra = " " + args.ldf.replace("_", " ")
    A(f"  s_add_u32 s{S_T1}, s{sreg}, {imm}\n  s_add_u32 m0, s{lreg}, {limm}\n  s_waitcnt vmcnt({args.maxfl-1})\n  buffer_load_dwordx4 v{vo}, s[{srd}:{srd+3}], s{S_T1} offen{extra} lds")
D = args.D
def gsize(g): return 8 if g == 0 else (3 if g == 15 else (6 if g & 1 else 5))
def xops(t, which):
    xl = (t % NXS) * XSLOT
    A(f"  s_lshr_b32 s{S_T0}, s{S_SEQ}, {4*t}\n  s_and_b32 s{S_T0}, s{S_T0}, 7\n  s_lshl_b32 s{S_T0}, s{S_T0}, 7\n  s_add_u32 s{S_T3}, s{S_T0}, s{S_XB}")
    lst = [(p, m) for p in range(2) for m in range(2)]
    for i in which:
        if i < 4:
            p, m = lst[i]
            dma(VX0 if m == 0 else VX1, SRD_X, S_T3, (p + 16 * m) * 1024, L_XL, xl + p * 2048 + m * 1024)
        else:
            A(f"  s_add_u32 s{S_C0}, s{S_T0}, s{S_XH}")
            dma(VXH, SRD_X, S_C0, 0, L_HL, xl)
def issue_group(g):
    curg[0] = g
    t = g >> 1
    if g > 0 and g & 1 == 0: xops(t, [3, 4])
    A(f"""  s_lshr_b32 s{S_T0}, s{S_SEQ}, {4*t}
  s_and_b32 s{S_T0}, s{S_T0}, 7
  s_mul_i32 s{S_T2}, s{S_T0}, 196608
  s_add_u32 s{S_T2}, s{S_T2}, s{S_WB}""")
    wl = (g % NWS) * WSLOT
    for seg in range(3): dma(VW, SRD_W, S_T2, (g & 1) * 32 * 3072 + seg * 1024, L_WL, wl + seg * 4096)
    if g == 0: xops(0, [0, 1, 2, 3, 4])
    elif g & 1 and g < 15: xops(t + 1, [0, 1, 2])
    if g == 2 * args.touch + 1:
        A(f"""  v_lshlrev_b32 v{VTW}, 7, v0
  s_lshl_b32 s{S_T1}, s{S_J}, 14
  s_lshl_b32 s{S_T0}, s{S_WV}, 12
  s_add_u32 s{S_T1}, s{S_T1}, s{S_T0}
  s_mov_b32 exec_hi, 0
  buffer_load_dword v11, v{VTW}, s[{SRD_WO}:{SRD_WO+3}], s{S_T1} offen
  s_mov_b64 exec, -1""")
        return 1
    return 0
XC = lambda i: i * XSLOT + 2048
chunks = [[XC(0), 98304], [114688, XC(1)], [131072, XC(2)], [XC(3), WBASE]]
freeat = [11, 12, 14, 16]
def chunk_sel(bitreg):
    A(f"  s_cmp_eq_u32 s{bitreg}, 0")
    for i in range(4): A(f"  s_mov_b32 s{S_CH+i}, {chunks[i][1]}\n  s_cselect_b32 s{S_CH+i}, {chunks[i][0]}, s{S_CH+i}")
def lsetup():
    build_srds2()
    A(f"  s_and_b32 s{S_T2}, s{S_WV}, 1")
    chunk_sel(S_T2)
    quarters()
    A(f"""  v_lshrrev_b32 v11, 3, v0
  v_and_b32 v12, 7, v0
  v_bfe_u32 v13, v0, 4, 1
  v_lshlrev_b32 v13, 2, v13
  v_xor_b32 v12, v12, v13
  v_lshlrev_b32 v12, 4, v12
  v_lshl_add_u32 v{VWO}, v11, 10, v12
  s_lshl_b32 s{S_A0}, s{S_CB}, 8
  s_lshl_b32 s{S_T0}, s{S_T2}, 7
  s_add_u32 s{S_A0}, s{S_A0}, s{S_T0}
  s_lshr_b32 s{S_T0}, s{S_WV}, 1
  s_lshl_b32 s{S_T1}, s{S_T0}, 16
  s_add_u32 s{S_A0}, s{S_A0}, s{S_T1}
  s_lshl_b32 s{S_T0}, s{S_T0}, 13
  s_add_u32 s{S_CH}, s{S_CH}, s{S_T0}
  s_add_u32 s{S_CH+1}, s{S_CH+1}, s{S_T0}
  s_add_u32 s{S_CH+2}, s{S_CH+2}, s{S_T0}
  s_add_u32 s{S_CH+3}, s{S_CH+3}, s{S_T0}
  s_lshl_b32 s{S_FLG}, s{S_BR}, 7
  s_lshl_b32 s{S_T1}, s{S_RB}, 3
  s_add_u32 s{S_FLG}, s{S_FLG}, s{S_T1}
  s_add_u32 s{S_FLG}, s{S_FLG}, s{S_HG}
  s_lshl_b32 s{S_FLG}, s{S_FLG}, 7
  s_add_u32 s{S_FLG}, s{S_FLG}, {WS_FLG}
  v_mov_b32 v8, 1
  v_mov_b32 v15, 0
  v_and_b32 v{VZ}, 7, v0
  v_lshlrev_b32 v{VZ}, 2, v{VZ}
  v_lshlrev_b32 v6, 7, v0
  v_lshlrev_b32 v7, 4, v0""")
def wo_group(i):
    A(f"  s_lshl_b32 s{S_T0}, s{S_Q+i}, 5\n  s_add_u32 s{S_T2}, s{S_T0}, s{S_A0}")
    for k in range(8): dma(VWO, SRD_WO, S_T2, k * 8192, S_CH + i, k * 1024)
sizes = []
def outstanding_after(kid):
    idx = [i for i, x in enumerate(sizes) if (x[0], x[1]) == kid][0]
    return sum(x[2] for x in sizes[idx + 1:])
def do_group(g):
    e = issue_group(g); sizes.append(("g", g, gsize(g))); sizes.append(("t", g, e))
if args.atouch:
    A(f"""  s_cmp_lg_u32 s{S_BR}, 0
  s_cbranch_scc1 L_notch
  v_and_b32 v11, 31, v0
  v_lshlrev_b32 v11, 10, v11
  v_lshrrev_b32 v12, 5, v0
  v_lshl_add_u32 v11, v12, 7, v11
  s_lshr_b32 s{S_T0}, s{S_XQ}, 1
  s_lshl_b32 s{S_T0}, s{S_T0}, 20
  s_lshl_b32 s{S_T1}, s{S_J}, 15
  s_add_u32 s{S_T0}, s{S_T0}, s{S_T1}
  s_lshl_b32 s{S_T1}, s{S_WV}, 8
  s_add_u32 s{S_T0}, s{S_T0}, s{S_T1}
  v_lshrrev_b32 v12, 2, v0
  v_mul_u32_u24 v12, 3072, v12
  v_and_b32 v13, 3, v0
  v_lshl_add_u32 v12, v13, 7, v12
  s_mul_i32 s{S_T1}, s{S_J}, {16*3072}
  s_and_b32 s{S_T2}, s{S_XQ}, 1
  s_lshl_b32 s{S_T2}, s{S_T2}, 9
  s_add_u32 s{S_T1}, s{S_T1}, s{S_T2}
  s_min_u32 s{S_T2}, s{S_WV}, 2
  s_lshl_b32 s{S_T2}, s{S_T2}, 10
  s_add_u32 s{S_T1}, s{S_T1}, s{S_T2}""")
    R = args.atouch
    masks = {1: [(-1, -1)], 2: [(-1, 0), (0, -1)], 3: [(0xffff, 0), (0xffff0000, 0), (0, -1)], 4: [(0xffff, 0), (0xffff0000, 0), (0, 0xffff), (0, 0xffff0000)]}[R]
    for lo, hi in masks:
        A(f"""  s_mov_b32 exec_lo, {hex(lo & 0xffffffff)}
  s_mov_b32 exec_hi, {hex(hi & 0xffffffff)}
  buffer_load_dword v13, v11, s[{SRD_X}:{SRD_X+3}], s{S_T0} offen
  buffer_load_dword v14, v12, s[{SRD_W}:{SRD_W+3}], s{S_T1} offen
  s_waitcnt vmcnt(0)""")
    A("  s_mov_b64 exec, -1\nL_notch:")
for g in range(args.D0): do_group(g)
lsetup()
nxt = args.D0
for bq in range(17):
    if bq < 16: A(f"  s_waitcnt vmcnt({min(63, outstanding_after(('g', bq)))})")
    A("  s_barrier")
    while nxt < 16 and nxt <= bq + D - 1 and nxt <= bq + 5 and (nxt <= bq + args.D0 or bq >= args.ramp):
        do_group(nxt); nxt += 1
    for i in range(4):
        if freeat[i] == bq: wo_group(i); sizes.append(("w", i, 8))
stamp(6)
def init_check(tag, v, vz):
    A(f"""  s_mov_b32 s{S_T1}, 0x01010101
L_ic{tag}:
  s_waitcnt vmcnt(0)
  v_cmp_ne_u32 vcc, s{S_T1}, v{v}
  s_nop 3
  s_cmp_eq_u64 vcc, 0
  s_cbranch_scc1 L_id{tag}
{spin(f"L_id{tag}")}
  s_sleep 4
  global_load_dword v{v}, v{vz}, s[{S_DBG}:{S_DBG+1}] sc1
  s_branch L_ic{tag}
L_id{tag}:""")
def poll(tag, voff, sreg, val=1):
    A(f"""L_pl{tag}:
  buffer_load_dword v16, v{voff}, s[{SRD_WS}:{SRD_WS+3}], s{sreg} offen sc1
  s_waitcnt vmcnt(0)
  v_cmp_ne_u32 vcc, {val}, v16
  s_and_b64 exec, exec, vcc
  s_cbranch_execz L_po{tag}
{spin(f"L_po{tag}")}
  s_sleep {args.psleep}
  s_branch L_pl{tag}
L_po{tag}:
  s_mov_b64 exec, -1""")
A("  s_barrier")
A(f"""  s_cmp_lg_u32 s{S_WV}, 0
  s_cbranch_scc1 L_nofl
  s_mov_b64 exec, 1
  buffer_store_dword v8, v15, s[{SRD_WS}:{SRD_WS+3}], s{S_FLG} offen sc1
  s_mov_b64 exec, -1
  s_waitcnt vmcnt({outstanding_after(('w', 1)) + 1})
  s_branch L_fl2
L_nofl:
  s_waitcnt vmcnt({outstanding_after(('w', 1))})
L_fl2:
  s_barrier""")
stamp(7)
A(f"""  s_cmp_lg_u32 s{S_WV}, 0
  s_cbranch_scc1 L_await
  s_lshr_b32 s{S_T1}, s{S_RB2}, 1
  s_lshl_b32 s{S_T1}, s{S_T1}, 10
  s_lshl_b32 s{S_T0}, s{S_BR}, 14
  s_add_u32 s{S_T1}, s{S_T1}, s{S_T0}
  s_add_u32 s{S_T1}, s{S_T1}, {WS_FLG}
  s_mov_b64 exec, 0xff""")
poll("R", 6, S_T1)
A(f"""L_await:
  s_lshl_b32 s{S_T3}, s{S_RB2}, 16
  s_lshl_b32 s{S_T0}, s{S_WV}, 14
  s_add_u32 s{S_T3}, s{S_T3}, s{S_T0}
  s_and_b32 s{S_T2}, s{S_WV}, 1
  s_lshl_b32 s{S_T2}, s{S_T2}, 14
  s_lshr_b32 s{S_T0}, s{S_WV}, 1
  s_mul_i32 s{S_T0}, s{S_T0}, {ORH}
  s_add_u32 s{S_T2}, s{S_T2}, s{S_T0}
  s_waitcnt vmcnt(0)
  s_barrier""")
def lfin():
    if NSTAMP:
        A(f"  s_cmp_lg_u32 s{S_WV}, 0\n  s_cbranch_scc1 L_end")
        stamp_flush([6, 7, 8], 12)
    A("  s_endpgm")
A(f"  s_cmp_eq_u32 s{S_BR}, 0\n  s_cbranch_scc1 L_oload")
A(f"""  s_mov_b32 s{S_T1}, {WS_FLG + 128*128}
  s_mov_b32 s{S_T2}, {WS_FLG + 192*128}
  v_lshrrev_b32 v11, 2, v0
  v_lshlrev_b32 v11, 4, v11
  v_bfe_u32 v12, v0, 1, 1
  v_lshl_add_u32 v11, v12, 8, v11
  v_and_b32 v12, 1, v0
  v_lshl_add_u32 v11, v12, 3, v11
  s_lshl_b32 s{S_A0}, s{S_WV}, 3
  s_mul_i32 s{S_A1}, s{S_A0}, {KVH}
  s_add_u32 s{S_A1}, s{S_A1}, {WS_KV}
  v_bfe_u32 v12, v0, 2, 3
  v_mul_u32_u24 v13, {KVH}, v12
  v_and_b32 v14, 3, v0
  v_lshl_add_u32 v13, v14, 4, v13
  v_add_u32 v13, 1024, v13
  v_add_u32 v12, s{S_A0}, v12              ; head
  v_mul_u32_u24 v20, {KVS}, v12
  v_lshl_add_u32 v20, v14, 3, v20
  v_add_u32 v20, {KV0 + 512}, v20
  v_add_u32 v21, {KV1 - KV0}, v20
  v_cmp_lt_u32 vcc, 10, v12
  s_nop 1
  v_cndmask_b32 v20, v20, v21, vcc""")
A(f"  s_lshl_b32 s{S_A2}, s{S_WV}, 10\n  s_add_u32 s{S_A2}, s{S_A2}, {WS_CNT}\n  s_mov_b64 exec, 0xff")
poll("K", 6, S_A2, 16)
stamp(8)
for h in range(8):
    r = 24 + h * 4
    A(f"  s_add_u32 s{S_T1}, s{S_A1}, {h*KVH}\n  buffer_load_dwordx4 v[{r}:{r+3}], v7, s[{SRD_WS}:{SRD_WS+3}], s{S_T1} offen {args.cl}")
A(f"  buffer_load_dwordx4 v[56:59], v13, s[{SRD_WS}:{SRD_WS+3}], s{S_A1} offen {args.cl}")
for h in range(8):
    r = 24 + h * 4
    A(f"""  s_add_u32 s{S_T0}, s{S_A0}, {h}
  s_mul_i32 s{S_T1}, s{S_T0}, {KVS}
  s_cmp_lt_u32 s{S_T0}, 11
  s_cselect_b32 s{S_T0}, 0, {KV1-KV0}
  s_add_u32 s{S_T1}, s{S_T1}, s{S_T0}
  s_add_u32 s{S_T1}, s{S_T1}, {KV0}
  v_add_u32 v{60+h}, s{S_T1}, v11""")
for h in range(8):
    r = 24 + h * 4
    A(f"  s_waitcnt vmcnt({8-h})")
    cvt(r, r)
    A(f"  ds_write_b64 v{60+h}, v[{r}:{r+1}]")
A("  s_waitcnt vmcnt(0)")
cvt(56, 56)
A("  ds_write_b64 v20, v[56:57]\n  s_waitcnt lgkmcnt(0)\n  s_barrier")
if NSTAMP: A("  s_barrier")
lfin()
A("L_oload:")
stamp(8)
def oloads(i):
    A(f"  s_add_u32 s{S_A0}, s{S_T3}, s{S_Q+i}\n  s_add_u32 s{S_A1}, s{S_T2}, s{S_Q+i}")
    for h in range(4):
        A(f"  s_add_u32 s{S_T1}, s{S_A0}, {h*1024}\n  s_add_u32 m0, s{S_A1}, {h*1024}\n  s_nop 0\n  buffer_load_dwordx4 v7, s[{SRD_WS}:{SRD_WS+3}], s{S_T1} offen {args.cl} lds")
oloads(0)
A("  s_waitcnt vmcnt(0)")
oloads(1)
A("  s_barrier")
oloads(2); oloads(3)
for i in (1, 2, 3): A(f"  s_waitcnt vmcnt({4*(3-i)})\n  s_barrier")
lfin()

V_XA = 1; V_WA = 2; V_XA1 = 3; V_ONE = 4; V_OA = 5; V_X0C = 6; V_X1C = 13; V_WC = 14; V_IFA = 15
V_IF = 160; V_DUM = 161; V_NC = 162; V_ONESB = 164
A("L_comp:")
A(f"  s_and_b32 s{S_HH}, s{S_WV}, 3\n  s_lshr_b32 s{S_RH}, s{S_WV}, 2")
if args.codepf:
    A(f"""  s_getpc_b64 s[{S_M0}:{S_M0+1}]
L_pcref:
  s_sub_u32 s{S_M0}, s{S_M0}, L_pcref-{NAME}
  s_subb_u32 s{S_M0+1}, s{S_M0+1}, 0
  s_lshl_b32 s{S_T0}, s{S_J}, 3
  s_add_u32 s{S_T0}, s{S_T0}, s{S_WV}
  s_lshl_b32 s{S_T0}, s{S_T0}, 7
  s_min_u32 s{S_T0}, s{S_T0}, (L_codeend-{NAME}-4)&0xfffffffc
  v_mov_b32 v7, s{S_T0}
  s_mov_b64 exec, 1
  global_load_dword v{V_DUM}, v7, s[{S_M0}:{S_M0+1}]
  s_mov_b64 exec, -1""")
A(f"""  v_and_b32 v7, 15, v0
  v_lshrrev_b32 v8, 4, v0
  v_lshrrev_b32 v9, 1, v7
  v_xor_b32 v9, v9, v8
  v_lshlrev_b32 v9, 4, v9
  v_lshl_add_u32 v{V_XA}, v7, 7, v9
  v_lshrrev_b32 v9, 2, v7
  v_lshl_add_u32 v9, v8, 3, v9
  v_lshrrev_b32 v10, 1, v9
  v_and_b32 v10, 1, v10
  v_and_b32 v11, 1, v8
  v_lshl_or_b32 v10, v11, 1, v10
  v_xor_b32 v10, s{S_HH}, v10
  v_lshlrev_b32 v10, 5, v10
  v_lshl_add_u32 v10, v9, 7, v10
  v_and_b32 v11, 3, v7
  v_lshl_add_u32 v{V_WA}, v11, 3, v10
  v_add_u32 v{V_WA}, {WBASE}, v{V_WA}
  v_mov_b32 v{V_ONE}, 1
  s_lshl_b32 s{S_T0}, s{S_HG}, 2
  s_add_u32 s{S_T0}, s{S_T0}, s{S_HH}
  s_lshl_b32 s{S_OB}, s{S_T0}, 9
  s_lshl_b32 s{S_T1}, s{S_RB}, 17
  s_add_u32 s{S_OB}, s{S_OB}, s{S_T1}
  s_lshl_b32 s{S_T1}, s{S_BR}, 21
  s_add_u32 s{S_OB}, s{S_OB}, s{S_T1}
  s_mul_i32 s{S_C3}, s{S_T0}, {KVH}
  s_add_u32 s{S_C3}, s{S_C3}, {WS_KV}
  s_lshl_b32 s{S_XH2}, s{S_T0}, 7
  s_add_u32 s{S_XH2}, s{S_XH2}, {WS_CNT}
  s_lshl_b32 s{S_FLG}, s{S_BR}, 7
  s_lshl_b32 s{S_T1}, s{S_RB}, 3
  s_add_u32 s{S_FLG}, s{S_FLG}, s{S_T1}
  s_add_u32 s{S_FLG}, s{S_FLG}, s{S_HG}
  s_lshl_b32 s{S_FLG}, s{S_FLG}, 7
  s_add_u32 s{S_FLG}, s{S_FLG}, {WS_FLG}
  s_lshl_b32 s{S_T1}, s{S_WV}, 2
  s_add_u32 s{S_FLG}, s{S_FLG}, s{S_T1}
  v_and_b32 v9, 1, v8
  v_lshlrev_b32 v9, 14, v9
  v_lshrrev_b32 v10, 1, v8
  v_lshl_add_u32 v9, v10, 8, v9
  v_lshl_add_u32 v{V_OA}, v7, 4, v9
  v_and_b32 v{V_IFA}, 7, v0
  v_lshlrev_b32 v{V_IFA}, 2, v{V_IFA}
  s_mov_b32 s{S_IT}, 0
  s_mov_b32 s{S_XO}, 0
  s_mov_b32 s{S_WO}, 0
  v_mov_b32 v{V_WC}, v{V_WA}
  s_waitcnt lgkmcnt(0)""")
build_srds2()
if args.tlb:
    A(f"""  s_cmp_lg_u32 s{S_WV}, 7
  s_cbranch_scc1 L_notlb
  v_mov_b32 v9, 0
  s_lshl_b32 s{S_T0}, s{S_RB2}, 17
  s_lshl_b32 s{S_T1}, s{S_RB2}, 16
  s_lshl_b32 s{S_T2}, s{S_BR}, 21
  s_add_u32 s{S_T1}, s{S_T1}, s{S_T2}
  s_mov_b64 exec, 1
  buffer_load_dword v{V_DUM}, v9, s[{SRD_WS}:{SRD_WS+3}], s{S_OB} offen sc1
  buffer_load_dword v{V_DUM}, v9, s[{SRD_WS}:{SRD_WS+3}], s{S_FLG} offen sc1
  buffer_load_dword v{V_DUM}, v9, s[{SRD_OUT}:{SRD_OUT+3}], s{S_T0} offen sc1
  buffer_load_dword v{V_DUM}, v9, s[{SRD_WO}:{SRD_WO+3}], 0 offen
  s_mov_b64 exec, -1
L_notlb:""")
A(f"  s_cmp_eq_u32 s{S_BR}, 0\n  s_cbranch_scc0 L_compB")

wadv_c = [f"  s_add_u32 s{S_WO}, s{S_WO}, {WSLOT}", f"  s_cmp_eq_u32 s{S_WO}, {WSLOT*NWS}", f"  s_cselect_b32 s{S_WO}, 0, s{S_WO}", f"  v_add_u32 v{V_WC}, s{S_WO}, v{V_WA}"]
xadv_c = [f"  s_add_u32 s{S_XO}, s{S_XO}, {XSLOT}", f"  s_cmp_eq_u32 s{S_XO}, {XSLOT*NXS}", f"  s_cselect_b32 s{S_XO}, 0, s{S_XO}",
          f"  v_add_u32 v{V_X0C}, s{S_XO}, v{V_XA}", f"  v_add_u32 v{V_X1C}, s{S_XO}, v{V_XA1}"]
def mainloop(tag, reads, mfmas, extra_adv, tail, bpos):
    A("  s_barrier")
    stamp(1)
    if "cyc" in args.dbg: A(f"  s_memtime s[{sreg(12)}:{sreg(12)+1}]")
    for x in reads(0, 0): A(x)
    for kk in range(2):
        A(f"L_s{kk}{tag}:\n  s_waitcnt lgkmcnt(0)")
        m = mfmas(kk)
        adv = list(wadv_c) + (xadv_c + extra_adv if kk == 1 else [])
        r = reads(1 - kk, 1 - kk)
        if "noreads" in args.dbg: r = []
        ai = 0
        for i in range(bpos):
            A(m[i])
            want = min(len(adv), ((i + 1) * len(adv) + bpos - 2) // max(1, bpos - 1))
            while ai < want: A(adv[ai]); ai += 1
        A("  s_barrier")
        ri = 0; nm = len(m) - bpos
        for i, x in enumerate(m[bpos:]):
            want = min(len(r), ((i + 1) * len(r) + nm - 3) // max(1, nm - 2))
            while ri < want: A(r[ri]); ri += 1
            A(x)
        while ri < len(r): A(r[ri]); ri += 1
    tail()
    A(f"  s_add_u32 s{S_IT}, s{S_IT}, 1\n  s_cmp_lt_u32 s{S_IT}, 8\n  s_cbranch_scc1 L_s0{tag}")
    A(f"  global_load_dword v{V_IF}, v{V_IFA}, s[{S_DBG}:{S_DBG+1}] sc1")
    stamp(2)
    if "cyc" in args.dbg: A(f"  s_memtime s[{sreg(13)}:{sreg(13)+1}]")
    A("  s_waitcnt lgkmcnt(0)")
def trr(d, seg): return [f"  ds_read_b64_tr_b16 v[{d}:{d+1}], v{V_WC} offset:{seg*4096}", f"  ds_read_b64_tr_b16 v[{d+2}:{d+3}], v{V_WC} offset:{seg*4096 + 512}"]
def mm(acc, a, b): return f"  v_mfma_f32_16x16x32_bf16 v[{acc}:{acc+3}], v[{a}:{a+3}], v[{b}:{b+3}], v[{acc}:{acc+3}]"
def store_frags(src, nt, dst):
    for t in range(nt):
        d = dst + 4 * t
        cvt(d, src(2 * t)); cvt(d + 2, src(2 * t + 1))
    A("  s_nop 1")
    for t in range(nt):
        d = dst + 4 * t
        A(f"  v_permlane16_swap_b32 v{d}, v{d+2}\n  v_permlane16_swap_b32 v{d+1}, v{d+3}")
    for t in range(nt):
        d = dst + 4 * t
        A(f"  s_add_u32 s{S_T0}, s{S_OB}, {t*32768}")
        A(f"  buffer_store_dwordx4 v[{d}:{d+3}], v{V_OA}, s[{SRD_WS}:{SRD_WS+3}], s{S_T0} offen sc1")

ACC = 16
AQ = lambda b: ACC + 4 * b
AK = lambda b: ACC + 16 + 4 * b
AV = lambda b: ACC + 36 + 4 * b
FX = lambda buf, b: 72 + 32 * buf + 4 * b
FW = lambda buf, seg: 72 + 32 * buf + 20 + 4 * seg
V_HA = 136; V_H0C = 137; V_H1C = 138
MK = 140; MK0 = 144; V_HI = 148; V_PV = 149; V_ONES = 150
A(f"""  v_mov_b32 v{V_HA}, v{V_XA}
  s_cmp_eq_u32 s{S_RH}, 0
  s_cbranch_scc1 L_h0ok
  v_or_b32 v10, 8, v7
  v_lshrrev_b32 v9, 1, v10
  v_xor_b32 v9, v9, v8
  v_lshlrev_b32 v9, 4, v9
  v_lshl_add_u32 v9, v10, 7, v9
  v_lshrrev_b32 v10, 3, v7
  v_lshlrev_b32 v10, 11, v10
  v_add_u32 v9, v9, v10
  v_add_u32 v{V_HA}, {2048*3}, v9
L_h0ok:
  s_lshl_b32 s{S_T0}, s{S_RH}, 13
  s_add_u32 s{S_T0}, s{S_T0}, 2048
  v_add_u32 v{V_XA}, s{S_T0}, v{V_XA}
  v_xor_b32 v{V_XA1}, 64, v{V_XA}
  v_mov_b32 v{V_X0C}, v{V_XA}
  v_mov_b32 v{V_X1C}, v{V_XA1}
  v_mov_b32 v{V_H0C}, v{V_HA}
  v_xor_b32 v{V_H1C}, 64, v{V_HA}
  s_lshl_b32 s{S_T1}, s{S_RH}, 16
  s_add_u32 s{S_OB}, s{S_OB}, s{S_T1}""")
for r in range(ACC, ACC + 56): A(f"  v_mov_b32 v{r}, 0")
A(f"""  v_lshlrev_b32 v9, 2, v8
  v_sub_u32 v9, v7, v9
  s_mov_b32 s{S_C0}, 0xf149f2ca
  v_mov_b32 v10, s{S_C0}""")
for r in range(4):
    A(f"""  v_subrev_u32 v11, {r}, v9
  v_and_b32 v12, 15, v11
  v_cmp_gt_u32 vcc, 8, v12
  s_nop 1
  v_cndmask_b32 v{MK+r}, v10, 0, vcc
  v_cmp_gt_u32 vcc, 8, v11
  s_nop 1
  v_cndmask_b32 v{MK0+r}, v10, 0, vcc""")
A(f"""  s_or_b32 s{S_T0}, s{S_RB}, s{S_RH}
  s_cmp_eq_u32 s{S_T0}, 0
  s_cbranch_scc1 L_m0
  v_mov_b32 v{MK0}, v{MK}
  v_mov_b32 v{MK0+1}, v{MK+1}
  v_mov_b32 v{MK0+2}, v{MK+2}
  v_mov_b32 v{MK0+3}, v{MK+3}
L_m0:
  v_cmp_lt_u32 s[{S_M0}:{S_M0+1}], 7, v7
  v_cmp_lt_u32 vcc, 1, v8
  s_nop 1
  v_cndmask_b32 v{V_HI}, 0, -1, s[{S_M0}:{S_M0+1}]
  s_andn2_b64 s[{S_M1}:{S_M1+1}], vcc, s[{S_M0}:{S_M0+1}]
  v_mov_b32 v{V_ONES}, 0x3f803f80
  v_mov_b32 v{V_ONES+1}, 0x3f803f80
  v_cndmask_b32 v{V_PV}, 0, -1, s[{S_M1}:{S_M1+1}]
  v_mov_b32 v{V_ONES+2}, 0x3f803f80
  v_mov_b32 v{V_ONES+3}, 0x3f803f80
  s_mov_b32 s{S_C0}, 0x3eb8aa3b""")
def readsA(buf, kk):
    va = V_X0C if kk == 0 else V_X1C
    r = trr(FW(buf, 1), 1) + trr(FW(buf, 2), 2) + trr(FW(buf, 0), 0)
    for b in range(4): r.append(f"  ds_read_b128 v[{FX(buf,b)}:{FX(buf,b)+3}], v{va} offset:{b*2048}")
    r.append(f"  ds_read_b128 v[{FX(buf,4)}:{FX(buf,4)+3}], v{V_H0C if kk == 0 else V_H1C}")
    return r
def mfmasA(buf):
    m = []
    for b in range(4):
        x = FX(buf, b)
        m += [mm(AK(b), FW(buf, 1), x), mm(AV(b), x, FW(buf, 2)), mm(AQ(b), FW(buf, 0), x)]
    x = FX(buf, 4)
    return m + [mm(AK(4), FW(buf, 1), x), mm(AV(4), x, FW(buf, 2))]
mainloop("A", readsA, mfmasA, [f"  v_add_u32 v{V_H0C}, s{S_XO}, v{V_HA}", f"  v_xor_b32 v{V_H1C}, 64, v{V_H0C}"], lambda: None, args.bpos)
K4 = lambda b: 72 + 4 * b
Q4 = lambda b: 88 + 4 * b
VP = lambda p, i: 104 + 6 * p + 2 * i
KH = 116; KH2 = 118; TT = 120
for b in range(4):
    cvt(K4(b), AK(b))
    cvt(VP(b & 1, (b >> 1) + 1), AV(b))
    tt = TT + 2 * (b & 1)
    cvt(tt, AQ(b))
    A(f"  v_and_b32 v{Q4(b)}, v{tt}, v{V_HI}\n  v_and_b32 v{Q4(b)+1}, v{tt+1}, v{V_HI}")
    A(f"  v_xor_b32 v{Q4(b)+2}, v{tt}, v{Q4(b)}\n  v_xor_b32 v{Q4(b)+3}, v{tt+1}, v{Q4(b)+1}")
cvt(KH, AK(4))
cvt(VP(1, 0), AV(4))
A(f"""  s_nop 1
  v_mov_b32_dpp v{KH2}, v{KH} row_ror:8 row_mask:0xf bank_mask:0xf
  v_mov_b32_dpp v{KH2+1}, v{KH+1} row_ror:8 row_mask:0xf bank_mask:0xf
  v_mov_b32 v{VP(0,0)}, v{VP(1,0)}
  v_mov_b32 v{VP(0,0)+1}, v{VP(1,0)+1}
  v_mov_b32 v{TT}, v{VP(1,0)}
  v_mov_b32 v{TT+1}, v{VP(1,0)+1}
  s_nop 1
  v_permlane32_swap_b32 v{VP(0,0)}, v{TT}
  v_permlane32_swap_b32 v{VP(0,0)+1}, v{TT+1}""")
for b in range(4):
    t, p = b >> 1, b & 1
    prev = (KH2 if p == 0 else KH) if t == 0 else K4(p)
    A(f"  v_cndmask_b32 v{K4(b)+2}, v{K4(b)}, v{prev}, s[{S_M0}:{S_M0+1}]\n  v_cndmask_b32 v{K4(b)+3}, v{K4(b)+1}, v{prev+1}, s[{S_M0}:{S_M0+1}]")
A("  s_nop 1")
SS = lambda b: ACC + 4 * b
for b in range(4):
    mk = MK0 if b < 2 else MK
    A(f"  v_mfma_f32_16x16x32_bf16 v[{SS(b)}:{SS(b)+3}], v[{K4(b)}:{K4(b)+3}], v[{Q4(b)}:{Q4(b)+3}], v[{mk}:{mk+3}]")
MX = lambda b: 32 + b
MT = 36
A("  s_nop 7")
for b in range(4): A(f"  v_max3_f32 v{MX(b)}, v{SS(b)}, v{SS(b)+1}, v{SS(b)+2}")
for b in range(4): A(f"  v_max_f32 v{MX(b)}, v{MX(b)}, v{SS(b)+3}")
a, b_, c, d = [MX(i) for i in range(4)]
A(f"""  s_nop 0
  v_permlane32_swap_b32 v{a}, v{b_}
  v_permlane32_swap_b32 v{c}, v{d}
  v_max_f32 v{a}, v{a}, v{b_}
  v_max_f32 v{c}, v{c}, v{d}
  s_nop 1
  v_permlane16_swap_b32 v{a}, v{c}
  v_max_f32 v{a}, v{a}, v{c}
  v_mul_f32 v{a}, s{S_C0}, v{a}
  v_mov_b32 v{c}, v{a}
  s_nop 1
  v_permlane16_swap_b32 v{a}, v{c}
  v_mov_b32 v{b_}, v{a}
  v_mov_b32 v{d}, v{c}
  s_nop 0
  v_permlane32_swap_b32 v{a}, v{b_}
  v_permlane32_swap_b32 v{c}, v{d}""")
for b in range(4):
    for r in range(4): A(f"  v_fma_f32 v{SS(b)+r}, v{SS(b)+r}, s{S_C0}, -v{MX(b)}")
for b in range(4):
    for r in range(4): A(f"  v_exp_f32 v{SS(b)+r}, v{SS(b)+r}")
P4 = lambda b: 40 + 4 * b
for b in range(4):
    tt = MT + 2 * (b & 1)
    cvt(tt, SS(b))
    A(f"  v_and_b32 v{P4(b)}, v{tt}, v{V_PV}\n  v_and_b32 v{P4(b)+1}, v{tt+1}, v{V_PV}")
    A(f"  v_xor_b32 v{P4(b)+2}, v{tt}, v{P4(b)}\n  v_xor_b32 v{P4(b)+3}, v{tt+1}, v{P4(b)+1}")
A("  s_nop 1")
OO = lambda b: 72 + 4 * b
SM = lambda b: 88 + 4 * b
for b in range(4):
    t, p = b >> 1, b & 1
    A(f"  v_mfma_f32_16x16x32_bf16 v[{SM(b)}:{SM(b)+3}], v[{V_ONES}:{V_ONES+3}], v[{P4(b)}:{P4(b)+3}], 0")
    A(f"  v_mfma_f32_16x16x32_bf16 v[{OO(b)}:{OO(b)+3}], v[{VP(p,t)}:{VP(p,t)+3}], v[{P4(b)}:{P4(b)+3}], 0")
A("  s_nop 4")
for b in range(4): A(f"  v_rcp_f32 v{SM(b)}, v{SM(b)}")
for b in range(4):
    for r in (0, 2): A(f"  v_pk_mul_f32 v[{OO(b)+r}:{OO(b)+r+1}], v[{OO(b)+r}:{OO(b)+r+1}], v[{SM(b)}:{SM(b)+1}] op_sel_hi:[1,0]")
store_frags(OO, 2, ACC)
A("  s_branch L_phase2")

A("L_compB:")
A(f"""  s_mov_b32 s{S_C0}, 0x358637bd
  s_mov_b32 s{S_C1}, 0x3fb8aa3b
  s_mov_b32 s{S_C2}, {hex(f2u(-1e-6 * 1.4426950408889634))}
  v_mov_b32 v{V_NC}, s{S_C2}
  v_add_u32 v{V_XA}, 2048, v{V_XA}
  v_xor_b32 v{V_XA1}, 64, v{V_XA}
  v_mov_b32 v{V_X0C}, v{V_XA}
  v_mov_b32 v{V_X1C}, v{V_XA1}""")
for r in range(16, 48): A(f"  v_mov_b32 v{r}, s{S_C0}")
A(f"  s_cmp_lg_u32 s{S_RH}, 0\n  s_cbranch_scc1 L_compQ")
A(f"""  s_cmp_lg_u32 s{S_RB}, 0
  s_cbranch_scc1 L_nozero
  v_mov_b32 v8, 0
  v_mov_b32 v9, 0
  v_mov_b32 v10, 0
  v_mov_b32 v11, 0
  v_lshlrev_b32 v7, 4, v0
  buffer_store_dwordx4 v[8:11], v7, s[{SRD_WS}:{SRD_WS+3}], s{S_C3} offen sc1
  s_mov_b64 exec, 0xff
  buffer_store_dwordx4 v[8:11], v7, s[{SRD_WS}:{SRD_WS+3}], s{S_C3} offen offset:1024 sc1
  s_mov_b64 exec, -1
  s_lshl_b32 s{S_T0}, s{S_HG}, 2
  s_add_u32 s{S_T0}, s{S_T0}, s{S_HH}
  s_mul_i32 s{S_T0}, s{S_T0}, {9*128}
  s_add_u32 s{S_T0}, s{S_T0}, {WS_FLG}
  v_lshlrev_b32 v7, 7, v0
  s_mov_b64 exec, 0x1ff
  buffer_store_dword v8, v7, s[{SRD_WS}:{SRD_WS+3}], s{S_T0} offen sc1
  s_mov_b64 exec, -1
L_nozero:""")
BK = lambda b: 16 + 4 * b
BV = lambda b: 48 + 4 * b
GX = lambda buf, b: 80 + 40 * buf + 4 * b
GW = lambda buf, i: 80 + 40 * buf + 32 + 4 * i
for r in range(48, 80): A(f"  v_mov_b32 v{r}, 0")
for r in range(4): A(f"  v_mov_b32 v{V_ONESB+r}, 0x3f803f80")
def xreads(buf, kk):
    va = V_X0C if kk == 0 else V_X1C
    return [f"  ds_read_b128 v[{GX(buf,b)}:{GX(buf,b)+3}], v{va} offset:{b*2048}" for b in range(8)]
def readsKV(buf, kk): return trr(GW(buf, 0), 1) + trr(GW(buf, 1), 2) + xreads(buf, kk)
def mfmasKV(buf):
    m = []
    for b in range(8): m += [mm(BK(b), GX(buf, b), GW(buf, 0)), mm(BV(b), GX(buf, b), GW(buf, 1))]
    return m
def ack():
    A(f"""  s_or_b32 s{S_T0}, s{S_IT}, s{S_RB}
  s_cmp_lg_u32 s{S_T0}, 0
  s_cbranch_scc1 L_noack
  s_waitcnt vmcnt(0)
  s_lshl_b32 s{S_T0}, s{S_HG}, 2
  s_add_u32 s{S_T0}, s{S_T0}, s{S_HH}
  v_mov_b32 v11, s{S_T0}
  s_mov_b64 exec, 1
  global_store_byte v11, v{V_ONE}, s[{S_DBG}:{S_DBG+1}] sc1
  s_mov_b64 exec, -1
L_noack:""")
mainloop("K", readsKV, mfmasKV, [], ack, args.bpos)
if args.kprio: A("  s_setprio 2")
PK = lambda b: 80 + 2 * b
VV = lambda b: 96 + 2 * b
ET = 112
def phi(acc, n, et):
    for i in range(n): A(f"  v_fma_f32 v{et+i}, v{acc+i}, s{S_C1}, v{V_NC}")
    for i in range(n): A(f"  v_exp_f32 v{et+i}, v{et+i} clamp")
    for i in range(n): A(f"  v_max_f32 v{acc+i}, s{S_C0}, v{acc+i}")
    for i in range(0, n, 2): A(f"  v_pk_add_f32 v[{acc+i}:{acc+i+1}], v[{acc+i}:{acc+i+1}], v[{et+i}:{et+i+1}]")
for b in range(8): cvt(VV(b), BV(b))
phi(BK(0), 32, ET)
for b in range(8): cvt(PK(b), BK(b))
KVA = 144; ZA = 148
A("  s_nop 1")
for i in range(4):
    c = "0" if i == 0 else f"v[{KVA}:{KVA+3}]"
    A(f"  v_mfma_f32_16x16x32_bf16 v[{KVA}:{KVA+3}], v[{VV(2*i)}:{VV(2*i)+3}], v[{PK(2*i)}:{PK(2*i)+3}], {c}")
    c = "0" if i == 0 else f"v[{ZA}:{ZA+3}]"
    A(f"  v_mfma_f32_16x16x32_bf16 v[{ZA}:{ZA+3}], v[{V_ONESB}:{V_ONESB+3}], v[{PK(2*i)}:{PK(2*i)+3}], {c}")
A("""  v_and_b32 v7, 15, v0
  v_lshlrev_b32 v7, 2, v7
  v_lshrrev_b32 v8, 5, v0
  v_lshl_add_u32 v7, v8, 8, v7
  v_bfe_u32 v8, v0, 4, 1
  v_lshl_add_u32 v7, v8, 9, v7""")
init_check("B", V_IF, V_IFA)
A("  s_nop 2")
for r in range(4):
    A(f"  buffer_atomic_add_f32 v{KVA+r}, v7, s[{SRD_WS}:{SRD_WS+3}], s{S_C3} offen offset:{64*r}")
A(f"  s_mov_b64 exec, 0xffff\n  buffer_atomic_add_f32 v{ZA}, v7, s[{SRD_WS}:{SRD_WS+3}], s{S_C3} offen offset:1024\n  s_mov_b64 exec, -1")
A(f"  v_mov_b32 v8, 0\n  s_waitcnt vmcnt(0)\n  s_mov_b64 exec, 1\n  buffer_atomic_add v{V_ONE}, v8, s[{SRD_WS}:{SRD_WS+3}], s{S_XH2} offen\n  s_mov_b64 exec, -1\n  s_mov_b32 s{S_IT}, 99\n  s_setprio 0")
A("  s_branch L_phase2")
A("L_compQ:")
def readsQ(buf, kk): return trr(GW(buf, 0), 0) + xreads(buf, kk)
def mfmasQ(buf): return [mm(BK(b), GW(buf, 0), GX(buf, b)) for b in range(8)]
mainloop("Q", readsQ, mfmasQ, [], lambda: None, min(args.bpos, 2))
A("  s_nop 4")
phi(BK(0), 32, ET)
store_frags(BK, 4, 16)

A("L_phase2:")
stamp(3)
A(f"  s_lshr_b32 s{S_T2}, s{S_HH}, 1")
chunk_sel(S_T2)
quarters()
A(f"""  v_and_b32 v11, 15, v0
  v_lshrrev_b32 v12, 4, v0
  v_lshrrev_b32 v13, 2, v11
  v_lshl_add_u32 v13, v12, 3, v13
  v_and_b32 v14, 3, v11
  v_lshlrev_b32 v14, 4, v14
  v_lshl_add_u32 v14, v13, 7, v14
  v_bfe_u32 v10, v13, 1, 1
  s_and_b32 s{S_T0}, s{S_HH}, 1
  v_xor_b32 v10, s{S_T0}, v10
  v_lshl_add_u32 v6, v10, 6, v14
  v_add_u32 v2, s{S_CH}, v6
  v_add_u32 v3, s{S_CH+1}, v6
  v_lshlrev_b32 v11, 12, v11
  v_lshl_add_u32 v1, v12, 4, v11
  s_lshl_b32 s{S_C2}, s{S_RB2}, 17
  s_lshl_b32 s{S_T0}, s{S_RH}, 16
  s_add_u32 s{S_C2}, s{S_C2}, s{S_T0}
  s_lshl_b32 s{S_T0}, s{S_BR}, 10
  s_add_u32 s{S_C2}, s{S_C2}, s{S_T0}
  s_lshl_b32 s{S_T0}, s{S_CB}, 8
  s_add_u32 s{S_C2}, s{S_C2}, s{S_T0}
  s_lshl_b32 s{S_T0}, s{S_HH}, 6
  s_add_u32 s{S_C2}, s{S_C2}, s{S_T0}
  s_mul_i32 s{S_C3}, s{S_RH}, {ORH}""")
A(f"  s_cmp_eq_u32 s{S_IT}, 99\n  s_cbranch_scc1 L_idP")
init_check("P", V_IF, V_IFA)
stamp(4)
A("  s_barrier\n  s_barrier")
WF = lambda ks, c: 104 + (ks % 8) * 8 + c * 4
def wo_reads(i, va):
    for k in range(4):
        for c in range(2):
            d = WF(4 * i + k, c)
            A(f"  ds_read_b64_tr_b16 v[{d}:{d+1}], v{va} offset:{k*4096 + 8*c}\n  ds_read_b64_tr_b16 v[{d+2}:{d+3}], v{va} offset:{k*4096 + 8*c + 512}")
wo_reads(0, 2); wo_reads(1, 3)
A(f"""  v_lshlrev_b32 v5, 4, v0
  v_add_u32 v5, s{S_C3}, v5
  v_and_b32 v11, 31, v0
  v_lshrrev_b32 v12, 5, v0
  v_lshrrev_b32 v13, 4, v11
  v_lshlrev_b32 v13, 14, v13
  v_lshl_add_u32 v13, v12, 8, v13
  v_and_b32 v14, 15, v11
  v_lshl_add_u32 v7, v14, 4, v13
  v_lshlrev_b32 v13, 4, v14
  v_lshl_add_u32 v13, v12, 8, v13
  v_lshlrev_b32 v10, 4, v12
  v_add_u32 v10, 512, v10
  v_cmp_lt_u32 vcc, 15, v11
  s_nop 1
  v_cndmask_b32 v4, v13, v10, vcc
  s_lshl_b32 s{S_C1}, s{S_RB2}, 16
  s_add_u32 s{S_C1}, s{S_C1}, 0x200000
  s_mov_b32 s{S_C0}, 0x358637bd
  s_waitcnt lgkmcnt(0)""")
stamp(5)
A("  s_barrier")
OA = lambda b, c: 16 + (b * 2 + c) * 4
OF = lambda k, b: 40 + (k % 8) * 8 + 4 * b
def gemm_all(bars):
    q = []
    def rd_o(k):
        i, h = k >> 2, k & 3
        for b in range(2):
            A(f"  ds_read_b128 v[{OF(k,b)}:{OF(k,b)+3}], v{8+i} offset:{b*16384 + h*1024}"); q.append(("o", k))
    def rd_w(k):
        i, h = k >> 2, k & 3
        for c in range(2):
            d = WF(k, c)
            A(f"  ds_read_b64_tr_b16 v[{d}:{d+1}], v{i} offset:{h*4096 + 8*c}"); q.append(("w", k))
            A(f"  ds_read_b64_tr_b16 v[{d+2}:{d+3}], v{i} offset:{h*4096 + 8*c + 512}"); q.append(("w", k))
    if bars: A("  s_barrier"); stamp(9)
    for k in range(4): rd_o(k)
    for k in range(16):
        need = [j for j, t in enumerate(q) if t[1] <= k]
        if need:
            n = len(q) - 1 - need[-1]
            A(f"  s_waitcnt lgkmcnt({min(n, 15)})")
            del q[:need[-1] + 1]
        ms = []
        for b in range(2):
            for c in range(2):
                acc = OA(b, c); wf = WF(k, c); d = OF(k, b)
                cin = "0" if k == 0 else f"v[{acc}:{acc+3}]"
                ms.append(f"  v_mfma_f32_16x16x32_bf16 v[{acc}:{acc+3}], v[{wf}:{wf+3}], v[{d}:{d+3}], {cin}")
        A(ms[0]); A(ms[1])
        kn = k + 4 if not bars else None
        if bars:
            if k % 4 == 1 and k + 3 < 16:
                A("  s_barrier")
                for kk in range(k + 3, k + 5): rd_o(kk)
            elif k % 4 == 2 and k + 4 < 16:
                for kk in range(k + 4, k + 6): rd_o(kk)
        elif k + 4 < 16: rd_o(k + 4)
        A(ms[2]); A(ms[3])
        if k < 8: rd_w(k + 8)
A(f"  v_add_u32 v2, s{S_CH+2}, v6\n  v_add_u32 v3, s{S_CH+3}, v6")
for i in range(4): A(f"  v_add_u32 v{8+i}, s{S_Q+i}, v5")
A(f"  s_cmp_lg_u32 s{S_BR}, 0\n  s_cbranch_scc1 L_p2B")
gemm_all(True)
A("  s_branch L_fin")
A("L_p2B:")
PQ = lambda i, rg: 40 + (i * 2 + rg) * 4
A(f"""  s_lshr_b32 s{S_A0}, s{S_WV}, 1
  s_lshl_b32 s{S_A0}, s{S_A0}, 10
  s_and_b32 s{S_T0}, s{S_WV}, 1
  s_lshl_b32 s{S_T0}, s{S_T0}, 9
  s_add_u32 s{S_A0}, s{S_A0}, s{S_T0}""")
for i in range(4):
    A(f"  s_add_u32 s{S_T2}, s{S_A0}, {i*4096}\n  s_add_u32 s{S_T2}, s{S_T2}, s{S_C1}\n  s_add_u32 s{S_T3}, s{S_T2}, 32768")
    for rg in range(2):
        d = PQ(i, rg)
        A(f"  buffer_load_dwordx4 v[{d}:{d+3}], v7, s[{SRD_WS}:{SRD_WS+3}], s{S_T2 if rg == 0 else S_T3} offen {args.cl}")
for i in range(4):
    A(f"""  s_add_u32 s{S_T0}, s{S_WV}, {8*i}
  s_mul_i32 s{S_T1}, s{S_T0}, {KVS}
  s_cmp_lt_u32 s{S_T0}, 11
  s_cselect_b32 s{S_T0}, 0, {KV1-KV0}
  s_add_u32 s{S_T1}, s{S_T1}, s{S_T0}
  s_add_u32 s{S_T1}, s{S_T1}, {KV0}
  v_add_u32 v{12+i}, s{S_T1}, v4""")
A(f"  v_add_u32 v32, s{S_A0}, v7\n  v_add_u32 v33, {ORH}, v32\n  s_waitcnt vmcnt(0)")
if 'cyc' not in args.dbg: stamp(12)
A("  s_barrier")
if 'cyc' not in args.dbg: stamp(13)
for i in range(4): A(f"  ds_read_b128 v[{16+4*i}:{19+4*i}], v{12+i}")
def pm(u):
    i, rg = u >> 1, u & 1; d = 72 + 16 * rg
    A(f"  v_mfma_f32_32x32x16_bf16 v[{d}:{d+15}], v[{16+4*i}:{19+4*i}], v[{PQ(i,rg)}:{PQ(i,rg)+3}], 0")
def pv(u):
    i, rg = u >> 1, u & 1; d = 72 + 16 * rg
    A(f"  v_add_f32 v{d+8}, s{S_C0}, v{d+8}\n  v_rcp_f32 v{d+8}, v{d+8}\n  s_nop 0")
    for r in range(0, 8, 2):
        A(f"  v_pk_mul_f32 v[{d+r}:{d+r+1}], v[{d+r}:{d+r+1}], v[{d+8}:{d+9}] op_sel_hi:[1,0]")
    o_ = PQ(i, rg)
    cvt(o_, d); cvt(o_ + 2, d + 4)
    A(f"  ds_write_b128 v{32+rg}, v[{o_}:{o_+3}] offset:{i*4096}")
A("  s_waitcnt lgkmcnt(0)")
pm(0); pm(1)
A("  s_nop 10")
for u in range(8):
    pv(u)
    if u + 2 < 8: pm(u + 2)
    if u == 6: A("  s_nop 0")
A("  s_waitcnt lgkmcnt(0)")
stamp(14)
A("  s_barrier")
stamp(9)
gemm_all(False)
A("L_fin:\n  s_nop 7")
for b in range(2):
    d = 32 + 4 * b
    cvt(d, OA(b, 0)); cvt(d + 2, OA(b, 1))
    A(f"  s_add_u32 s{S_T0}, s{S_C2}, {b * 2048}")
    A(f"  buffer_store_dwordx4 v[{d}:{d+3}], v1, s[{SRD_OUT}:{SRD_OUT+3}], s{S_T0} offen {args.ost.replace('_', ' ')}")
stamp(10)
if NSTAMP:
    A("  s_waitcnt vmcnt(0)")
    stamp(11)
    A(f"  s_cmp_lg_u32 s{S_WV}, 0\n  s_cbranch_scc1 L_end")
    stamp_flush([0, 1, 2, 3, 4, 5, 9, 10, 11, 12, 13, 14], 8)
if args.diag:
    A(f"""  s_waitcnt vmcnt(0)
  s_memrealtime s[96:97]
  s_waitcnt lgkmcnt(0)
  s_not_b32 s98, s98
  v_mov_b32 v8, s96
  v_mov_b32 v9, s98
  v_mov_b32 v10, 32
  s_mov_b64 exec, 1
  global_atomic_umax v10, v8, s[{S_DBG}:{S_DBG+1}]
  global_atomic_umax v10, v9, s[{S_DBG}:{S_DBG+1}] offset:4""")
A("L_end:\n  s_endpgm\nL_codeend:")
A(f""".section .rodata,"a"
.p2align 6
.amdhsa_kernel {NAME}
  .amdhsa_next_free_vgpr 168
  .amdhsa_next_free_sgpr 102
  .amdhsa_accum_offset 168
  .amdhsa_group_segment_fixed_size 0
  .amdhsa_kernarg_size 72
  .amdhsa_user_sgpr_count 2
  .amdhsa_user_sgpr_kernarg_segment_ptr 1
  .amdhsa_system_sgpr_workgroup_id_x 1
.end_amdhsa_kernel""")
print("\n".join(out))
```

```python
import sys, argparse, struct
ap = argparse.ArgumentParser()
ap.add_argument("--stamps", type=int, default=0)
ap.add_argument("--order", type=str, default="g4c")
ap.add_argument("--dbg", type=str, default="")
ap.add_argument("--touch", type=int, default=4)
ap.add_argument("--psleep", type=int, default=2)
ap.add_argument("--maxfl", type=int, default=20)
ap.add_argument("--codepf", type=int, default=0)
ap.add_argument("--D", type=int, default=5)
ap.add_argument("--D0", type=int, default=2)
ap.add_argument("--ramp", type=int, default=4)
ap.add_argument("--bpos", type=int, default=3)
ap.add_argument("--ldf", type=str, default="")
ap.add_argument("--ldn", type=int, default=6)
ap.add_argument("--atouch", type=int, default=0)
ap.add_argument("--kprio", type=int, default=1)
ap.add_argument("--ost", type=str, default="sc1")
ap.add_argument("--diag", type=int, default=0)
ap.add_argument("--tlb", type=int, default=0)
ap.add_argument("--cl", type=str, default="")
args = ap.parse_args()
NAME = "concat_heads__sliding_local_dilated__linear_attn_block__prompt_kernel"
out = []
def A(s): out.append(s)
def f2u(x): return struct.unpack("<I", struct.pack("<f", x))[0]
SPINMAX = "0x40000"
XSLOT = 18432; NXS = 4
WBASE = XSLOT * NXS
WSLOT = 12288; NWS = 7
LDS_TOTAL = WBASE + WSLOT * NWS
ORH = 98304
KVS = 544
KV0 = 32768; KV1 = 147456 - 11 * KVS
WS_KV = 4 << 20
KVH = 1152
WS_FLG = (4 << 20) + 65536
WS_CNT = WS_FLG + 256 * 128
STAMP_OFF = 128 << 20
NSTAMP = args.stamps
S_PTR = 4; S_WS = 20; S_FLG = 22; S_SEQ = 23
SRD_X = 24; SRD_W = 28; SRD_WO = 32; SRD_OUT = 36; SRD_WS = 40
S_DBG = 44
S_BR = 46; S_RB = 47; S_HG = 48; S_RB2 = 49; S_CB = 50; S_WV = 51; S_J = 52; S_XQ = 53
S_XB = 54; S_XH = 55; S_WB = 56
S_T0 = 57; S_T1 = 58; S_T2 = 59; S_T3 = 60; S_IT = 61
S_M0 = 62; S_M1 = 64
S_XO = 66; S_WO = 67
S_C0 = 68; S_C1 = 69; S_C2 = 70; S_C3 = 71
S_OB = 72; S_SPIN = 73; S_STB = 74
S_ST = 76
S_CH = 12
S_A0 = 16; S_A1 = 17; S_A2 = 18; S_A3 = 19
S_Q = 4
S_HH = 54; S_RH = 55; S_XH2 = 56

def sreg(i): return S_ST + 2 * (i if i < 12 else i - 6)
def stamp(i):
    if i < NSTAMP: A(f"  s_memrealtime s[{sreg(i)}:{sreg(i)+1}]")
def stamp_flush(idxs, vtmp):
    if not NSTAMP: return
    A(f"  s_waitcnt lgkmcnt(0)\n  s_mov_b64 exec, 1\n  v_mov_b32 v{vtmp+2}, 0")
    for i in idxs:
        if i < NSTAMP:
            A(f"  v_mov_b32 v{vtmp}, s{sreg(i)}\n  v_mov_b32 v{vtmp+1}, s{sreg(i)+1}")
            A(f"  global_store_dwordx2 v{vtmp+2}, v[{vtmp}:{vtmp+1}], s[{S_STB}:{S_STB+1}] offset:{8*i}\n  s_nop 1")
    A("  s_mov_b64 exec, -1")
def spin(lbl_out):
    return f"  s_add_u32 s{S_SPIN}, s{S_SPIN}, 1\n  s_cmp_gt_u32 s{S_SPIN}, {SPINMAX}\n  s_cbranch_scc1 {lbl_out}"
def cvt(d, a):
    A(f"  v_cvt_pk_bf16_f32 v{d}, v{a}, v{a+1}\n  v_cvt_pk_bf16_f32 v{d+1}, v{a+2}, v{a+3}")
def quarters():
    for i in range(4):
        A(f"  s_add_u32 s{S_T0}, s{S_CB}, {i}\n  s_and_b32 s{S_T0}, s{S_T0}, 3\n  s_lshl_b32 s{S_Q+i}, s{S_T0}, 12")

A(f"; @launch grid=(256,1,1) block=(768,1,1) lds={LDS_TOTAL}")
A('.amdgcn_target "amdgcn-amd-amdhsa--gfx950"\n.text\n.globl %s\n.p2align 8\n.type %s,@function\n%s:' % (NAME, NAME, NAME))
A("  s_cmp_ge_u32 s2, 256\n  s_cbranch_scc1 L_end")
A(f"  s_load_dwordx16 s[{S_PTR}:{S_PTR+15}], s[0:1], 0\n  s_load_dwordx2 s[{S_WS}:{S_WS+1}], s[0:1], 64")
stamp(0)
if args.diag: A("  s_memrealtime s[98:99]")
A(f"""  v_lshrrev_b32 v1, 6, v0
  v_and_b32 v0, 63, v0
  v_readfirstlane_b32 s{S_WV}, v1
  s_and_b32 s{S_T0}, s2, 7
  s_lshr_b32 s{S_J}, s2, 3
  s_lshr_b32 s{S_BR}, s{S_T0}, 2
  s_and_b32 s{S_XQ}, s{S_T0}, 3
  s_lshr_b32 s{S_T1}, s{S_XQ}, 1
  s_lshl_b32 s{S_T1}, s{S_T1}, 3
  s_lshr_b32 s{S_T2}, s{S_J}, 2
  s_add_u32 s{S_RB}, s{S_T1}, s{S_T2}
  s_and_b32 s{S_T1}, s{S_XQ}, 1
  s_lshl_b32 s{S_T1}, s{S_T1}, 2
  s_and_b32 s{S_CB}, s{S_J}, 3
  s_add_u32 s{S_HG}, s{S_T1}, s{S_CB}
  s_lshl_b32 s{S_T1}, s{S_XQ}, 3
  s_add_u32 s{S_RB2}, s{S_T1}, s{S_T2}
  s_mov_b32 s{S_SPIN}, 0
  s_cmp_lt_u32 s{S_WV}, 8
  s_cbranch_scc1 L_comp""")

VX0 = 1; VX1 = 2; VW = 3; VXH = 4; VWO = 5; VTW = 9; VZ = 10
L_HL = S_C3; L_XL = S_C2; L_WL = S_C1
def seq_pack(l): return sum(x << (4 * i) for i, x in enumerate(l))
o = args.order
A(f"""  s_sub_u32 s{S_WV}, s{S_WV}, 8
  v_lshrrev_b32 v11, 3, v0
  v_and_b32 v12, 7, v0
  v_lshrrev_b32 v13, 4, v0
  v_xor_b32 v14, v12, v13
  v_lshlrev_b32 v14, 4, v14
  v_lshl_add_u32 v{VX0}, v11, 11, v14
  v_xor_b32 v{VX1}, 64, v{VX0}
  v_and_b32 v13, 1, v13
  v_lshlrev_b32 v13, 1, v13
  v_xor_b32 v14, v12, v13
  v_lshlrev_b32 v14, 4, v14
  v_mul_u32_u24 v{VW}, 3072, v11
  v_add_u32 v{VW}, v{VW}, v14
  s_and_b32 s{S_T0}, s{S_WV}, 1
  s_lshl_b32 s{S_T1}, s{S_T0}, 6
  v_xor_b32 v{VW}, s{S_T1}, v{VW}
  v_xor_b32 v{VXH}, s{S_T1}, v{VX0}
  s_lshl_b32 s{S_XB}, s{S_RB}, 17
  s_sub_u32 s{S_XH}, s{S_XB}, 16384
  s_max_i32 s{S_XH}, s{S_XH}, 0
  s_lshl_b32 s{L_HL}, s{S_T0}, 10
  s_add_u32 s{S_XH}, s{S_XH}, s{L_HL}
  s_lshl_b32 s{S_T1}, s{S_WV}, 15
  s_add_u32 s{S_XB}, s{S_XB}, s{S_T1}
  s_lshl_b32 s{L_XL}, s{S_WV}, 12
  s_add_u32 s{L_XL}, s{L_XL}, 2048
  s_lshl_b32 s{S_WB}, s{S_HG}, 7
  s_mul_i32 s{S_T1}, s{S_WV}, 24576
  s_add_u32 s{S_WB}, s{S_WB}, s{S_T1}
  s_lshl_b32 s{L_WL}, s{S_WV}, 10
  s_add_u32 s{L_WL}, s{L_WL}, {WBASE}""")
def order_code(o, reg):
    if o == "plain":
        A(f"  s_mov_b32 s{reg}, {hex(seq_pack(range(8)))}")
    elif o == "rot8":
        A(f"""  s_lshl_b32 s{S_T1}, s{S_CB}, 1
  s_add_u32 s{S_T1}, s{S_T1}, s{S_T2}
  s_and_b32 s{S_T1}, s{S_T1}, 7
  s_mul_i32 s{S_T1}, s{S_T1}, 0x11111111
  s_add_u32 s{reg}, s{S_T1}, {hex(seq_pack(range(8)))}
  s_and_b32 s{reg}, s{reg}, 0x77777777""")
    elif o.startswith("g2"):
        seqs = {"g2a": "a0 a1 b0 a2 b1 a3 b2 b3", "g2b": "a0 a1 a2 a3 b0 b1 b2 b3", "g2c": "a0 b0 a1 b1 a2 b2 a3 b3", "g2d": "a0 a1 a2 b0 b1 a3 b2 b3"}
        l = [2 * int(x[1]) + (x[0] == 'b') for x in seqs[o].split()]
        A(f"  s_add_u32 s{S_T1}, s{S_T2}, s{S_CB}\n  s_and_b32 s{S_T1}, s{S_T1}, 1\n  s_mul_i32 s{S_T1}, s{S_T1}, 0x11111111\n  s_xor_b32 s{reg}, s{S_T1}, {hex(seq_pack(l))}")
    elif o.startswith("g4"):
        seqs = {"g4a": "00 01 02 10 03 11 12 13", "g4b": "00 10 01 02 03 11 12 13", "g4c": "00 01 10 02 03 11 12 13", "g4d": "00 01 02 03 10 11 12 13"}
        l = [4 * int(x[0]) + int(x[1]) for x in seqs[o].split()]
        A(f"  s_add_u32 s{S_T1}, s{S_T2}, s{S_CB}\n  s_and_b32 s{S_T1}, s{S_T1}, 3\n  s_mul_i32 s{S_T1}, s{S_T1}, 0x11111111\n  s_xor_b32 s{reg}, s{S_T1}, {hex(seq_pack(l))}")
oa, ob = (o.split(",") + [o])[:2]
order_code(oa, S_SEQ)
if ob != oa:
    order_code(ob, S_IT)
    A(f"  s_cmp_eq_u32 s{S_BR}, 0\n  s_cselect_b32 s{S_SEQ}, s{S_SEQ}, s{S_IT}")
def build_srds():
    A(f"""  s_waitcnt lgkmcnt(0)
  s_cmp_eq_u32 s{S_BR}, 0
  s_cselect_b32 s{SRD_X}, s{S_PTR+0}, s{S_PTR+6}
  s_cselect_b32 s{SRD_X+1}, s{S_PTR+1}, s{S_PTR+7}
  s_cselect_b32 s{SRD_W}, s{S_PTR+2}, s{S_PTR+8}
  s_cselect_b32 s{SRD_W+1}, s{S_PTR+3}, s{S_PTR+9}
  s_mov_b32 s{SRD_X+2}, 0x200000
  s_mov_b32 s{SRD_X+3}, 0x20000
  s_mov_b32 s{SRD_W+2}, 0x180000
  s_mov_b32 s{SRD_W+3}, 0x20000""")
def build_srds2():
    A(f"""  s_cmp_eq_u32 s{S_BR}, 0
  s_cselect_b32 s{SRD_WO}, s{S_PTR+4}, s{S_PTR+10}
  s_cselect_b32 s{SRD_WO+1}, s{S_PTR+5}, s{S_PTR+11}
  s_mov_b32 s{SRD_WO+2}, 0x80000
  s_mov_b32 s{SRD_WO+3}, 0x20000
  s_mov_b32 s{SRD_OUT}, s{S_PTR+12}
  s_mov_b32 s{SRD_OUT+1}, s{S_PTR+13}
  s_mov_b32 s{SRD_OUT+2}, 0x400000
  s_mov_b32 s{SRD_OUT+3}, 0x20000
  s_mov_b32 s{SRD_WS}, s{S_WS}
  s_mov_b32 s{SRD_WS+1}, s{S_WS+1}
  s_mov_b32 s{SRD_WS+2}, 0x500000
  s_mov_b32 s{SRD_WS+3}, 0x20000
  s_mov_b32 s{S_DBG}, s{S_PTR+14}
  s_mov_b32 s{S_DBG+1}, s{S_PTR+15}""")
    if NSTAMP:
        A(f"""  s_add_u32 s{S_STB}, s{S_WS}, {STAMP_OFF}
  s_addc_u32 s{S_STB+1}, s{S_WS+1}, 0
  s_mul_i32 s{S_T1}, s2, {8*NSTAMP}
  s_add_u32 s{S_STB}, s{S_STB}, s{S_T1}
  s_addc_u32 s{S_STB+1}, s{S_STB+1}, 0""")
build_srds()
curg = [0]
def dma(vo, srd, sreg, imm, lreg, limm, extra=""):
    if "noload" in args.dbg and srd in (SRD_X, SRD_W): return
    if srd in (SRD_X, SRD_W) and args.ldf and curg[0] < args.ldn: extra = " " + args.ldf.replace("_", " ")
    A(f"  s_add_u32 s{S_T1}, s{sreg}, {imm}\n  s_add_u32 m0, s{lreg}, {limm}\n  s_waitcnt vmcnt({args.maxfl-1})\n  buffer_load_dwordx4 v{vo}, s[{srd}:{srd+3}], s{S_T1} offen{extra} lds")
D = args.D
def gsize(g): return 8 if g == 0 else (3 if g == 15 else (6 if g & 1 else 5))
def xops(t, which):
    xl = (t % NXS) * XSLOT
    A(f"  s_lshr_b32 s{S_T0}, s{S_SEQ}, {4*t}\n  s_and_b32 s{S_T0}, s{S_T0}, 7\n  s_lshl_b32 s{S_T0}, s{S_T0}, 7\n  s_add_u32 s{S_T3}, s{S_T0}, s{S_XB}")
    lst = [(p, m) for p in range(2) for m in range(2)]
    for i in which:
        if i < 4:
            p, m = lst[i]
            dma(VX0 if m == 0 else VX1, SRD_X, S_T3, (p + 16 * m) * 1024, L_XL, xl + p * 2048 + m * 1024)
        else:
            A(f"  s_add_u32 s{S_C0}, s{S_T0}, s{S_XH}")
            dma(VXH, SRD_X, S_C0, 0, L_HL, xl)
def issue_group(g):
    curg[0] = g
    t = g >> 1
    if g > 0 and g & 1 == 0: xops(t, [3, 4])
    A(f"""  s_lshr_b32 s{S_T0}, s{S_SEQ}, {4*t}
  s_and_b32 s{S_T0}, s{S_T0}, 7
  s_mul_i32 s{S_T2}, s{S_T0}, 196608
  s_add_u32 s{S_T2}, s{S_T2}, s{S_WB}""")
    wl = (g % NWS) * WSLOT
    for seg in range(3): dma(VW, SRD_W, S_T2, (g & 1) * 32 * 3072 + seg * 1024, L_WL, wl + seg * 4096)
    if g == 0: xops(0, [0, 1, 2, 3, 4])
    elif g & 1 and g < 15: xops(t + 1, [0, 1, 2])
    if g == 2 * args.touch + 1:
        A(f"""  v_lshlrev_b32 v{VTW}, 7, v0
  s_lshl_b32 s{S_T1}, s{S_J}, 14
  s_lshl_b32 s{S_T0}, s{S_WV}, 12
  s_add_u32 s{S_T1}, s{S_T1}, s{S_T0}
  s_mov_b32 exec_hi, 0
  buffer_load_dword v11, v{VTW}, s[{SRD_WO}:{SRD_WO+3}], s{S_T1} offen
  s_mov_b64 exec, -1""")
        return 1
    return 0
XC = lambda i: i * XSLOT + 2048
chunks = [[XC(0), 98304], [114688, XC(1)], [131072, XC(2)], [XC(3), WBASE]]
freeat = [11, 12, 14, 16]
def chunk_sel(bitreg):
    A(f"  s_cmp_eq_u32 s{bitreg}, 0")
    for i in range(4): A(f"  s_mov_b32 s{S_CH+i}, {chunks[i][1]}\n  s_cselect_b32 s{S_CH+i}, {chunks[i][0]}, s{S_CH+i}")
def lsetup():
    build_srds2()
    A(f"  s_and_b32 s{S_T2}, s{S_WV}, 1")
    chunk_sel(S_T2)
    quarters()
    A(f"""  v_lshrrev_b32 v11, 3, v0
  v_and_b32 v12, 7, v0
  v_bfe_u32 v13, v0, 4, 1
  v_lshlrev_b32 v13, 2, v13
  v_xor_b32 v12, v12, v13
  v_lshlrev_b32 v12, 4, v12
  v_lshl_add_u32 v{VWO}, v11, 10, v12
  s_lshl_b32 s{S_A0}, s{S_CB}, 8
  s_lshl_b32 s{S_T0}, s{S_T2}, 7
  s_add_u32 s{S_A0}, s{S_A0}, s{S_T0}
  s_lshr_b32 s{S_T0}, s{S_WV}, 1
  s_lshl_b32 s{S_T1}, s{S_T0}, 16
  s_add_u32 s{S_A0}, s{S_A0}, s{S_T1}
  s_lshl_b32 s{S_T0}, s{S_T0}, 13
  s_add_u32 s{S_CH}, s{S_CH}, s{S_T0}
  s_add_u32 s{S_CH+1}, s{S_CH+1}, s{S_T0}
  s_add_u32 s{S_CH+2}, s{S_CH+2}, s{S_T0}
  s_add_u32 s{S_CH+3}, s{S_CH+3}, s{S_T0}
  s_lshl_b32 s{S_FLG}, s{S_BR}, 7
  s_lshl_b32 s{S_T1}, s{S_RB}, 3
  s_add_u32 s{S_FLG}, s{S_FLG}, s{S_T1}
  s_add_u32 s{S_FLG}, s{S_FLG}, s{S_HG}
  s_lshl_b32 s{S_FLG}, s{S_FLG}, 7
  s_add_u32 s{S_FLG}, s{S_FLG}, {WS_FLG}
  v_mov_b32 v8, 1
  v_mov_b32 v15, 0
  v_and_b32 v{VZ}, 7, v0
  v_lshlrev_b32 v{VZ}, 2, v{VZ}
  v_lshlrev_b32 v6, 7, v0
  v_lshlrev_b32 v7, 4, v0""")
def wo_group(i):
    A(f"  s_lshl_b32 s{S_T0}, s{S_Q+i}, 5\n  s_add_u32 s{S_T2}, s{S_T0}, s{S_A0}")
    for k in range(8): dma(VWO, SRD_WO, S_T2, k * 8192, S_CH + i, k * 1024)
sizes = []
def outstanding_after(kid):
    idx = [i for i, x in enumerate(sizes) if (x[0], x[1]) == kid][0]
    return sum(x[2] for x in sizes[idx + 1:])
def do_group(g):
    e = issue_group(g); sizes.append(("g", g, gsize(g))); sizes.append(("t", g, e))
if args.atouch:
    A(f"""  s_cmp_lg_u32 s{S_BR}, 0
  s_cbranch_scc1 L_notch
  v_and_b32 v11, 31, v0
  v_lshlrev_b32 v11, 10, v11
  v_lshrrev_b32 v12, 5, v0
  v_lshl_add_u32 v11, v12, 7, v11
  s_lshr_b32 s{S_T0}, s{S_XQ}, 1
  s_lshl_b32 s{S_T0}, s{S_T0}, 20
  s_lshl_b32 s{S_T1}, s{S_J}, 15
  s_add_u32 s{S_T0}, s{S_T0}, s{S_T1}
  s_lshl_b32 s{S_T1}, s{S_WV}, 8
  s_add_u32 s{S_T0}, s{S_T0}, s{S_T1}
  v_lshrrev_b32 v12, 2, v0
  v_mul_u32_u24 v12, 3072, v12
  v_and_b32 v13, 3, v0
  v_lshl_add_u32 v12, v13, 7, v12
  s_mul_i32 s{S_T1}, s{S_J}, {16*3072}
  s_and_b32 s{S_T2}, s{S_XQ}, 1
  s_lshl_b32 s{S_T2}, s{S_T2}, 9
  s_add_u32 s{S_T1}, s{S_T1}, s{S_T2}
  s_min_u32 s{S_T2}, s{S_WV}, 2
  s_lshl_b32 s{S_T2}, s{S_T2}, 10
  s_add_u32 s{S_T1}, s{S_T1}, s{S_T2}""")
    R = args.atouch
    masks = {1: [(-1, -1)], 2: [(-1, 0), (0, -1)], 3: [(0xffff, 0), (0xffff0000, 0), (0, -1)], 4: [(0xffff, 0), (0xffff0000, 0), (0, 0xffff), (0, 0xffff0000)]}[R]
    for lo, hi in masks:
        A(f"""  s_mov_b32 exec_lo, {hex(lo & 0xffffffff)}
  s_mov_b32 exec_hi, {hex(hi & 0xffffffff)}
  buffer_load_dword v13, v11, s[{SRD_X}:{SRD_X+3}], s{S_T0} offen
  buffer_load_dword v14, v12, s[{SRD_W}:{SRD_W+3}], s{S_T1} offen
  s_waitcnt vmcnt(0)""")
    A("  s_mov_b64 exec, -1\nL_notch:")
for g in range(args.D0): do_group(g)
lsetup()
nxt = args.D0
for bq in range(17):
    if bq < 16: A(f"  s_waitcnt vmcnt({min(63, outstanding_after(('g', bq)))})")
    A("  s_barrier")
    while nxt < 16 and nxt <= bq + D - 1 and nxt <= bq + 5 and (nxt <= bq + args.D0 or bq >= args.ramp):
        do_group(nxt); nxt += 1
    for i in range(4):
        if freeat[i] == bq: wo_group(i); sizes.append(("w", i, 8))
stamp(6)
def init_check(tag, v, vz):
    A(f"""  s_mov_b32 s{S_T1}, 0x01010101
L_ic{tag}:
  s_waitcnt vmcnt(0)
  v_cmp_ne_u32 vcc, s{S_T1}, v{v}
  s_nop 3
  s_cmp_eq_u64 vcc, 0
  s_cbranch_scc1 L_id{tag}
{spin(f"L_id{tag}")}
  s_sleep 4
  global_load_dword v{v}, v{vz}, s[{S_DBG}:{S_DBG+1}] sc1
  s_branch L_ic{tag}
L_id{tag}:""")
def poll(tag, voff, sreg, val=1):
    A(f"""L_pl{tag}:
  buffer_load_dword v16, v{voff}, s[{SRD_WS}:{SRD_WS+3}], s{sreg} offen sc1
  s_waitcnt vmcnt(0)
  v_cmp_ne_u32 vcc, {val}, v16
  s_and_b64 exec, exec, vcc
  s_cbranch_execz L_po{tag}
{spin(f"L_po{tag}")}
  s_sleep {args.psleep}
  s_branch L_pl{tag}
L_po{tag}:
  s_mov_b64 exec, -1""")
A("  s_barrier")
A(f"""  s_cmp_lg_u32 s{S_WV}, 0
  s_cbranch_scc1 L_nofl
  s_mov_b64 exec, 1
  buffer_store_dword v8, v15, s[{SRD_WS}:{SRD_WS+3}], s{S_FLG} offen sc1
  s_mov_b64 exec, -1
  s_waitcnt vmcnt({outstanding_after(('w', 1)) + 1})
  s_branch L_fl2
L_nofl:
  s_waitcnt vmcnt({outstanding_after(('w', 1))})
L_fl2:
  s_barrier""")
stamp(7)
A(f"""  s_cmp_lg_u32 s{S_WV}, 0
  s_cbranch_scc1 L_await
  s_lshr_b32 s{S_T1}, s{S_RB2}, 1
  s_lshl_b32 s{S_T1}, s{S_T1}, 10
  s_lshl_b32 s{S_T0}, s{S_BR}, 14
  s_add_u32 s{S_T1}, s{S_T1}, s{S_T0}
  s_add_u32 s{S_T1}, s{S_T1}, {WS_FLG}
  s_mov_b64 exec, 0xff""")
poll("R", 6, S_T1)
A(f"""L_await:
  s_lshl_b32 s{S_T3}, s{S_RB2}, 16
  s_lshl_b32 s{S_T0}, s{S_WV}, 14
  s_add_u32 s{S_T3}, s{S_T3}, s{S_T0}
  s_and_b32 s{S_T2}, s{S_WV}, 1
  s_lshl_b32 s{S_T2}, s{S_T2}, 14
  s_lshr_b32 s{S_T0}, s{S_WV}, 1
  s_mul_i32 s{S_T0}, s{S_T0}, {ORH}
  s_add_u32 s{S_T2}, s{S_T2}, s{S_T0}
  s_waitcnt vmcnt(0)
  s_barrier""")
def lfin():
    if NSTAMP:
        A(f"  s_cmp_lg_u32 s{S_WV}, 0\n  s_cbranch_scc1 L_end")
        stamp_flush([6, 7, 8], 12)
    A("  s_endpgm")
A(f"  s_cmp_eq_u32 s{S_BR}, 0\n  s_cbranch_scc1 L_oload")
A(f"""  s_mov_b32 s{S_T1}, {WS_FLG + 128*128}
  s_mov_b32 s{S_T2}, {WS_FLG + 192*128}
  v_lshrrev_b32 v11, 2, v0
  v_lshlrev_b32 v11, 4, v11
  v_bfe_u32 v12, v0, 1, 1
  v_lshl_add_u32 v11, v12, 8, v11
  v_and_b32 v12, 1, v0
  v_lshl_add_u32 v11, v12, 3, v11
  s_lshl_b32 s{S_A0}, s{S_WV}, 3
  s_mul_i32 s{S_A1}, s{S_A0}, {KVH}
  s_add_u32 s{S_A1}, s{S_A1}, {WS_KV}
  v_bfe_u32 v12, v0, 2, 3
  v_mul_u32_u24 v13, {KVH}, v12
  v_and_b32 v14, 3, v0
  v_lshl_add_u32 v13, v14, 4, v13
  v_add_u32 v13, 1024, v13
  v_add_u32 v12, s{S_A0}, v12              ; head
  v_mul_u32_u24 v20, {KVS}, v12
  v_lshl_add_u32 v20, v14, 3, v20
  v_add_u32 v20, {KV0 + 512}, v20
  v_add_u32 v21, {KV1 - KV0}, v20
  v_cmp_lt_u32 vcc, 10, v12
  s_nop 1
  v_cndmask_b32 v20, v20, v21, vcc""")
A(f"  s_lshl_b32 s{S_A2}, s{S_WV}, 10\n  s_add_u32 s{S_A2}, s{S_A2}, {WS_CNT}\n  s_mov_b64 exec, 0xff")
poll("K", 6, S_A2, 16)
stamp(8)
for h in range(8):
    r = 24 + h * 4
    A(f"  s_add_u32 s{S_T1}, s{S_A1}, {h*KVH}\n  buffer_load_dwordx4 v[{r}:{r+3}], v7, s[{SRD_WS}:{SRD_WS+3}], s{S_T1} offen {args.cl}")
A(f"  buffer_load_dwordx4 v[56:59], v13, s[{SRD_WS}:{SRD_WS+3}], s{S_A1} offen {args.cl}")
for h in range(8):
    r = 24 + h * 4
    A(f"""  s_add_u32 s{S_T0}, s{S_A0}, {h}
  s_mul_i32 s{S_T1}, s{S_T0}, {KVS}
  s_cmp_lt_u32 s{S_T0}, 11
  s_cselect_b32 s{S_T0}, 0, {KV1-KV0}
  s_add_u32 s{S_T1}, s{S_T1}, s{S_T0}
  s_add_u32 s{S_T1}, s{S_T1}, {KV0}
  v_add_u32 v{60+h}, s{S_T1}, v11""")
for h in range(8):
    r = 24 + h * 4
    A(f"  s_waitcnt vmcnt({8-h})")
    cvt(r, r)
    A(f"  ds_write_b64 v{60+h}, v[{r}:{r+1}]")
A("  s_waitcnt vmcnt(0)")
cvt(56, 56)
A("  ds_write_b64 v20, v[56:57]\n  s_waitcnt lgkmcnt(0)\n  s_barrier")
if NSTAMP: A("  s_barrier")
lfin()
A("L_oload:")
stamp(8)
def oloads(i):
    A(f"  s_add_u32 s{S_A0}, s{S_T3}, s{S_Q+i}\n  s_add_u32 s{S_A1}, s{S_T2}, s{S_Q+i}")
    for h in range(4):
        A(f"  s_add_u32 s{S_T1}, s{S_A0}, {h*1024}\n  s_add_u32 m0, s{S_A1}, {h*1024}\n  s_nop 0\n  buffer_load_dwordx4 v7, s[{SRD_WS}:{SRD_WS+3}], s{S_T1} offen {args.cl} lds")
oloads(0)
A("  s_waitcnt vmcnt(0)")
oloads(1)
A("  s_barrier")
oloads(2); oloads(3)
for i in (1, 2, 3): A(f"  s_waitcnt vmcnt({4*(3-i)})\n  s_barrier")
lfin()

V_XA = 1; V_WA = 2; V_XA1 = 3; V_ONE = 4; V_OA = 5; V_X0C = 6; V_X1C = 13; V_WC = 14; V_IFA = 15
V_IF = 160; V_DUM = 161; V_NC = 162; V_ONESB = 164
A("L_comp:")
A(f"  s_and_b32 s{S_HH}, s{S_WV}, 3\n  s_lshr_b32 s{S_RH}, s{S_WV}, 2")
if args.codepf:
    A(f"""  s_getpc_b64 s[{S_M0}:{S_M0+1}]
L_pcref:
  s_sub_u32 s{S_M0}, s{S_M0}, L_pcref-{NAME}
  s_subb_u32 s{S_M0+1}, s{S_M0+1}, 0
  s_lshl_b32 s{S_T0}, s{S_J}, 3
  s_add_u32 s{S_T0}, s{S_T0}, s{S_WV}
  s_lshl_b32 s{S_T0}, s{S_T0}, 7
  s_min_u32 s{S_T0}, s{S_T0}, (L_codeend-{NAME}-4)&0xfffffffc
  v_mov_b32 v7, s{S_T0}
  s_mov_b64 exec, 1
  global_load_dword v{V_DUM}, v7, s[{S_M0}:{S_M0+1}]
  s_mov_b64 exec, -1""")
A(f"""  v_and_b32 v7, 15, v0
  v_lshrrev_b32 v8, 4, v0
  v_lshrrev_b32 v9, 1, v7
  v_xor_b32 v9, v9, v8
  v_lshlrev_b32 v9, 4, v9
  v_lshl_add_u32 v{V_XA}, v7, 7, v9
  v_lshrrev_b32 v9, 2, v7
  v_lshl_add_u32 v9, v8, 3, v9
  v_lshrrev_b32 v10, 1, v9
  v_and_b32 v10, 1, v10
  v_and_b32 v11, 1, v8
  v_lshl_or_b32 v10, v11, 1, v10
  v_xor_b32 v10, s{S_HH}, v10
  v_lshlrev_b32 v10, 5, v10
  v_lshl_add_u32 v10, v9, 7, v10
  v_and_b32 v11, 3, v7
  v_lshl_add_u32 v{V_WA}, v11, 3, v10
  v_add_u32 v{V_WA}, {WBASE}, v{V_WA}
  v_mov_b32 v{V_ONE}, 1
  s_lshl_b32 s{S_T0}, s{S_HG}, 2
  s_add_u32 s{S_T0}, s{S_T0}, s{S_HH}
  s_lshl_b32 s{S_OB}, s{S_T0}, 9
  s_lshl_b32 s{S_T1}, s{S_RB}, 17
  s_add_u32 s{S_OB}, s{S_OB}, s{S_T1}
  s_lshl_b32 s{S_T1}, s{S_BR}, 21
  s_add_u32 s{S_OB}, s{S_OB}, s{S_T1}
  s_mul_i32 s{S_C3}, s{S_T0}, {KVH}
  s_add_u32 s{S_C3}, s{S_C3}, {WS_KV}
  s_lshl_b32 s{S_XH2}, s{S_T0}, 7
  s_add_u32 s{S_XH2}, s{S_XH2}, {WS_CNT}
  s_lshl_b32 s{S_FLG}, s{S_BR}, 7
  s_lshl_b32 s{S_T1}, s{S_RB}, 3
  s_add_u32 s{S_FLG}, s{S_FLG}, s{S_T1}
  s_add_u32 s{S_FLG}, s{S_FLG}, s{S_HG}
  s_lshl_b32 s{S_FLG}, s{S_FLG}, 7
  s_add_u32 s{S_FLG}, s{S_FLG}, {WS_FLG}
  s_lshl_b32 s{S_T1}, s{S_WV}, 2
  s_add_u32 s{S_FLG}, s{S_FLG}, s{S_T1}
  v_and_b32 v9, 1, v8
  v_lshlrev_b32 v9, 14, v9
  v_lshrrev_b32 v10, 1, v8
  v_lshl_add_u32 v9, v10, 8, v9
  v_lshl_add_u32 v{V_OA}, v7, 4, v9
  v_and_b32 v{V_IFA}, 7, v0
  v_lshlrev_b32 v{V_IFA}, 2, v{V_IFA}
  s_mov_b32 s{S_IT}, 0
  s_mov_b32 s{S_XO}, 0
  s_mov_b32 s{S_WO}, 0
  v_mov_b32 v{V_WC}, v{V_WA}
  s_waitcnt lgkmcnt(0)""")
build_srds2()
if args.tlb:
    A(f"""  s_cmp_lg_u32 s{S_WV}, 7
  s_cbranch_scc1 L_notlb
  v_mov_b32 v9, 0
  s_lshl_b32 s{S_T0}, s{S_RB2}, 17
  s_lshl_b32 s{S_T1}, s{S_RB2}, 16
  s_lshl_b32 s{S_T2}, s{S_BR}, 21
  s_add_u32 s{S_T1}, s{S_T1}, s{S_T2}
  s_mov_b64 exec, 1
  buffer_load_dword v{V_DUM}, v9, s[{SRD_WS}:{SRD_WS+3}], s{S_OB} offen sc1
  buffer_load_dword v{V_DUM}, v9, s[{SRD_WS}:{SRD_WS+3}], s{S_FLG} offen sc1
  buffer_load_dword v{V_DUM}, v9, s[{SRD_OUT}:{SRD_OUT+3}], s{S_T0} offen sc1
  buffer_load_dword v{V_DUM}, v9, s[{SRD_WO}:{SRD_WO+3}], 0 offen
  s_mov_b64 exec, -1
L_notlb:""")
A(f"  s_cmp_eq_u32 s{S_BR}, 0\n  s_cbranch_scc0 L_compB")

wadv_c = [f"  s_add_u32 s{S_WO}, s{S_WO}, {WSLOT}", f"  s_cmp_eq_u32 s{S_WO}, {WSLOT*NWS}", f"  s_cselect_b32 s{S_WO}, 0, s{S_WO}", f"  v_add_u32 v{V_WC}, s{S_WO}, v{V_WA}"]
xadv_c = [f"  s_add_u32 s{S_XO}, s{S_XO}, {XSLOT}", f"  s_cmp_eq_u32 s{S_XO}, {XSLOT*NXS}", f"  s_cselect_b32 s{S_XO}, 0, s{S_XO}",
          f"  v_add_u32 v{V_X0C}, s{S_XO}, v{V_XA}", f"  v_add_u32 v{V_X1C}, s{S_XO}, v{V_XA1}"]
def mainloop(tag, reads, mfmas, extra_adv, tail, bpos):
    A("  s_barrier")
    stamp(1)
    if "cyc" in args.dbg: A(f"  s_memtime s[{sreg(12)}:{sreg(12)+1}]")
    for x in reads(0, 0): A(x)
    for kk in range(2):
        A(f"L_s{kk}{tag}:\n  s_waitcnt lgkmcnt(0)")
        m = mfmas(kk)
        adv = list(wadv_c) + (xadv_c + extra_adv if kk == 1 else [])
        r = reads(1 - kk, 1 - kk)
        if "noreads" in args.dbg: r = []
        ai = 0
        for i in range(bpos):
            A(m[i])
            want = min(len(adv), ((i + 1) * len(adv) + bpos - 2) // max(1, bpos - 1))
            while ai < want: A(adv[ai]); ai += 1
        A("  s_barrier")
        ri = 0; nm = len(m) - bpos
        for i, x in enumerate(m[bpos:]):
            want = min(len(r), ((i + 1) * len(r) + nm - 3) // max(1, nm - 2))
            while ri < want: A(r[ri]); ri += 1
            A(x)
        while ri < len(r): A(r[ri]); ri += 1
    tail()
    A(f"  s_add_u32 s{S_IT}, s{S_IT}, 1\n  s_cmp_lt_u32 s{S_IT}, 8\n  s_cbranch_scc1 L_s0{tag}")
    A(f"  global_load_dword v{V_IF}, v{V_IFA}, s[{S_DBG}:{S_DBG+1}] sc1")
    stamp(2)
    if "cyc" in args.dbg: A(f"  s_memtime s[{sreg(13)}:{sreg(13)+1}]")
    A("  s_waitcnt lgkmcnt(0)")
def trr(d, seg): return [f"  ds_read_b64_tr_b16 v[{d}:{d+1}], v{V_WC} offset:{seg*4096}", f"  ds_read_b64_tr_b16 v[{d+2}:{d+3}], v{V_WC} offset:{seg*4096 + 512}"]
def mm(acc, a, b): return f"  v_mfma_f32_16x16x32_bf16 v[{acc}:{acc+3}], v[{a}:{a+3}], v[{b}:{b+3}], v[{acc}:{acc+3}]"
def store_frags(src, nt, dst):
    for t in range(nt):
        d = dst + 4 * t
        cvt(d, src(2 * t)); cvt(d + 2, src(2 * t + 1))
    A("  s_nop 1")
    for t in range(nt):
        d = dst + 4 * t
        A(f"  v_permlane16_swap_b32 v{d}, v{d+2}\n  v_permlane16_swap_b32 v{d+1}, v{d+3}")
    for t in range(nt):
        d = dst + 4 * t
        A(f"  s_add_u32 s{S_T0}, s{S_OB}, {t*32768}")
        A(f"  buffer_store_dwordx4 v[{d}:{d+3}], v{V_OA}, s[{SRD_WS}:{SRD_WS+3}], s{S_T0} offen sc1")

ACC = 16
AQ = lambda b: ACC + 4 * b
AK = lambda b: ACC + 16 + 4 * b
AV = lambda b: ACC + 36 + 4 * b
FX = lambda buf, b: 72 + 32 * buf + 4 * b
FW = lambda buf, seg: 72 + 32 * buf + 20 + 4 * seg
V_HA = 136; V_H0C = 137; V_H1C = 138
MK = 140; MK0 = 144; V_HI = 148; V_PV = 149; V_ONES = 150
A(f"""  v_mov_b32 v{V_HA}, v{V_XA}
  s_cmp_eq_u32 s{S_RH}, 0
  s_cbranch_scc1 L_h0ok
  v_or_b32 v10, 8, v7
  v_lshrrev_b32 v9, 1, v10
  v_xor_b32 v9, v9, v8
  v_lshlrev_b32 v9, 4, v9
  v_lshl_add_u32 v9, v10, 7, v9
  v_lshrrev_b32 v10, 3, v7
  v_lshlrev_b32 v10, 11, v10
  v_add_u32 v9, v9, v10
  v_add_u32 v{V_HA}, {2048*3}, v9
L_h0ok:
  s_lshl_b32 s{S_T0}, s{S_RH}, 13
  s_add_u32 s{S_T0}, s{S_T0}, 2048
  v_add_u32 v{V_XA}, s{S_T0}, v{V_XA}
  v_xor_b32 v{V_XA1}, 64, v{V_XA}
  v_mov_b32 v{V_X0C}, v{V_XA}
  v_mov_b32 v{V_X1C}, v{V_XA1}
  v_mov_b32 v{V_H0C}, v{V_HA}
  v_xor_b32 v{V_H1C}, 64, v{V_HA}
  s_lshl_b32 s{S_T1}, s{S_RH}, 16
  s_add_u32 s{S_OB}, s{S_OB}, s{S_T1}""")
for r in range(ACC, ACC + 56): A(f"  v_mov_b32 v{r}, 0")
A(f"""  v_lshlrev_b32 v9, 2, v8
  v_sub_u32 v9, v7, v9
  s_mov_b32 s{S_C0}, 0xf149f2ca
  v_mov_b32 v10, s{S_C0}""")
for r in range(4):
    A(f"""  v_subrev_u32 v11, {r}, v9
  v_and_b32 v12, 15, v11
  v_cmp_gt_u32 vcc, 8, v12
  s_nop 1
  v_cndmask_b32 v{MK+r}, v10, 0, vcc
  v_cmp_gt_u32 vcc, 8, v11
  s_nop 1
  v_cndmask_b32 v{MK0+r}, v10, 0, vcc""")
A(f"""  s_or_b32 s{S_T0}, s{S_RB}, s{S_RH}
  s_cmp_eq_u32 s{S_T0}, 0
  s_cbranch_scc1 L_m0
  v_mov_b32 v{MK0}, v{MK}
  v_mov_b32 v{MK0+1}, v{MK+1}
  v_mov_b32 v{MK0+2}, v{MK+2}
  v_mov_b32 v{MK0+3}, v{MK+3}
L_m0:
  v_cmp_lt_u32 s[{S_M0}:{S_M0+1}], 7, v7
  v_cmp_lt_u32 vcc, 1, v8
  s_nop 1
  v_cndmask_b32 v{V_HI}, 0, -1, s[{S_M0}:{S_M0+1}]
  s_andn2_b64 s[{S_M1}:{S_M1+1}], vcc, s[{S_M0}:{S_M0+1}]
  v_mov_b32 v{V_ONES}, 0x3f803f80
  v_mov_b32 v{V_ONES+1}, 0x3f803f80
  v_cndmask_b32 v{V_PV}, 0, -1, s[{S_M1}:{S_M1+1}]
  v_mov_b32 v{V_ONES+2}, 0x3f803f80
  v_mov_b32 v{V_ONES+3}, 0x3f803f80
  s_mov_b32 s{S_C0}, 0x3eb8aa3b""")
def readsA(buf, kk):
    va = V_X0C if kk == 0 else V_X1C
    r = trr(FW(buf, 1), 1) + trr(FW(buf, 2), 2) + trr(FW(buf, 0), 0)
    for b in range(4): r.append(f"  ds_read_b128 v[{FX(buf,b)}:{FX(buf,b)+3}], v{va} offset:{b*2048}")
    r.append(f"  ds_read_b128 v[{FX(buf,4)}:{FX(buf,4)+3}], v{V_H0C if kk == 0 else V_H1C}")
    return r
def mfmasA(buf):
    m = []
    for b in range(4):
        x = FX(buf, b)
        m += [mm(AK(b), FW(buf, 1), x), mm(AV(b), x, FW(buf, 2)), mm(AQ(b), FW(buf, 0), x)]
    x = FX(buf, 4)
    return m + [mm(AK(4), FW(buf, 1), x), mm(AV(4), x, FW(buf, 2))]
mainloop("A", readsA, mfmasA, [f"  v_add_u32 v{V_H0C}, s{S_XO}, v{V_HA}", f"  v_xor_b32 v{V_H1C}, 64, v{V_H0C}"], lambda: None, args.bpos)
K4 = lambda b: 72 + 4 * b
Q4 = lambda b: 88 + 4 * b
VP = lambda p, i: 104 + 6 * p + 2 * i
KH = 116; KH2 = 118; TT = 120
for b in range(4):
    cvt(K4(b), AK(b))
    cvt(VP(b & 1, (b >> 1) + 1), AV(b))
    tt = TT + 2 * (b & 1)
    cvt(tt, AQ(b))
    A(f"  v_and_b32 v{Q4(b)}, v{tt}, v{V_HI}\n  v_and_b32 v{Q4(b)+1}, v{tt+1}, v{V_HI}")
    A(f"  v_xor_b32 v{Q4(b)+2}, v{tt}, v{Q4(b)}\n  v_xor_b32 v{Q4(b)+3}, v{tt+1}, v{Q4(b)+1}")
cvt(KH, AK(4))
cvt(VP(1, 0), AV(4))
A(f"""  s_nop 1
  v_mov_b32_dpp v{KH2}, v{KH} row_ror:8 row_mask:0xf bank_mask:0xf
  v_mov_b32_dpp v{KH2+1}, v{KH+1} row_ror:8 row_mask:0xf bank_mask:0xf
  v_mov_b32 v{VP(0,0)}, v{VP(1,0)}
  v_mov_b32 v{VP(0,0)+1}, v{VP(1,0)+1}
  v_mov_b32 v{TT}, v{VP(1,0)}
  v_mov_b32 v{TT+1}, v{VP(1,0)+1}
  s_nop 1
  v_permlane32_swap_b32 v{VP(0,0)}, v{TT}
  v_permlane32_swap_b32 v{VP(0,0)+1}, v{TT+1}""")
for b in range(4):
    t, p = b >> 1, b & 1
    prev = (KH2 if p == 0 else KH) if t == 0 else K4(p)
    A(f"  v_cndmask_b32 v{K4(b)+2}, v{K4(b)}, v{prev}, s[{S_M0}:{S_M0+1}]\n  v_cndmask_b32 v{K4(b)+3}, v{K4(b)+1}, v{prev+1}, s[{S_M0}:{S_M0+1}]")
A("  s_nop 1")
SS = lambda b: ACC + 4 * b
for b in range(4):
    mk = MK0 if b < 2 else MK
    A(f"  v_mfma_f32_16x16x32_bf16 v[{SS(b)}:{SS(b)+3}], v[{K4(b)}:{K4(b)+3}], v[{Q4(b)}:{Q4(b)+3}], v[{mk}:{mk+3}]")
MX = lambda b: 32 + b
MT = 36
A("  s_nop 7")
for b in range(4): A(f"  v_max3_f32 v{MX(b)}, v{SS(b)}, v{SS(b)+1}, v{SS(b)+2}")
for b in range(4): A(f"  v_max_f32 v{MX(b)}, v{MX(b)}, v{SS(b)+3}")
a, b_, c, d = [MX(i) for i in range(4)]
A(f"""  s_nop 0
  v_permlane32_swap_b32 v{a}, v{b_}
  v_permlane32_swap_b32 v{c}, v{d}
  v_max_f32 v{a}, v{a}, v{b_}
  v_max_f32 v{c}, v{c}, v{d}
  s_nop 1
  v_permlane16_swap_b32 v{a}, v{c}
  v_max_f32 v{a}, v{a}, v{c}
  v_mul_f32 v{a}, s{S_C0}, v{a}
  v_mov_b32 v{c}, v{a}
  s_nop 1
  v_permlane16_swap_b32 v{a}, v{c}
  v_mov_b32 v{b_}, v{a}
  v_mov_b32 v{d}, v{c}
  s_nop 0
  v_permlane32_swap_b32 v{a}, v{b_}
  v_permlane32_swap_b32 v{c}, v{d}""")
for b in range(4):
    for r in range(4): A(f"  v_fma_f32 v{SS(b)+r}, v{SS(b)+r}, s{S_C0}, -v{MX(b)}")
for b in range(4):
    for r in range(4): A(f"  v_exp_f32 v{SS(b)+r}, v{SS(b)+r}")
P4 = lambda b: 40 + 4 * b
for b in range(4):
    tt = MT + 2 * (b & 1)
    cvt(tt, SS(b))
    A(f"  v_and_b32 v{P4(b)}, v{tt}, v{V_PV}\n  v_and_b32 v{P4(b)+1}, v{tt+1}, v{V_PV}")
    A(f"  v_xor_b32 v{P4(b)+2}, v{tt}, v{P4(b)}\n  v_xor_b32 v{P4(b)+3}, v{tt+1}, v{P4(b)+1}")
A("  s_nop 1")
OO = lambda b: 72 + 4 * b
SM = lambda b: 88 + 4 * b
for b in range(4):
    t, p = b >> 1, b & 1
    A(f"  v_mfma_f32_16x16x32_bf16 v[{SM(b)}:{SM(b)+3}], v[{V_ONES}:{V_ONES+3}], v[{P4(b)}:{P4(b)+3}], 0")
    A(f"  v_mfma_f32_16x16x32_bf16 v[{OO(b)}:{OO(b)+3}], v[{VP(p,t)}:{VP(p,t)+3}], v[{P4(b)}:{P4(b)+3}], 0")
A("  s_nop 4")
for b in range(4): A(f"  v_rcp_f32 v{SM(b)}, v{SM(b)}")
for b in range(4):
    for r in (0, 2): A(f"  v_pk_mul_f32 v[{OO(b)+r}:{OO(b)+r+1}], v[{OO(b)+r}:{OO(b)+r+1}], v[{SM(b)}:{SM(b)+1}] op_sel_hi:[1,0]")
store_frags(OO, 2, ACC)
A("  s_branch L_phase2")

A("L_compB:")
A(f"""  s_mov_b32 s{S_C0}, 0x358637bd
  s_mov_b32 s{S_C1}, 0x3fb8aa3b
  s_mov_b32 s{S_C2}, {hex(f2u(-1e-6 * 1.4426950408889634))}
  v_mov_b32 v{V_NC}, s{S_C2}
  v_add_u32 v{V_XA}, 2048, v{V_XA}
  v_xor_b32 v{V_XA1}, 64, v{V_XA}
  v_mov_b32 v{V_X0C}, v{V_XA}
  v_mov_b32 v{V_X1C}, v{V_XA1}""")
for r in range(16, 48): A(f"  v_mov_b32 v{r}, s{S_C0}")
A(f"  s_cmp_lg_u32 s{S_RH}, 0\n  s_cbranch_scc1 L_compQ")
A(f"""  s_cmp_lg_u32 s{S_RB}, 0
  s_cbranch_scc1 L_nozero
  v_mov_b32 v8, 0
  v_mov_b32 v9, 0
  v_mov_b32 v10, 0
  v_mov_b32 v11, 0
  v_lshlrev_b32 v7, 4, v0
  buffer_store_dwordx4 v[8:11], v7, s[{SRD_WS}:{SRD_WS+3}], s{S_C3} offen sc1
  s_mov_b64 exec, 0xff
  buffer_store_dwordx4 v[8:11], v7, s[{SRD_WS}:{SRD_WS+3}], s{S_C3} offen offset:1024 sc1
  s_mov_b64 exec, -1
  s_lshl_b32 s{S_T0}, s{S_HG}, 2
  s_add_u32 s{S_T0}, s{S_T0}, s{S_HH}
  s_mul_i32 s{S_T0}, s{S_T0}, {9*128}
  s_add_u32 s{S_T0}, s{S_T0}, {WS_FLG}
  v_lshlrev_b32 v7, 7, v0
  s_mov_b64 exec, 0x1ff
  buffer_store_dword v8, v7, s[{SRD_WS}:{SRD_WS+3}], s{S_T0} offen sc1
  s_mov_b64 exec, -1
L_nozero:""")
BK = lambda b: 16 + 4 * b
BV = lambda b: 48 + 4 * b
GX = lambda buf, b: 80 + 40 * buf + 4 * b
GW = lambda buf, i: 80 + 40 * buf + 32 + 4 * i
for r in range(48, 80): A(f"  v_mov_b32 v{r}, 0")
for r in range(4): A(f"  v_mov_b32 v{V_ONESB+r}, 0x3f803f80")
def xreads(buf, kk):
    va = V_X0C if kk == 0 else V_X1C
    return [f"  ds_read_b128 v[{GX(buf,b)}:{GX(buf,b)+3}], v{va} offset:{b*2048}" for b in range(8)]
def readsKV(buf, kk): return trr(GW(buf, 0), 1) + trr(GW(buf, 1), 2) + xreads(buf, kk)
def mfmasKV(buf):
    m = []
    for b in range(8): m += [mm(BK(b), GX(buf, b), GW(buf, 0)), mm(BV(b), GX(buf, b), GW(buf, 1))]
    return m
def ack():
    A(f"""  s_or_b32 s{S_T0}, s{S_IT}, s{S_RB}
  s_cmp_lg_u32 s{S_T0}, 0
  s_cbranch_scc1 L_noack
  s_waitcnt vmcnt(0)
  s_lshl_b32 s{S_T0}, s{S_HG}, 2
  s_add_u32 s{S_T0}, s{S_T0}, s{S_HH}
  v_mov_b32 v11, s{S_T0}
  s_mov_b64 exec, 1
  global_store_byte v11, v{V_ONE}, s[{S_DBG}:{S_DBG+1}] sc1
  s_mov_b64 exec, -1
L_noack:""")
mainloop("K", readsKV, mfmasKV, [], ack, args.bpos)
if args.kprio: A("  s_setprio 2")
PK = lambda b: 80 + 2 * b
VV = lambda b: 96 + 2 * b
ET = 112
def phi(acc, n, et):
    for i in range(n): A(f"  v_fma_f32 v{et+i}, v{acc+i}, s{S_C1}, v{V_NC}")
    for i in range(n): A(f"  v_exp_f32 v{et+i}, v{et+i} clamp")
    for i in range(n): A(f"  v_max_f32 v{acc+i}, s{S_C0}, v{acc+i}")
    for i in range(0, n, 2): A(f"  v_pk_add_f32 v[{acc+i}:{acc+i+1}], v[{acc+i}:{acc+i+1}], v[{et+i}:{et+i+1}]")
for b in range(8): cvt(VV(b), BV(b))
phi(BK(0), 32, ET)
for b in range(8): cvt(PK(b), BK(b))
KVA = 144; ZA = 148
A("  s_nop 1")
for i in range(4):
    c = "0" if i == 0 else f"v[{KVA}:{KVA+3}]"
    A(f"  v_mfma_f32_16x16x32_bf16 v[{KVA}:{KVA+3}], v[{VV(2*i)}:{VV(2*i)+3}], v[{PK(2*i)}:{PK(2*i)+3}], {c}")
    c = "0" if i == 0 else f"v[{ZA}:{ZA+3}]"
    A(f"  v_mfma_f32_16x16x32_bf16 v[{ZA}:{ZA+3}], v[{V_ONESB}:{V_ONESB+3}], v[{PK(2*i)}:{PK(2*i)+3}], {c}")
A("""  v_and_b32 v7, 15, v0
  v_lshlrev_b32 v7, 2, v7
  v_lshrrev_b32 v8, 5, v0
  v_lshl_add_u32 v7, v8, 8, v7
  v_bfe_u32 v8, v0, 4, 1
  v_lshl_add_u32 v7, v8, 9, v7""")
init_check("B", V_IF, V_IFA)
A("  s_nop 2")
for r in range(4):
    A(f"  buffer_atomic_add_f32 v{KVA+r}, v7, s[{SRD_WS}:{SRD_WS+3}], s{S_C3} offen offset:{64*r}")
A(f"  s_mov_b64 exec, 0xffff\n  buffer_atomic_add_f32 v{ZA}, v7, s[{SRD_WS}:{SRD_WS+3}], s{S_C3} offen offset:1024\n  s_mov_b64 exec, -1")
A(f"  v_mov_b32 v8, 0\n  s_waitcnt vmcnt(0)\n  s_mov_b64 exec, 1\n  buffer_atomic_add v{V_ONE}, v8, s[{SRD_WS}:{SRD_WS+3}], s{S_XH2} offen\n  s_mov_b64 exec, -1\n  s_mov_b32 s{S_IT}, 99\n  s_setprio 0")
A("  s_branch L_phase2")
A("L_compQ:")
def readsQ(buf, kk): return trr(GW(buf, 0), 0) + xreads(buf, kk)
def mfmasQ(buf): return [mm(BK(b), GW(buf, 0), GX(buf, b)) for b in range(8)]
mainloop("Q", readsQ, mfmasQ, [], lambda: None, min(args.bpos, 2))
A("  s_nop 4")
phi(BK(0), 32, ET)
store_frags(BK, 4, 16)

A("L_phase2:")
stamp(3)
A(f"  s_lshr_b32 s{S_T2}, s{S_HH}, 1")
chunk_sel(S_T2)
quarters()
A(f"""  v_and_b32 v11, 15, v0
  v_lshrrev_b32 v12, 4, v0
  v_lshrrev_b32 v13, 2, v11
  v_lshl_add_u32 v13, v12, 3, v13
  v_and_b32 v14, 3, v11
  v_lshlrev_b32 v14, 4, v14
  v_lshl_add_u32 v14, v13, 7, v14
  v_bfe_u32 v10, v13, 1, 1
  s_and_b32 s{S_T0}, s{S_HH}, 1
  v_xor_b32 v10, s{S_T0}, v10
  v_lshl_add_u32 v6, v10, 6, v14
  v_add_u32 v2, s{S_CH}, v6
  v_add_u32 v3, s{S_CH+1}, v6
  v_lshlrev_b32 v11, 12, v11
  v_lshl_add_u32 v1, v12, 4, v11
  s_lshl_b32 s{S_C2}, s{S_RB2}, 17
  s_lshl_b32 s{S_T0}, s{S_RH}, 16
  s_add_u32 s{S_C2}, s{S_C2}, s{S_T0}
  s_lshl_b32 s{S_T0}, s{S_BR}, 10
  s_add_u32 s{S_C2}, s{S_C2}, s{S_T0}
  s_lshl_b32 s{S_T0}, s{S_CB}, 8
  s_add_u32 s{S_C2}, s{S_C2}, s{S_T0}
  s_lshl_b32 s{S_T0}, s{S_HH}, 6
  s_add_u32 s{S_C2}, s{S_C2}, s{S_T0}
  s_mul_i32 s{S_C3}, s{S_RH}, {ORH}""")
A(f"  s_cmp_eq_u32 s{S_IT}, 99\n  s_cbranch_scc1 L_idP")
init_check("P", V_IF, V_IFA)
stamp(4)
A("  s_barrier\n  s_barrier")
WF = lambda ks, c: 104 + (ks % 8) * 8 + c * 4
def wo_reads(i, va):
    for k in range(4):
        for c in range(2):
            d = WF(4 * i + k, c)
            A(f"  ds_read_b64_tr_b16 v[{d}:{d+1}], v{va} offset:{k*4096 + 8*c}\n  ds_read_b64_tr_b16 v[{d+2}:{d+3}], v{va} offset:{k*4096 + 8*c + 512}")
wo_reads(0, 2); wo_reads(1, 3)
A(f"""  v_lshlrev_b32 v5, 4, v0
  v_add_u32 v5, s{S_C3}, v5
  v_and_b32 v11, 31, v0
  v_lshrrev_b32 v12, 5, v0
  v_lshrrev_b32 v13, 4, v11
  v_lshlrev_b32 v13, 14, v13
  v_lshl_add_u32 v13, v12, 8, v13
  v_and_b32 v14, 15, v11
  v_lshl_add_u32 v7, v14, 4, v13
  v_lshlrev_b32 v13, 4, v14
  v_lshl_add_u32 v13, v12, 8, v13
  v_lshlrev_b32 v10, 4, v12
  v_add_u32 v10, 512, v10
  v_cmp_lt_u32 vcc, 15, v11
  s_nop 1
  v_cndmask_b32 v4, v13, v10, vcc
  s_lshl_b32 s{S_C1}, s{S_RB2}, 16
  s_add_u32 s{S_C1}, s{S_C1}, 0x200000
  s_mov_b32 s{S_C0}, 0x358637bd
  s_waitcnt lgkmcnt(0)""")
stamp(5)
A("  s_barrier")
OA = lambda b, c: 16 + (b * 2 + c) * 4
OF = lambda k, b: 40 + (k % 8) * 8 + 4 * b
def gemm_all(bars):
    q = []
    def rd_o(k):
        i, h = k >> 2, k & 3
        for b in range(2):
            A(f"  ds_read_b128 v[{OF(k,b)}:{OF(k,b)+3}], v{8+i} offset:{b*16384 + h*1024}"); q.append(("o", k))
    def rd_w(k):
        i, h = k >> 2, k & 3
        for c in range(2):
            d = WF(k, c)
            A(f"  ds_read_b64_tr_b16 v[{d}:{d+1}], v{i} offset:{h*4096 + 8*c}"); q.append(("w", k))
            A(f"  ds_read_b64_tr_b16 v[{d+2}:{d+3}], v{i} offset:{h*4096 + 8*c + 512}"); q.append(("w", k))
    if bars: A("  s_barrier"); stamp(9)
    for k in range(4): rd_o(k)
    for k in range(16):
        need = [j for j, t in enumerate(q) if t[1] <= k]
        if need:
            n = len(q) - 1 - need[-1]
            A(f"  s_waitcnt lgkmcnt({min(n, 15)})")
            del q[:need[-1] + 1]
        ms = []
        for b in range(2):
            for c in range(2):
                acc = OA(b, c); wf = WF(k, c); d = OF(k, b)
                cin = "0" if k == 0 else f"v[{acc}:{acc+3}]"
                ms.append(f"  v_mfma_f32_16x16x32_bf16 v[{acc}:{acc+3}], v[{wf}:{wf+3}], v[{d}:{d+3}], {cin}")
        A(ms[0]); A(ms[1])
        kn = k + 4 if not bars else None
        if bars:
            if k % 4 == 1 and k + 3 < 16:
                A("  s_barrier")
                for kk in range(k + 3, k + 5): rd_o(kk)
            elif k % 4 == 2 and k + 4 < 16:
                for kk in range(k + 4, k + 6): rd_o(kk)
        elif k + 4 < 16: rd_o(k + 4)
        A(ms[2]); A(ms[3])
        if k < 8: rd_w(k + 8)
A(f"  v_add_u32 v2, s{S_CH+2}, v6\n  v_add_u32 v3, s{S_CH+3}, v6")
for i in range(4): A(f"  v_add_u32 v{8+i}, s{S_Q+i}, v5")
A(f"  s_cmp_lg_u32 s{S_BR}, 0\n  s_cbranch_scc1 L_p2B")
gemm_all(True)
A("  s_branch L_fin")
A("L_p2B:")
PQ = lambda i, rg: 40 + (i * 2 + rg) * 4
A(f"""  s_lshr_b32 s{S_A0}, s{S_WV}, 1
  s_lshl_b32 s{S_A0}, s{S_A0}, 10
  s_and_b32 s{S_T0}, s{S_WV}, 1
  s_lshl_b32 s{S_T0}, s{S_T0}, 9
  s_add_u32 s{S_A0}, s{S_A0}, s{S_T0}""")
for i in range(4):
    A(f"  s_add_u32 s{S_T2}, s{S_A0}, {i*4096}\n  s_add_u32 s{S_T2}, s{S_T2}, s{S_C1}\n  s_add_u32 s{S_T3}, s{S_T2}, 32768")
    for rg in range(2):
        d = PQ(i, rg)
        A(f"  buffer_load_dwordx4 v[{d}:{d+3}], v7, s[{SRD_WS}:{SRD_WS+3}], s{S_T2 if rg == 0 else S_T3} offen {args.cl}")
for i in range(4):
    A(f"""  s_add_u32 s{S_T0}, s{S_WV}, {8*i}
  s_mul_i32 s{S_T1}, s{S_T0}, {KVS}
  s_cmp_lt_u32 s{S_T0}, 11
  s_cselect_b32 s{S_T0}, 0, {KV1-KV0}
  s_add_u32 s{S_T1}, s{S_T1}, s{S_T0}
  s_add_u32 s{S_T1}, s{S_T1}, {KV0}
  v_add_u32 v{12+i}, s{S_T1}, v4""")
A(f"  v_add_u32 v32, s{S_A0}, v7\n  v_add_u32 v33, {ORH}, v32\n  s_waitcnt vmcnt(0)")
if 'cyc' not in args.dbg: stamp(12)
A("  s_barrier")
if 'cyc' not in args.dbg: stamp(13)
for i in range(4): A(f"  ds_read_b128 v[{16+4*i}:{19+4*i}], v{12+i}")
def pm(u):
    i, rg = u >> 1, u & 1; d = 72 + 16 * rg
    A(f"  v_mfma_f32_32x32x16_bf16 v[{d}:{d+15}], v[{16+4*i}:{19+4*i}], v[{PQ(i,rg)}:{PQ(i,rg)+3}], 0")
def pv(u):
    i, rg = u >> 1, u & 1; d = 72 + 16 * rg
    A(f"  v_add_f32 v{d+8}, s{S_C0}, v{d+8}\n  v_rcp_f32 v{d+8}, v{d+8}\n  s_nop 0")
    for r in range(0, 8, 2):
        A(f"  v_pk_mul_f32 v[{d+r}:{d+r+1}], v[{d+r}:{d+r+1}], v[{d+8}:{d+9}] op_sel_hi:[1,0]")
    o_ = PQ(i, rg)
    cvt(o_, d); cvt(o_ + 2, d + 4)
    A(f"  ds_write_b128 v{32+rg}, v[{o_}:{o_+3}] offset:{i*4096}")
A("  s_waitcnt lgkmcnt(0)")
pm(0); pm(1)
A("  s_nop 10")
for u in range(8):
    pv(u)
    if u + 2 < 8: pm(u + 2)
    if u == 6: A("  s_nop 0")
A("  s_waitcnt lgkmcnt(0)")
stamp(14)
A("  s_barrier")
stamp(9)
gemm_all(False)
A("L_fin:\n  s_nop 7")
for b in range(2):
    d = 32 + 4 * b
    cvt(d, OA(b, 0)); cvt(d + 2, OA(b, 1))
    A(f"  s_add_u32 s{S_T0}, s{S_C2}, {b * 2048}")
    A(f"  buffer_store_dwordx4 v[{d}:{d+3}], v1, s[{SRD_OUT}:{SRD_OUT+3}], s{S_T0} offen {args.ost.replace('_', ' ')}")
stamp(10)
if NSTAMP:
    A("  s_waitcnt vmcnt(0)")
    stamp(11)
    A(f"  s_cmp_lg_u32 s{S_WV}, 0\n  s_cbranch_scc1 L_end")
    stamp_flush([0, 1, 2, 3, 4, 5, 9, 10, 11, 12, 13, 14], 8)
if args.diag:
    A(f"""  s_or_b32 s{S_T0}, s{S_J}, s{S_WV}
  s_cmp_lg_u32 s{S_T0}, 0
  s_cbranch_scc1 L_end
  s_waitcnt vmcnt(0)
  s_memrealtime s[96:97]
  s_waitcnt lgkmcnt(0)
  s_not_b32 s98, s98
  v_mov_b32 v8, s96
  v_mov_b32 v9, s98
  v_mov_b32 v10, 32
  s_mov_b64 exec, 1
  global_atomic_umax v10, v8, s[{S_DBG}:{S_DBG+1}]
  global_atomic_umax v10, v9, s[{S_DBG}:{S_DBG+1}] offset:4""")
A("L_end:\n  s_endpgm\nL_codeend:")
A(f""".section .rodata,"a"
.p2align 6
.amdhsa_kernel {NAME}
  .amdhsa_next_free_vgpr 168
  .amdhsa_next_free_sgpr 102
  .amdhsa_accum_offset 168
  .amdhsa_group_segment_fixed_size 0
  .amdhsa_kernarg_size 72
  .amdhsa_user_sgpr_count 2
  .amdhsa_user_sgpr_kernarg_segment_ptr 1
  .amdhsa_system_sgpr_workgroup_id_x 1
.end_amdhsa_kernel""")
print("\n".join(out))
```

```python
import sys, argparse, struct
ap = argparse.ArgumentParser()
ap.add_argument("--stamps", type=int, default=0)
ap.add_argument("--order", type=str, default="g4c")
ap.add_argument("--dbg", type=str, default="")
ap.add_argument("--touch", type=int, default=4)
ap.add_argument("--psleep", type=int, default=2)
ap.add_argument("--maxfl", type=int, default=20)
ap.add_argument("--codepf", type=int, default=0)
ap.add_argument("--D", type=int, default=5)
ap.add_argument("--D0", type=int, default=2)
ap.add_argument("--ramp", type=int, default=4)
ap.add_argument("--bpos", type=int, default=3)
ap.add_argument("--ldf", type=str, default="")
ap.add_argument("--ldn", type=int, default=6)
ap.add_argument("--atouch", type=int, default=0)
ap.add_argument("--kprio", type=int, default=1)
ap.add_argument("--ost", type=str, default="sc1")
ap.add_argument("--diag", type=int, default=0)
ap.add_argument("--tlb", type=int, default=1)
ap.add_argument("--flip", type=int, default=1)
ap.add_argument("--cl", type=str, default="")
args = ap.parse_args()
NAME = "concat_heads__sliding_local_dilated__linear_attn_block__prompt_kernel"
out = []
def A(s): out.append(s)
def f2u(x): return struct.unpack("<I", struct.pack("<f", x))[0]
SPINMAX = "0x40000"
XSLOT = 18432; NXS = 4
WBASE = XSLOT * NXS
WSLOT = 12288; NWS = 7
LDS_TOTAL = WBASE + WSLOT * NWS
ORH = 98304
KVS = 544
KV0 = 32768; KV1 = 147456 - 11 * KVS
WS_KV = 4 << 20
KVH = 1152
WS_FLG = (4 << 20) + 65536
WS_CNT = WS_FLG + 256 * 128
STAMP_OFF = 128 << 20
NSTAMP = args.stamps
S_PTR = 4; S_WS = 20; S_FLG = 22; S_SEQ = 23
SRD_X = 24; SRD_W = 28; SRD_WO = 32; SRD_OUT = 36; SRD_WS = 40
S_DBG = 44
S_BR = 46; S_RB = 47; S_HG = 48; S_RB2 = 49; S_CB = 50; S_WV = 51; S_J = 52; S_XQ = 53
S_XB = 54; S_XH = 55; S_WB = 56
S_T0 = 57; S_T1 = 58; S_T2 = 59; S_T3 = 60; S_IT = 61
S_M0 = 62; S_M1 = 64
S_XO = 66; S_WO = 67
S_C0 = 68; S_C1 = 69; S_C2 = 70; S_C3 = 71
S_OB = 72; S_SPIN = 73; S_STB = 74
S_ST = 76
S_CH = 12
S_A0 = 16; S_A1 = 17; S_A2 = 18; S_A3 = 19
S_Q = 4
S_HH = 54; S_RH = 55; S_XH2 = 56

def sreg(i): return S_ST + 2 * (i if i < 12 else i - 6)
def stamp(i):
    if i < NSTAMP: A(f"  s_memrealtime s[{sreg(i)}:{sreg(i)+1}]")
def stamp_flush(idxs, vtmp):
    if not NSTAMP: return
    A(f"  s_waitcnt lgkmcnt(0)\n  s_mov_b64 exec, 1\n  v_mov_b32 v{vtmp+2}, 0")
    for i in idxs:
        if i < NSTAMP:
            A(f"  v_mov_b32 v{vtmp}, s{sreg(i)}\n  v_mov_b32 v{vtmp+1}, s{sreg(i)+1}")
            A(f"  global_store_dwordx2 v{vtmp+2}, v[{vtmp}:{vtmp+1}], s[{S_STB}:{S_STB+1}] offset:{8*i}\n  s_nop 1")
    A("  s_mov_b64 exec, -1")
def spin(lbl_out):
    return f"  s_add_u32 s{S_SPIN}, s{S_SPIN}, 1\n  s_cmp_gt_u32 s{S_SPIN}, {SPINMAX}\n  s_cbranch_scc1 {lbl_out}"
def cvt(d, a):
    A(f"  v_cvt_pk_bf16_f32 v{d}, v{a}, v{a+1}\n  v_cvt_pk_bf16_f32 v{d+1}, v{a+2}, v{a+3}")
def quarters():
    for i in range(4):
        A(f"  s_add_u32 s{S_T0}, s{S_CB}, {i}\n  s_and_b32 s{S_T0}, s{S_T0}, 3\n  s_lshl_b32 s{S_Q+i}, s{S_T0}, 12")

A(f"; @launch grid=(256,1,1) block=(768,1,1) lds={LDS_TOTAL}")
A('.amdgcn_target "amdgcn-amd-amdhsa--gfx950"\n.text\n.globl %s\n.p2align 8\n.type %s,@function\n%s:' % (NAME, NAME, NAME))
A("  s_cmp_ge_u32 s2, 256\n  s_cbranch_scc1 L_end")
A(f"  s_load_dwordx16 s[{S_PTR}:{S_PTR+15}], s[0:1], 0\n  s_load_dwordx2 s[{S_WS}:{S_WS+1}], s[0:1], 64")
stamp(0)
if args.diag: A("  s_memrealtime s[98:99]")
A(f"""  v_lshrrev_b32 v1, 6, v0
  v_and_b32 v0, 63, v0
  v_readfirstlane_b32 s{S_WV}, v1
  s_and_b32 s{S_T0}, s2, 7
  s_lshr_b32 s{S_J}, s2, 3
  s_lshr_b32 s{S_BR}, s{S_T0}, 2
  s_xor_b32 s{S_BR}, s{S_BR}, {args.flip}
  s_and_b32 s{S_XQ}, s{S_T0}, 3
  s_lshr_b32 s{S_T1}, s{S_XQ}, 1
  s_lshl_b32 s{S_T1}, s{S_T1}, 3
  s_lshr_b32 s{S_T2}, s{S_J}, 2
  s_add_u32 s{S_RB}, s{S_T1}, s{S_T2}
  s_and_b32 s{S_T1}, s{S_XQ}, 1
  s_lshl_b32 s{S_T1}, s{S_T1}, 2
  s_and_b32 s{S_CB}, s{S_J}, 3
  s_add_u32 s{S_HG}, s{S_T1}, s{S_CB}
  s_lshl_b32 s{S_T1}, s{S_XQ}, 3
  s_add_u32 s{S_RB2}, s{S_T1}, s{S_T2}
  s_mov_b32 s{S_SPIN}, 0
  s_cmp_lt_u32 s{S_WV}, 8
  s_cbranch_scc1 L_comp""")

VX0 = 1; VX1 = 2; VW = 3; VXH = 4; VWO = 5; VTW = 9; VZ = 10
L_HL = S_C3; L_XL = S_C2; L_WL = S_C1
def seq_pack(l): return sum(x << (4 * i) for i, x in enumerate(l))
o = args.order
A(f"""  s_sub_u32 s{S_WV}, s{S_WV}, 8
  v_lshrrev_b32 v11, 3, v0
  v_and_b32 v12, 7, v0
  v_lshrrev_b32 v13, 4, v0
  v_xor_b32 v14, v12, v13
  v_lshlrev_b32 v14, 4, v14
  v_lshl_add_u32 v{VX0}, v11, 11, v14
  v_xor_b32 v{VX1}, 64, v{VX0}
  v_and_b32 v13, 1, v13
  v_lshlrev_b32 v13, 1, v13
  v_xor_b32 v14, v12, v13
  v_lshlrev_b32 v14, 4, v14
  v_mul_u32_u24 v{VW}, 3072, v11
  v_add_u32 v{VW}, v{VW}, v14
  s_and_b32 s{S_T0}, s{S_WV}, 1
  s_lshl_b32 s{S_T1}, s{S_T0}, 6
  v_xor_b32 v{VW}, s{S_T1}, v{VW}
  v_xor_b32 v{VXH}, s{S_T1}, v{VX0}
  s_lshl_b32 s{S_XB}, s{S_RB}, 17
  s_sub_u32 s{S_XH}, s{S_XB}, 16384
  s_max_i32 s{S_XH}, s{S_XH}, 0
  s_lshl_b32 s{L_HL}, s{S_T0}, 10
  s_add_u32 s{S_XH}, s{S_XH}, s{L_HL}
  s_lshl_b32 s{S_T1}, s{S_WV}, 15
  s_add_u32 s{S_XB}, s{S_XB}, s{S_T1}
  s_lshl_b32 s{L_XL}, s{S_WV}, 12
  s_add_u32 s{L_XL}, s{L_XL}, 2048
  s_lshl_b32 s{S_WB}, s{S_HG}, 7
  s_mul_i32 s{S_T1}, s{S_WV}, 24576
  s_add_u32 s{S_WB}, s{S_WB}, s{S_T1}
  s_lshl_b32 s{L_WL}, s{S_WV}, 10
  s_add_u32 s{L_WL}, s{L_WL}, {WBASE}""")
def order_code(o, reg):
    if o == "plain":
        A(f"  s_mov_b32 s{reg}, {hex(seq_pack(range(8)))}")
    elif o == "rot8":
        A(f"""  s_lshl_b32 s{S_T1}, s{S_CB}, 1
  s_add_u32 s{S_T1}, s{S_T1}, s{S_T2}
  s_and_b32 s{S_T1}, s{S_T1}, 7
  s_mul_i32 s{S_T1}, s{S_T1}, 0x11111111
  s_add_u32 s{reg}, s{S_T1}, {hex(seq_pack(range(8)))}
  s_and_b32 s{reg}, s{reg}, 0x77777777""")
    elif o.startswith("g2"):
        seqs = {"g2a": "a0 a1 b0 a2 b1 a3 b2 b3", "g2b": "a0 a1 a2 a3 b0 b1 b2 b3", "g2c": "a0 b0 a1 b1 a2 b2 a3 b3", "g2d": "a0 a1 a2 b0 b1 a3 b2 b3"}
        l = [2 * int(x[1]) + (x[0] == 'b') for x in seqs[o].split()]
        A(f"  s_add_u32 s{S_T1}, s{S_T2}, s{S_CB}\n  s_and_b32 s{S_T1}, s{S_T1}, 1\n  s_mul_i32 s{S_T1}, s{S_T1}, 0x11111111\n  s_xor_b32 s{reg}, s{S_T1}, {hex(seq_pack(l))}")
    elif o.startswith("g4"):
        seqs = {"g4a": "00 01 02 10 03 11 12 13", "g4b": "00 10 01 02 03 11 12 13", "g4c": "00 01 10 02 03 11 12 13", "g4d": "00 01 02 03 10 11 12 13"}
        l = [4 * int(x[0]) + int(x[1]) for x in seqs[o].split()]
        A(f"  s_add_u32 s{S_T1}, s{S_T2}, s{S_CB}\n  s_and_b32 s{S_T1}, s{S_T1}, 3\n  s_mul_i32 s{S_T1}, s{S_T1}, 0x11111111\n  s_xor_b32 s{reg}, s{S_T1}, {hex(seq_pack(l))}")
oa, ob = (o.split(",") + [o])[:2]
order_code(oa, S_SEQ)
if ob != oa:
    order_code(ob, S_IT)
    A(f"  s_cmp_eq_u32 s{S_BR}, 0\n  s_cselect_b32 s{S_SEQ}, s{S_SEQ}, s{S_IT}")
def build_srds():
    A(f"""  s_waitcnt lgkmcnt(0)
  s_cmp_eq_u32 s{S_BR}, 0
  s_cselect_b32 s{SRD_X}, s{S_PTR+0}, s{S_PTR+6}
  s_cselect_b32 s{SRD_X+1}, s{S_PTR+1}, s{S_PTR+7}
  s_cselect_b32 s{SRD_W}, s{S_PTR+2}, s{S_PTR+8}
  s_cselect_b32 s{SRD_W+1}, s{S_PTR+3}, s{S_PTR+9}
  s_mov_b32 s{SRD_X+2}, 0x200000
  s_mov_b32 s{SRD_X+3}, 0x20000
  s_mov_b32 s{SRD_W+2}, 0x180000
  s_mov_b32 s{SRD_W+3}, 0x20000""")
def build_srds2():
    A(f"""  s_cmp_eq_u32 s{S_BR}, 0
  s_cselect_b32 s{SRD_WO}, s{S_PTR+4}, s{S_PTR+10}
  s_cselect_b32 s{SRD_WO+1}, s{S_PTR+5}, s{S_PTR+11}
  s_mov_b32 s{SRD_WO+2}, 0x80000
  s_mov_b32 s{SRD_WO+3}, 0x20000
  s_mov_b32 s{SRD_OUT}, s{S_PTR+12}
  s_mov_b32 s{SRD_OUT+1}, s{S_PTR+13}
  s_mov_b32 s{SRD_OUT+2}, 0x400000
  s_mov_b32 s{SRD_OUT+3}, 0x20000
  s_mov_b32 s{SRD_WS}, s{S_WS}
  s_mov_b32 s{SRD_WS+1}, s{S_WS+1}
  s_mov_b32 s{SRD_WS+2}, 0x500000
  s_mov_b32 s{SRD_WS+3}, 0x20000
  s_mov_b32 s{S_DBG}, s{S_PTR+14}
  s_mov_b32 s{S_DBG+1}, s{S_PTR+15}""")
    if NSTAMP:
        A(f"""  s_add_u32 s{S_STB}, s{S_WS}, {STAMP_OFF}
  s_addc_u32 s{S_STB+1}, s{S_WS+1}, 0
  s_mul_i32 s{S_T1}, s2, {8*NSTAMP}
  s_add_u32 s{S_STB}, s{S_STB}, s{S_T1}
  s_addc_u32 s{S_STB+1}, s{S_STB+1}, 0""")
build_srds()
curg = [0]
def dma(vo, srd, sreg, imm, lreg, limm, extra=""):
    if "noload" in args.dbg and srd in (SRD_X, SRD_W): return
    if srd in (SRD_X, SRD_W) and args.ldf and curg[0] < args.ldn: extra = " " + args.ldf.replace("_", " ")
    A(f"  s_add_u32 s{S_T1}, s{sreg}, {imm}\n  s_add_u32 m0, s{lreg}, {limm}\n  s_waitcnt vmcnt({args.maxfl-1})\n  buffer_load_dwordx4 v{vo}, s[{srd}:{srd+3}], s{S_T1} offen{extra} lds")
D = args.D
def gsize(g): return 8 if g == 0 else (3 if g == 15 else (6 if g & 1 else 5))
def xops(t, which):
    xl = (t % NXS) * XSLOT
    A(f"  s_lshr_b32 s{S_T0}, s{S_SEQ}, {4*t}\n  s_and_b32 s{S_T0}, s{S_T0}, 7\n  s_lshl_b32 s{S_T0}, s{S_T0}, 7\n  s_add_u32 s{S_T3}, s{S_T0}, s{S_XB}")
    lst = [(p, m) for p in range(2) for m in range(2)]
    for i in which:
        if i < 4:
            p, m = lst[i]
            dma(VX0 if m == 0 else VX1, SRD_X, S_T3, (p + 16 * m) * 1024, L_XL, xl + p * 2048 + m * 1024)
        else:
            A(f"  s_add_u32 s{S_C0}, s{S_T0}, s{S_XH}")
            dma(VXH, SRD_X, S_C0, 0, L_HL, xl)
def issue_group(g):
    curg[0] = g
    t = g >> 1
    if g > 0 and g & 1 == 0: xops(t, [3, 4])
    A(f"""  s_lshr_b32 s{S_T0}, s{S_SEQ}, {4*t}
  s_and_b32 s{S_T0}, s{S_T0}, 7
  s_mul_i32 s{S_T2}, s{S_T0}, 196608
  s_add_u32 s{S_T2}, s{S_T2}, s{S_WB}""")
    wl = (g % NWS) * WSLOT
    for seg in range(3): dma(VW, SRD_W, S_T2, (g & 1) * 32 * 3072 + seg * 1024, L_WL, wl + seg * 4096)
    if g == 0: xops(0, [0, 1, 2, 3, 4])
    elif g & 1 and g < 15: xops(t + 1, [0, 1, 2])
    if g == 2 * args.touch + 1:
        A(f"""  v_lshlrev_b32 v{VTW}, 7, v0
  s_lshl_b32 s{S_T1}, s{S_J}, 14
  s_lshl_b32 s{S_T0}, s{S_WV}, 12
  s_add_u32 s{S_T1}, s{S_T1}, s{S_T0}
  s_mov_b32 exec_hi, 0
  buffer_load_dword v11, v{VTW}, s[{SRD_WO}:{SRD_WO+3}], s{S_T1} offen
  s_mov_b64 exec, -1""")
        return 1
    return 0
XC = lambda i: i * XSLOT + 2048
chunks = [[XC(0), 98304], [114688, XC(1)], [131072, XC(2)], [XC(3), WBASE]]
freeat = [11, 12, 14, 16]
def chunk_sel(bitreg):
    A(f"  s_cmp_eq_u32 s{bitreg}, 0")
    for i in range(4): A(f"  s_mov_b32 s{S_CH+i}, {chunks[i][1]}\n  s_cselect_b32 s{S_CH+i}, {chunks[i][0]}, s{S_CH+i}")
def lsetup():
    build_srds2()
    A(f"  s_and_b32 s{S_T2}, s{S_WV}, 1")
    chunk_sel(S_T2)
    quarters()
    A(f"""  v_lshrrev_b32 v11, 3, v0
  v_and_b32 v12, 7, v0
  v_bfe_u32 v13, v0, 4, 1
  v_lshlrev_b32 v13, 2, v13
  v_xor_b32 v12, v12, v13
  v_lshlrev_b32 v12, 4, v12
  v_lshl_add_u32 v{VWO}, v11, 10, v12
  s_lshl_b32 s{S_A0}, s{S_CB}, 8
  s_lshl_b32 s{S_T0}, s{S_T2}, 7
  s_add_u32 s{S_A0}, s{S_A0}, s{S_T0}
  s_lshr_b32 s{S_T0}, s{S_WV}, 1
  s_lshl_b32 s{S_T1}, s{S_T0}, 16
  s_add_u32 s{S_A0}, s{S_A0}, s{S_T1}
  s_lshl_b32 s{S_T0}, s{S_T0}, 13
  s_add_u32 s{S_CH}, s{S_CH}, s{S_T0}
  s_add_u32 s{S_CH+1}, s{S_CH+1}, s{S_T0}
  s_add_u32 s{S_CH+2}, s{S_CH+2}, s{S_T0}
  s_add_u32 s{S_CH+3}, s{S_CH+3}, s{S_T0}
  s_lshl_b32 s{S_FLG}, s{S_BR}, 7
  s_lshl_b32 s{S_T1}, s{S_RB}, 3
  s_add_u32 s{S_FLG}, s{S_FLG}, s{S_T1}
  s_add_u32 s{S_FLG}, s{S_FLG}, s{S_HG}
  s_lshl_b32 s{S_FLG}, s{S_FLG}, 7
  s_add_u32 s{S_FLG}, s{S_FLG}, {WS_FLG}
  v_mov_b32 v8, 1
  v_mov_b32 v15, 0
  v_and_b32 v{VZ}, 7, v0
  v_lshlrev_b32 v{VZ}, 2, v{VZ}
  v_lshlrev_b32 v6, 7, v0
  v_lshlrev_b32 v7, 4, v0""")
def wo_group(i):
    A(f"  s_lshl_b32 s{S_T0}, s{S_Q+i}, 5\n  s_add_u32 s{S_T2}, s{S_T0}, s{S_A0}")
    for k in range(8): dma(VWO, SRD_WO, S_T2, k * 8192, S_CH + i, k * 1024)
sizes = []
def outstanding_after(kid):
    idx = [i for i, x in enumerate(sizes) if (x[0], x[1]) == kid][0]
    return sum(x[2] for x in sizes[idx + 1:])
def do_group(g):
    e = issue_group(g); sizes.append(("g", g, gsize(g))); sizes.append(("t", g, e))
if args.atouch:
    A(f"""  s_cmp_lg_u32 s{S_BR}, 0
  s_cbranch_scc1 L_notch
  v_and_b32 v11, 31, v0
  v_lshlrev_b32 v11, 10, v11
  v_lshrrev_b32 v12, 5, v0
  v_lshl_add_u32 v11, v12, 7, v11
  s_lshr_b32 s{S_T0}, s{S_XQ}, 1
  s_lshl_b32 s{S_T0}, s{S_T0}, 20
  s_lshl_b32 s{S_T1}, s{S_J}, 15
  s_add_u32 s{S_T0}, s{S_T0}, s{S_T1}
  s_lshl_b32 s{S_T1}, s{S_WV}, 8
  s_add_u32 s{S_T0}, s{S_T0}, s{S_T1}
  v_lshrrev_b32 v12, 2, v0
  v_mul_u32_u24 v12, 3072, v12
  v_and_b32 v13, 3, v0
  v_lshl_add_u32 v12, v13, 7, v12
  s_mul_i32 s{S_T1}, s{S_J}, {16*3072}
  s_and_b32 s{S_T2}, s{S_XQ}, 1
  s_lshl_b32 s{S_T2}, s{S_T2}, 9
  s_add_u32 s{S_T1}, s{S_T1}, s{S_T2}
  s_min_u32 s{S_T2}, s{S_WV}, 2
  s_lshl_b32 s{S_T2}, s{S_T2}, 10
  s_add_u32 s{S_T1}, s{S_T1}, s{S_T2}""")
    R = args.atouch
    masks = {1: [(-1, -1)], 2: [(-1, 0), (0, -1)], 3: [(0xffff, 0), (0xffff0000, 0), (0, -1)], 4: [(0xffff, 0), (0xffff0000, 0), (0, 0xffff), (0, 0xffff0000)]}[R]
    for lo, hi in masks:
        A(f"""  s_mov_b32 exec_lo, {hex(lo & 0xffffffff)}
  s_mov_b32 exec_hi, {hex(hi & 0xffffffff)}
  buffer_load_dword v13, v11, s[{SRD_X}:{SRD_X+3}], s{S_T0} offen
  buffer_load_dword v14, v12, s[{SRD_W}:{SRD_W+3}], s{S_T1} offen
  s_waitcnt vmcnt(0)""")
    A("  s_mov_b64 exec, -1\nL_notch:")
for g in range(args.D0): do_group(g)
lsetup()
nxt = args.D0
for bq in range(17):
    if bq < 16: A(f"  s_waitcnt vmcnt({min(63, outstanding_after(('g', bq)))})")
    A("  s_barrier")
    while nxt < 16 and nxt <= bq + D - 1 and nxt <= bq + 5 and (nxt <= bq + args.D0 or bq >= args.ramp):
        do_group(nxt); nxt += 1
    for i in range(4):
        if freeat[i] == bq: wo_group(i); sizes.append(("w", i, 8))
stamp(6)
def init_check(tag, v, vz):
    A(f"""  s_mov_b32 s{S_T1}, 0x01010101
L_ic{tag}:
  s_waitcnt vmcnt(0)
  v_cmp_ne_u32 vcc, s{S_T1}, v{v}
  s_nop 3
  s_cmp_eq_u64 vcc, 0
  s_cbranch_scc1 L_id{tag}
{spin(f"L_id{tag}")}
  s_sleep 4
  global_load_dword v{v}, v{vz}, s[{S_DBG}:{S_DBG+1}] sc1
  s_branch L_ic{tag}
L_id{tag}:""")
def poll(tag, voff, sreg, val=1):
    A(f"""L_pl{tag}:
  buffer_load_dword v16, v{voff}, s[{SRD_WS}:{SRD_WS+3}], s{sreg} offen sc1
  s_waitcnt vmcnt(0)
  v_cmp_ne_u32 vcc, {val}, v16
  s_and_b64 exec, exec, vcc
  s_cbranch_execz L_po{tag}
{spin(f"L_po{tag}")}
  s_sleep {args.psleep}
  s_branch L_pl{tag}
L_po{tag}:
  s_mov_b64 exec, -1""")
A("  s_barrier")
A(f"""  s_cmp_lg_u32 s{S_WV}, 0
  s_cbranch_scc1 L_nofl
  s_mov_b64 exec, 1
  buffer_store_dword v8, v15, s[{SRD_WS}:{SRD_WS+3}], s{S_FLG} offen sc1
  s_mov_b64 exec, -1
  s_waitcnt vmcnt({outstanding_after(('w', 1)) + 1})
  s_branch L_fl2
L_nofl:
  s_waitcnt vmcnt({outstanding_after(('w', 1))})
L_fl2:
  s_barrier""")
stamp(7)
A(f"""  s_cmp_lg_u32 s{S_WV}, 0
  s_cbranch_scc1 L_await
  s_lshr_b32 s{S_T1}, s{S_RB2}, 1
  s_lshl_b32 s{S_T1}, s{S_T1}, 10
  s_lshl_b32 s{S_T0}, s{S_BR}, 14
  s_add_u32 s{S_T1}, s{S_T1}, s{S_T0}
  s_add_u32 s{S_T1}, s{S_T1}, {WS_FLG}
  s_mov_b64 exec, 0xff""")
poll("R", 6, S_T1)
A(f"""L_await:
  s_lshl_b32 s{S_T3}, s{S_RB2}, 16
  s_lshl_b32 s{S_T0}, s{S_WV}, 14
  s_add_u32 s{S_T3}, s{S_T3}, s{S_T0}
  s_and_b32 s{S_T2}, s{S_WV}, 1
  s_lshl_b32 s{S_T2}, s{S_T2}, 14
  s_lshr_b32 s{S_T0}, s{S_WV}, 1
  s_mul_i32 s{S_T0}, s{S_T0}, {ORH}
  s_add_u32 s{S_T2}, s{S_T2}, s{S_T0}
  s_waitcnt vmcnt(0)
  s_barrier""")
def lfin():
    if NSTAMP:
        A(f"  s_cmp_lg_u32 s{S_WV}, 0\n  s_cbranch_scc1 L_end")
        stamp_flush([6, 7, 8], 12)
    A("  s_endpgm")
A(f"  s_cmp_eq_u32 s{S_BR}, 0\n  s_cbranch_scc1 L_oload")
A(f"""  s_mov_b32 s{S_T1}, {WS_FLG + 128*128}
  s_mov_b32 s{S_T2}, {WS_FLG + 192*128}
  v_lshrrev_b32 v11, 2, v0
  v_lshlrev_b32 v11, 4, v11
  v_bfe_u32 v12, v0, 1, 1
  v_lshl_add_u32 v11, v12, 8, v11
  v_and_b32 v12, 1, v0
  v_lshl_add_u32 v11, v12, 3, v11
  s_lshl_b32 s{S_A0}, s{S_WV}, 3
  s_mul_i32 s{S_A1}, s{S_A0}, {KVH}
  s_add_u32 s{S_A1}, s{S_A1}, {WS_KV}
  v_bfe_u32 v12, v0, 2, 3
  v_mul_u32_u24 v13, {KVH}, v12
  v_and_b32 v14, 3, v0
  v_lshl_add_u32 v13, v14, 4, v13
  v_add_u32 v13, 1024, v13
  v_add_u32 v12, s{S_A0}, v12              ; head
  v_mul_u32_u24 v20, {KVS}, v12
  v_lshl_add_u32 v20, v14, 3, v20
  v_add_u32 v20, {KV0 + 512}, v20
  v_add_u32 v21, {KV1 - KV0}, v20
  v_cmp_lt_u32 vcc, 10, v12
  s_nop 1
  v_cndmask_b32 v20, v20, v21, vcc""")
A(f"  s_lshl_b32 s{S_A2}, s{S_WV}, 10\n  s_add_u32 s{S_A2}, s{S_A2}, {WS_CNT}\n  s_mov_b64 exec, 0xff")
poll("K", 6, S_A2, 16)
stamp(8)
for h in range(8):
    r = 24 + h * 4
    A(f"  s_add_u32 s{S_T1}, s{S_A1}, {h*KVH}\n  buffer_load_dwordx4 v[{r}:{r+3}], v7, s[{SRD_WS}:{SRD_WS+3}], s{S_T1} offen {args.cl}")
A(f"  buffer_load_dwordx4 v[56:59], v13, s[{SRD_WS}:{SRD_WS+3}], s{S_A1} offen {args.cl}")
for h in range(8):
    r = 24 + h * 4
    A(f"""  s_add_u32 s{S_T0}, s{S_A0}, {h}
  s_mul_i32 s{S_T1}, s{S_T0}, {KVS}
  s_cmp_lt_u32 s{S_T0}, 11
  s_cselect_b32 s{S_T0}, 0, {KV1-KV0}
  s_add_u32 s{S_T1}, s{S_T1}, s{S_T0}
  s_add_u32 s{S_T1}, s{S_T1}, {KV0}
  v_add_u32 v{60+h}, s{S_T1}, v11""")
for h in range(8):
    r = 24 + h * 4
    A(f"  s_waitcnt vmcnt({8-h})")
    cvt(r, r)
    A(f"  ds_write_b64 v{60+h}, v[{r}:{r+1}]")
A("  s_waitcnt vmcnt(0)")
cvt(56, 56)
A("  ds_write_b64 v20, v[56:57]\n  s_waitcnt lgkmcnt(0)\n  s_barrier")
if NSTAMP: A("  s_barrier")
lfin()
A("L_oload:")
stamp(8)
def oloads(i):
    A(f"  s_add_u32 s{S_A0}, s{S_T3}, s{S_Q+i}\n  s_add_u32 s{S_A1}, s{S_T2}, s{S_Q+i}")
    for h in range(4):
        A(f"  s_add_u32 s{S_T1}, s{S_A0}, {h*1024}\n  s_add_u32 m0, s{S_A1}, {h*1024}\n  s_nop 0\n  buffer_load_dwordx4 v7, s[{SRD_WS}:{SRD_WS+3}], s{S_T1} offen {args.cl} lds")
oloads(0)
A("  s_waitcnt vmcnt(0)")
oloads(1)
A("  s_barrier")
oloads(2); oloads(3)
for i in (1, 2, 3): A(f"  s_waitcnt vmcnt({4*(3-i)})\n  s_barrier")
lfin()

V_XA = 1; V_WA = 2; V_XA1 = 3; V_ONE = 4; V_OA = 5; V_X0C = 6; V_X1C = 13; V_WC = 14; V_IFA = 15
V_IF = 160; V_DUM = 161; V_NC = 162; V_ONESB = 164
A("L_comp:")
A(f"  s_and_b32 s{S_HH}, s{S_WV}, 3\n  s_lshr_b32 s{S_RH}, s{S_WV}, 2")
if args.codepf:
    A(f"""  s_getpc_b64 s[{S_M0}:{S_M0+1}]
L_pcref:
  s_sub_u32 s{S_M0}, s{S_M0}, L_pcref-{NAME}
  s_subb_u32 s{S_M0+1}, s{S_M0+1}, 0
  s_lshl_b32 s{S_T0}, s{S_J}, 3
  s_add_u32 s{S_T0}, s{S_T0}, s{S_WV}
  s_lshl_b32 s{S_T0}, s{S_T0}, 7
  s_min_u32 s{S_T0}, s{S_T0}, (L_codeend-{NAME}-4)&0xfffffffc
  v_mov_b32 v7, s{S_T0}
  s_mov_b64 exec, 1
  global_load_dword v{V_DUM}, v7, s[{S_M0}:{S_M0+1}]
  s_mov_b64 exec, -1""")
A(f"""  v_and_b32 v7, 15, v0
  v_lshrrev_b32 v8, 4, v0
  v_lshrrev_b32 v9, 1, v7
  v_xor_b32 v9, v9, v8
  v_lshlrev_b32 v9, 4, v9
  v_lshl_add_u32 v{V_XA}, v7, 7, v9
  v_lshrrev_b32 v9, 2, v7
  v_lshl_add_u32 v9, v8, 3, v9
  v_lshrrev_b32 v10, 1, v9
  v_and_b32 v10, 1, v10
  v_and_b32 v11, 1, v8
  v_lshl_or_b32 v10, v11, 1, v10
  v_xor_b32 v10, s{S_HH}, v10
  v_lshlrev_b32 v10, 5, v10
  v_lshl_add_u32 v10, v9, 7, v10
  v_and_b32 v11, 3, v7
  v_lshl_add_u32 v{V_WA}, v11, 3, v10
  v_add_u32 v{V_WA}, {WBASE}, v{V_WA}
  v_mov_b32 v{V_ONE}, 1
  s_lshl_b32 s{S_T0}, s{S_HG}, 2
  s_add_u32 s{S_T0}, s{S_T0}, s{S_HH}
  s_lshl_b32 s{S_OB}, s{S_T0}, 9
  s_lshl_b32 s{S_T1}, s{S_RB}, 17
  s_add_u32 s{S_OB}, s{S_OB}, s{S_T1}
  s_lshl_b32 s{S_T1}, s{S_BR}, 21
  s_add_u32 s{S_OB}, s{S_OB}, s{S_T1}
  s_mul_i32 s{S_C3}, s{S_T0}, {KVH}
  s_add_u32 s{S_C3}, s{S_C3}, {WS_KV}
  s_lshl_b32 s{S_XH2}, s{S_T0}, 7
  s_add_u32 s{S_XH2}, s{S_XH2}, {WS_CNT}
  s_lshl_b32 s{S_FLG}, s{S_BR}, 7
  s_lshl_b32 s{S_T1}, s{S_RB}, 3
  s_add_u32 s{S_FLG}, s{S_FLG}, s{S_T1}
  s_add_u32 s{S_FLG}, s{S_FLG}, s{S_HG}
  s_lshl_b32 s{S_FLG}, s{S_FLG}, 7
  s_add_u32 s{S_FLG}, s{S_FLG}, {WS_FLG}
  s_lshl_b32 s{S_T1}, s{S_WV}, 2
  s_add_u32 s{S_FLG}, s{S_FLG}, s{S_T1}
  v_and_b32 v9, 1, v8
  v_lshlrev_b32 v9, 14, v9
  v_lshrrev_b32 v10, 1, v8
  v_lshl_add_u32 v9, v10, 8, v9
  v_lshl_add_u32 v{V_OA}, v7, 4, v9
  v_and_b32 v{V_IFA}, 7, v0
  v_lshlrev_b32 v{V_IFA}, 2, v{V_IFA}
  s_mov_b32 s{S_IT}, 0
  s_mov_b32 s{S_XO}, 0
  s_mov_b32 s{S_WO}, 0
  v_mov_b32 v{V_WC}, v{V_WA}
  s_waitcnt lgkmcnt(0)""")
build_srds2()
if args.tlb:
    A(f"""  s_cmp_lg_u32 s{S_WV}, 7
  s_cbranch_scc1 L_notlb
  v_mov_b32 v9, 0
  s_lshl_b32 s{S_T0}, s{S_RB2}, 17
  s_lshl_b32 s{S_T1}, s{S_RB2}, 16
  s_lshl_b32 s{S_T2}, s{S_BR}, 21
  s_add_u32 s{S_T1}, s{S_T1}, s{S_T2}
  s_mov_b64 exec, 1
  buffer_load_dword v{V_DUM}, v9, s[{SRD_WS}:{SRD_WS+3}], s{S_OB} offen sc1
  buffer_load_dword v{V_DUM}, v9, s[{SRD_WS}:{SRD_WS+3}], s{S_FLG} offen sc1
  buffer_load_dword v{V_DUM}, v9, s[{SRD_OUT}:{SRD_OUT+3}], s{S_T0} offen sc1
  buffer_load_dword v{V_DUM}, v9, s[{SRD_WO}:{SRD_WO+3}], 0 offen
  s_mov_b64 exec, -1
L_notlb:""")
A(f"  s_cmp_eq_u32 s{S_BR}, 0\n  s_cbranch_scc0 L_compB")

wadv_c = [f"  s_add_u32 s{S_WO}, s{S_WO}, {WSLOT}", f"  s_cmp_eq_u32 s{S_WO}, {WSLOT*NWS}", f"  s_cselect_b32 s{S_WO}, 0, s{S_WO}", f"  v_add_u32 v{V_WC}, s{S_WO}, v{V_WA}"]
xadv_c = [f"  s_add_u32 s{S_XO}, s{S_XO}, {XSLOT}", f"  s_cmp_eq_u32 s{S_XO}, {XSLOT*NXS}", f"  s_cselect_b32 s{S_XO}, 0, s{S_XO}",
          f"  v_add_u32 v{V_X0C}, s{S_XO}, v{V_XA}", f"  v_add_u32 v{V_X1C}, s{S_XO}, v{V_XA1}"]
def mainloop(tag, reads, mfmas, extra_adv, tail, bpos):
    A("  s_barrier")
    stamp(1)
    if "cyc" in args.dbg: A(f"  s_memtime s[{sreg(12)}:{sreg(12)+1}]")
    for x in reads(0, 0): A(x)
    for kk in range(2):
        A(f"L_s{kk}{tag}:\n  s_waitcnt lgkmcnt(0)")
        m = mfmas(kk)
        adv = list(wadv_c) + (xadv_c + extra_adv if kk == 1 else [])
        r = reads(1 - kk, 1 - kk)
        if "noreads" in args.dbg: r = []
        ai = 0
        for i in range(bpos):
            A(m[i])
            want = min(len(adv), ((i + 1) * len(adv) + bpos - 2) // max(1, bpos - 1))
            while ai < want: A(adv[ai]); ai += 1
        A("  s_barrier")
        ri = 0; nm = len(m) - bpos
        for i, x in enumerate(m[bpos:]):
            want = min(len(r), ((i + 1) * len(r) + nm - 3) // max(1, nm - 2))
            while ri < want: A(r[ri]); ri += 1
            A(x)
        while ri < len(r): A(r[ri]); ri += 1
    tail()
    A(f"  s_add_u32 s{S_IT}, s{S_IT}, 1\n  s_cmp_lt_u32 s{S_IT}, 8\n  s_cbranch_scc1 L_s0{tag}")
    A(f"  global_load_dword v{V_IF}, v{V_IFA}, s[{S_DBG}:{S_DBG+1}] sc1")
    stamp(2)
    if "cyc" in args.dbg: A(f"  s_memtime s[{sreg(13)}:{sreg(13)+1}]")
    A("  s_waitcnt lgkmcnt(0)")
def trr(d, seg): return [f"  ds_read_b64_tr_b16 v[{d}:{d+1}], v{V_WC} offset:{seg*4096}", f"  ds_read_b64_tr_b16 v[{d+2}:{d+3}], v{V_WC} offset:{seg*4096 + 512}"]
def mm(acc, a, b): return f"  v_mfma_f32_16x16x32_bf16 v[{acc}:{acc+3}], v[{a}:{a+3}], v[{b}:{b+3}], v[{acc}:{acc+3}]"
def store_frags(src, nt, dst):
    for t in range(nt):
        d = dst + 4 * t
        cvt(d, src(2 * t)); cvt(d + 2, src(2 * t + 1))
    A("  s_nop 1")
    for t in range(nt):
        d = dst + 4 * t
        A(f"  v_permlane16_swap_b32 v{d}, v{d+2}\n  v_permlane16_swap_b32 v{d+1}, v{d+3}")
    for t in range(nt):
        d = dst + 4 * t
        A(f"  s_add_u32 s{S_T0}, s{S_OB}, {t*32768}")
        A(f"  buffer_store_dwordx4 v[{d}:{d+3}], v{V_OA}, s[{SRD_WS}:{SRD_WS+3}], s{S_T0} offen sc1")

ACC = 16
AQ = lambda b: ACC + 4 * b
AK = lambda b: ACC + 16 + 4 * b
AV = lambda b: ACC + 36 + 4 * b
FX = lambda buf, b: 72 + 32 * buf + 4 * b
FW = lambda buf, seg: 72 + 32 * buf + 20 + 4 * seg
V_HA = 136; V_H0C = 137; V_H1C = 138
MK = 140; MK0 = 144; V_HI = 148; V_PV = 149; V_ONES = 150
A(f"""  v_mov_b32 v{V_HA}, v{V_XA}
  s_cmp_eq_u32 s{S_RH}, 0
  s_cbranch_scc1 L_h0ok
  v_or_b32 v10, 8, v7
  v_lshrrev_b32 v9, 1, v10
  v_xor_b32 v9, v9, v8
  v_lshlrev_b32 v9, 4, v9
  v_lshl_add_u32 v9, v10, 7, v9
  v_lshrrev_b32 v10, 3, v7
  v_lshlrev_b32 v10, 11, v10
  v_add_u32 v9, v9, v10
  v_add_u32 v{V_HA}, {2048*3}, v9
L_h0ok:
  s_lshl_b32 s{S_T0}, s{S_RH}, 13
  s_add_u32 s{S_T0}, s{S_T0}, 2048
  v_add_u32 v{V_XA}, s{S_T0}, v{V_XA}
  v_xor_b32 v{V_XA1}, 64, v{V_XA}
  v_mov_b32 v{V_X0C}, v{V_XA}
  v_mov_b32 v{V_X1C}, v{V_XA1}
  v_mov_b32 v{V_H0C}, v{V_HA}
  v_xor_b32 v{V_H1C}, 64, v{V_HA}
  s_lshl_b32 s{S_T1}, s{S_RH}, 16
  s_add_u32 s{S_OB}, s{S_OB}, s{S_T1}""")
for r in range(ACC, ACC + 56): A(f"  v_mov_b32 v{r}, 0")
A(f"""  v_lshlrev_b32 v9, 2, v8
  v_sub_u32 v9, v7, v9
  s_mov_b32 s{S_C0}, 0xf149f2ca
  v_mov_b32 v10, s{S_C0}""")
for r in range(4):
    A(f"""  v_subrev_u32 v11, {r}, v9
  v_and_b32 v12, 15, v11
  v_cmp_gt_u32 vcc, 8, v12
  s_nop 1
  v_cndmask_b32 v{MK+r}, v10, 0, vcc
  v_cmp_gt_u32 vcc, 8, v11
  s_nop 1
  v_cndmask_b32 v{MK0+r}, v10, 0, vcc""")
A(f"""  s_or_b32 s{S_T0}, s{S_RB}, s{S_RH}
  s_cmp_eq_u32 s{S_T0}, 0
  s_cbranch_scc1 L_m0
  v_mov_b32 v{MK0}, v{MK}
  v_mov_b32 v{MK0+1}, v{MK+1}
  v_mov_b32 v{MK0+2}, v{MK+2}
  v_mov_b32 v{MK0+3}, v{MK+3}
L_m0:
  v_cmp_lt_u32 s[{S_M0}:{S_M0+1}], 7, v7
  v_cmp_lt_u32 vcc, 1, v8
  s_nop 1
  v_cndmask_b32 v{V_HI}, 0, -1, s[{S_M0}:{S_M0+1}]
  s_andn2_b64 s[{S_M1}:{S_M1+1}], vcc, s[{S_M0}:{S_M0+1}]
  v_mov_b32 v{V_ONES}, 0x3f803f80
  v_mov_b32 v{V_ONES+1}, 0x3f803f80
  v_cndmask_b32 v{V_PV}, 0, -1, s[{S_M1}:{S_M1+1}]
  v_mov_b32 v{V_ONES+2}, 0x3f803f80
  v_mov_b32 v{V_ONES+3}, 0x3f803f80
  s_mov_b32 s{S_C0}, 0x3eb8aa3b""")
def readsA(buf, kk):
    va = V_X0C if kk == 0 else V_X1C
    r = trr(FW(buf, 1), 1) + trr(FW(buf, 2), 2) + trr(FW(buf, 0), 0)
    for b in range(4): r.append(f"  ds_read_b128 v[{FX(buf,b)}:{FX(buf,b)+3}], v{va} offset:{b*2048}")
    r.append(f"  ds_read_b128 v[{FX(buf,4)}:{FX(buf,4)+3}], v{V_H0C if kk == 0 else V_H1C}")
    return r
def mfmasA(buf):
    m = []
    for b in range(4):
        x = FX(buf, b)
        m += [mm(AK(b), FW(buf, 1), x), mm(AV(b), x, FW(buf, 2)), mm(AQ(b), FW(buf, 0), x)]
    x = FX(buf, 4)
    return m + [mm(AK(4), FW(buf, 1), x), mm(AV(4), x, FW(buf, 2))]
mainloop("A", readsA, mfmasA, [f"  v_add_u32 v{V_H0C}, s{S_XO}, v{V_HA}", f"  v_xor_b32 v{V_H1C}, 64, v{V_H0C}"], lambda: None, args.bpos)
K4 = lambda b: 72 + 4 * b
Q4 = lambda b: 88 + 4 * b
VP = lambda p, i: 104 + 6 * p + 2 * i
KH = 116; KH2 = 118; TT = 120
for b in range(4):
    cvt(K4(b), AK(b))
    cvt(VP(b & 1, (b >> 1) + 1), AV(b))
    tt = TT + 2 * (b & 1)
    cvt(tt, AQ(b))
    A(f"  v_and_b32 v{Q4(b)}, v{tt}, v{V_HI}\n  v_and_b32 v{Q4(b)+1}, v{tt+1}, v{V_HI}")
    A(f"  v_xor_b32 v{Q4(b)+2}, v{tt}, v{Q4(b)}\n  v_xor_b32 v{Q4(b)+3}, v{tt+1}, v{Q4(b)+1}")
cvt(KH, AK(4))
cvt(VP(1, 0), AV(4))
A(f"""  s_nop 1
  v_mov_b32_dpp v{KH2}, v{KH} row_ror:8 row_mask:0xf bank_mask:0xf
  v_mov_b32_dpp v{KH2+1}, v{KH+1} row_ror:8 row_mask:0xf bank_mask:0xf
  v_mov_b32 v{VP(0,0)}, v{VP(1,0)}
  v_mov_b32 v{VP(0,0)+1}, v{VP(1,0)+1}
  v_mov_b32 v{TT}, v{VP(1,0)}
  v_mov_b32 v{TT+1}, v{VP(1,0)+1}
  s_nop 1
  v_permlane32_swap_b32 v{VP(0,0)}, v{TT}
  v_permlane32_swap_b32 v{VP(0,0)+1}, v{TT+1}""")
for b in range(4):
    t, p = b >> 1, b & 1
    prev = (KH2 if p == 0 else KH) if t == 0 else K4(p)
    A(f"  v_cndmask_b32 v{K4(b)+2}, v{K4(b)}, v{prev}, s[{S_M0}:{S_M0+1}]\n  v_cndmask_b32 v{K4(b)+3}, v{K4(b)+1}, v{prev+1}, s[{S_M0}:{S_M0+1}]")
A("  s_nop 1")
SS = lambda b: ACC + 4 * b
for b in range(4):
    mk = MK0 if b < 2 else MK
    A(f"  v_mfma_f32_16x16x32_bf16 v[{SS(b)}:{SS(b)+3}], v[{K4(b)}:{K4(b)+3}], v[{Q4(b)}:{Q4(b)+3}], v[{mk}:{mk+3}]")
MX = lambda b: 32 + b
MT = 36
A("  s_nop 7")
for b in range(4): A(f"  v_max3_f32 v{MX(b)}, v{SS(b)}, v{SS(b)+1}, v{SS(b)+2}")
for b in range(4): A(f"  v_max_f32 v{MX(b)}, v{MX(b)}, v{SS(b)+3}")
a, b_, c, d = [MX(i) for i in range(4)]
A(f"""  s_nop 0
  v_permlane32_swap_b32 v{a}, v{b_}
  v_permlane32_swap_b32 v{c}, v{d}
  v_max_f32 v{a}, v{a}, v{b_}
  v_max_f32 v{c}, v{c}, v{d}
  s_nop 1
  v_permlane16_swap_b32 v{a}, v{c}
  v_max_f32 v{a}, v{a}, v{c}
  v_mul_f32 v{a}, s{S_C0}, v{a}
  v_mov_b32 v{c}, v{a}
  s_nop 1
  v_permlane16_swap_b32 v{a}, v{c}
  v_mov_b32 v{b_}, v{a}
  v_mov_b32 v{d}, v{c}
  s_nop 0
  v_permlane32_swap_b32 v{a}, v{b_}
  v_permlane32_swap_b32 v{c}, v{d}""")
for b in range(4):
    for r in range(4): A(f"  v_fma_f32 v{SS(b)+r}, v{SS(b)+r}, s{S_C0}, -v{MX(b)}")
for b in range(4):
    for r in range(4): A(f"  v_exp_f32 v{SS(b)+r}, v{SS(b)+r}")
P4 = lambda b: 40 + 4 * b
for b in range(4):
    tt = MT + 2 * (b & 1)
    cvt(tt, SS(b))
    A(f"  v_and_b32 v{P4(b)}, v{tt}, v{V_PV}\n  v_and_b32 v{P4(b)+1}, v{tt+1}, v{V_PV}")
    A(f"  v_xor_b32 v{P4(b)+2}, v{tt}, v{P4(b)}\n  v_xor_b32 v{P4(b)+3}, v{tt+1}, v{P4(b)+1}")
A("  s_nop 1")
OO = lambda b: 72 + 4 * b
SM = lambda b: 88 + 4 * b
for b in range(4):
    t, p = b >> 1, b & 1
    A(f"  v_mfma_f32_16x16x32_bf16 v[{SM(b)}:{SM(b)+3}], v[{V_ONES}:{V_ONES+3}], v[{P4(b)}:{P4(b)+3}], 0")
    A(f"  v_mfma_f32_16x16x32_bf16 v[{OO(b)}:{OO(b)+3}], v[{VP(p,t)}:{VP(p,t)+3}], v[{P4(b)}:{P4(b)+3}], 0")
A("  s_nop 4")
for b in range(4): A(f"  v_rcp_f32 v{SM(b)}, v{SM(b)}")
for b in range(4):
    for r in (0, 2): A(f"  v_pk_mul_f32 v[{OO(b)+r}:{OO(b)+r+1}], v[{OO(b)+r}:{OO(b)+r+1}], v[{SM(b)}:{SM(b)+1}] op_sel_hi:[1,0]")
store_frags(OO, 2, ACC)
A("  s_branch L_phase2")

A("L_compB:")
A(f"""  s_mov_b32 s{S_C0}, 0x358637bd
  s_mov_b32 s{S_C1}, 0x3fb8aa3b
  s_mov_b32 s{S_C2}, {hex(f2u(-1e-6 * 1.4426950408889634))}
  v_mov_b32 v{V_NC}, s{S_C2}
  v_mov_b32 v{V_NC+1}, s{S_C1}
  v_add_u32 v{V_XA}, 2048, v{V_XA}
  v_xor_b32 v{V_XA1}, 64, v{V_XA}
  v_mov_b32 v{V_X0C}, v{V_XA}
  v_mov_b32 v{V_X1C}, v{V_XA1}""")
for r in range(16, 48): A(f"  v_mov_b32 v{r}, s{S_C0}")
A(f"  s_cmp_lg_u32 s{S_RH}, 0\n  s_cbranch_scc1 L_compQ")
A(f"""  s_cmp_lg_u32 s{S_RB}, 0
  s_cbranch_scc1 L_nozero
  v_mov_b32 v8, 0
  v_mov_b32 v9, 0
  v_mov_b32 v10, 0
  v_mov_b32 v11, 0
  v_lshlrev_b32 v7, 4, v0
  buffer_store_dwordx4 v[8:11], v7, s[{SRD_WS}:{SRD_WS+3}], s{S_C3} offen sc1
  s_mov_b64 exec, 0xff
  buffer_store_dwordx4 v[8:11], v7, s[{SRD_WS}:{SRD_WS+3}], s{S_C3} offen offset:1024 sc1
  s_mov_b64 exec, -1
  s_lshl_b32 s{S_T0}, s{S_HG}, 2
  s_add_u32 s{S_T0}, s{S_T0}, s{S_HH}
  s_mul_i32 s{S_T0}, s{S_T0}, {9*128}
  s_add_u32 s{S_T0}, s{S_T0}, {WS_FLG}
  v_lshlrev_b32 v7, 7, v0
  s_mov_b64 exec, 0x1ff
  buffer_store_dword v8, v7, s[{SRD_WS}:{SRD_WS+3}], s{S_T0} offen sc1
  s_mov_b64 exec, -1
L_nozero:""")
BK = lambda b: 16 + 4 * b
BV = lambda b: 48 + 4 * b
GX = lambda buf, b: 80 + 40 * buf + 4 * b
GW = lambda buf, i: 80 + 40 * buf + 32 + 4 * i
for r in range(48, 80): A(f"  v_mov_b32 v{r}, 0")
for r in range(4): A(f"  v_mov_b32 v{V_ONESB+r}, 0x3f803f80")
def xreads(buf, kk):
    va = V_X0C if kk == 0 else V_X1C
    return [f"  ds_read_b128 v[{GX(buf,b)}:{GX(buf,b)+3}], v{va} offset:{b*2048}" for b in range(8)]
def readsKV(buf, kk): return trr(GW(buf, 0), 1) + trr(GW(buf, 1), 2) + xreads(buf, kk)
def mfmasKV(buf):
    m = []
    for b in range(8): m += [mm(BK(b), GX(buf, b), GW(buf, 0)), mm(BV(b), GX(buf, b), GW(buf, 1))]
    return m
def ack():
    A(f"""  s_or_b32 s{S_T0}, s{S_IT}, s{S_RB}
  s_cmp_lg_u32 s{S_T0}, 0
  s_cbranch_scc1 L_noack
  s_waitcnt vmcnt(0)
  s_lshl_b32 s{S_T0}, s{S_HG}, 2
  s_add_u32 s{S_T0}, s{S_T0}, s{S_HH}
  v_mov_b32 v11, s{S_T0}
  s_mov_b64 exec, 1
  global_store_byte v11, v{V_ONE}, s[{S_DBG}:{S_DBG+1}] sc1
  s_mov_b64 exec, -1
L_noack:""")
mainloop("K", readsKV, mfmasKV, [], ack, args.bpos)
if args.kprio: A("  s_setprio 2")
PK = lambda b: 80 + 2 * b
VV = lambda b: 96 + 2 * b
ET = 112
def phi(acc, n, et):
    for i in range(0, n, 2): A(f"  v_pk_fma_f32 v[{et+i}:{et+i+1}], v[{acc+i}:{acc+i+1}], v[{V_NC}:{V_NC+1}], v[{V_NC}:{V_NC+1}] op_sel:[0,1,0] op_sel_hi:[1,1,0]")
    for i in range(n): A(f"  v_exp_f32 v{et+i}, v{et+i} clamp")
    for i in range(n): A(f"  v_max_f32 v{acc+i}, s{S_C0}, v{acc+i}")
    for i in range(0, n, 2): A(f"  v_pk_add_f32 v[{acc+i}:{acc+i+1}], v[{acc+i}:{acc+i+1}], v[{et+i}:{et+i+1}]")
for b in range(8): cvt(VV(b), BV(b))
phi(BK(0), 32, ET)
for b in range(8): cvt(PK(b), BK(b))
KVA = 144; ZA = 148
A("  s_nop 1")
for i in range(4):
    c = "0" if i == 0 else f"v[{KVA}:{KVA+3}]"
    A(f"  v_mfma_f32_16x16x32_bf16 v[{KVA}:{KVA+3}], v[{VV(2*i)}:{VV(2*i)+3}], v[{PK(2*i)}:{PK(2*i)+3}], {c}")
    c = "0" if i == 0 else f"v[{ZA}:{ZA+3}]"
    A(f"  v_mfma_f32_16x16x32_bf16 v[{ZA}:{ZA+3}], v[{V_ONESB}:{V_ONESB+3}], v[{PK(2*i)}:{PK(2*i)+3}], {c}")
A("""  v_and_b32 v7, 15, v0
  v_lshlrev_b32 v7, 2, v7
  v_lshrrev_b32 v8, 5, v0
  v_lshl_add_u32 v7, v8, 8, v7
  v_bfe_u32 v8, v0, 4, 1
  v_lshl_add_u32 v7, v8, 9, v7""")
init_check("B", V_IF, V_IFA)
A("  s_nop 2")
for r in range(4):
    A(f"  buffer_atomic_add_f32 v{KVA+r}, v7, s[{SRD_WS}:{SRD_WS+3}], s{S_C3} offen offset:{64*r}")
A(f"  s_mov_b64 exec, 0xffff\n  buffer_atomic_add_f32 v{ZA}, v7, s[{SRD_WS}:{SRD_WS+3}], s{S_C3} offen offset:1024\n  s_mov_b64 exec, -1")
A(f"  v_mov_b32 v8, 0\n  s_waitcnt vmcnt(0)\n  s_mov_b64 exec, 1\n  buffer_atomic_add v{V_ONE}, v8, s[{SRD_WS}:{SRD_WS+3}], s{S_XH2} offen\n  s_mov_b64 exec, -1\n  s_mov_b32 s{S_IT}, 99\n  s_setprio 0")
A("  s_branch L_phase2")
A("L_compQ:")
def readsQ(buf, kk): return trr(GW(buf, 0), 0) + xreads(buf, kk)
def mfmasQ(buf): return [mm(BK(b), GW(buf, 0), GX(buf, b)) for b in range(8)]
mainloop("Q", readsQ, mfmasQ, [], lambda: None, min(args.bpos, 2))
A("  s_nop 4")
phi(BK(0), 32, ET)
store_frags(BK, 4, 16)

A("L_phase2:")
stamp(3)
A(f"  s_lshr_b32 s{S_T2}, s{S_HH}, 1")
chunk_sel(S_T2)
quarters()
A(f"""  v_and_b32 v11, 15, v0
  v_lshrrev_b32 v12, 4, v0
  v_lshrrev_b32 v13, 2, v11
  v_lshl_add_u32 v13, v12, 3, v13
  v_and_b32 v14, 3, v11
  v_lshlrev_b32 v14, 4, v14
  v_lshl_add_u32 v14, v13, 7, v14
  v_bfe_u32 v10, v13, 1, 1
  s_and_b32 s{S_T0}, s{S_HH}, 1
  v_xor_b32 v10, s{S_T0}, v10
  v_lshl_add_u32 v6, v10, 6, v14
  v_add_u32 v2, s{S_CH}, v6
  v_add_u32 v3, s{S_CH+1}, v6
  v_lshlrev_b32 v11, 12, v11
  v_lshl_add_u32 v1, v12, 4, v11
  s_lshl_b32 s{S_C2}, s{S_RB2}, 17
  s_lshl_b32 s{S_T0}, s{S_RH}, 16
  s_add_u32 s{S_C2}, s{S_C2}, s{S_T0}
  s_lshl_b32 s{S_T0}, s{S_BR}, 10
  s_add_u32 s{S_C2}, s{S_C2}, s{S_T0}
  s_lshl_b32 s{S_T0}, s{S_CB}, 8
  s_add_u32 s{S_C2}, s{S_C2}, s{S_T0}
  s_lshl_b32 s{S_T0}, s{S_HH}, 6
  s_add_u32 s{S_C2}, s{S_C2}, s{S_T0}
  s_mul_i32 s{S_C3}, s{S_RH}, {ORH}""")
A(f"  s_cmp_eq_u32 s{S_IT}, 99\n  s_cbranch_scc1 L_idP")
init_check("P", V_IF, V_IFA)
stamp(4)
A("  s_barrier\n  s_barrier")
WF = lambda ks, c: 104 + (ks % 8) * 8 + c * 4
def wo_reads(i, va):
    for k in range(4):
        for c in range(2):
            d = WF(4 * i + k, c)
            A(f"  ds_read_b64_tr_b16 v[{d}:{d+1}], v{va} offset:{k*4096 + 8*c}\n  ds_read_b64_tr_b16 v[{d+2}:{d+3}], v{va} offset:{k*4096 + 8*c + 512}")
wo_reads(0, 2); wo_reads(1, 3)
A(f"""  v_lshlrev_b32 v5, 4, v0
  v_add_u32 v5, s{S_C3}, v5
  v_and_b32 v11, 31, v0
  v_lshrrev_b32 v12, 5, v0
  v_lshrrev_b32 v13, 4, v11
  v_lshlrev_b32 v13, 14, v13
  v_lshl_add_u32 v13, v12, 8, v13
  v_and_b32 v14, 15, v11
  v_lshl_add_u32 v7, v14, 4, v13
  v_lshlrev_b32 v13, 4, v14
  v_lshl_add_u32 v13, v12, 8, v13
  v_lshlrev_b32 v10, 4, v12
  v_add_u32 v10, 512, v10
  v_cmp_lt_u32 vcc, 15, v11
  s_nop 1
  v_cndmask_b32 v4, v13, v10, vcc
  s_lshl_b32 s{S_C1}, s{S_RB2}, 16
  s_add_u32 s{S_C1}, s{S_C1}, 0x200000
  s_mov_b32 s{S_C0}, 0x358637bd
  s_waitcnt lgkmcnt(0)""")
stamp(5)
A("  s_barrier")
OA = lambda b, c: 16 + (b * 2 + c) * 4
OF = lambda k, b: 40 + (k % 8) * 8 + 4 * b
def gemm_all(bars):
    q = []
    def rd_o(k):
        i, h = k >> 2, k & 3
        for b in range(2):
            A(f"  ds_read_b128 v[{OF(k,b)}:{OF(k,b)+3}], v{8+i} offset:{b*16384 + h*1024}"); q.append(("o", k))
    def rd_w(k):
        i, h = k >> 2, k & 3
        for c in range(2):
            d = WF(k, c)
            A(f"  ds_read_b64_tr_b16 v[{d}:{d+1}], v{i} offset:{h*4096 + 8*c}"); q.append(("w", k))
            A(f"  ds_read_b64_tr_b16 v[{d+2}:{d+3}], v{i} offset:{h*4096 + 8*c + 512}"); q.append(("w", k))
    if bars: A("  s_barrier"); stamp(9)
    for k in range(4): rd_o(k)
    for k in range(16):
        need = [j for j, t in enumerate(q) if t[1] <= k]
        if need:
            n = len(q) - 1 - need[-1]
            A(f"  s_waitcnt lgkmcnt({min(n, 15)})")
            del q[:need[-1] + 1]
        ms = []
        for b in range(2):
            for c in range(2):
                acc = OA(b, c); wf = WF(k, c); d = OF(k, b)
                cin = "0" if k == 0 else f"v[{acc}:{acc+3}]"
                ms.append(f"  v_mfma_f32_16x16x32_bf16 v[{acc}:{acc+3}], v[{wf}:{wf+3}], v[{d}:{d+3}], {cin}")
        A(ms[0]); A(ms[1])
        kn = k + 4 if not bars else None
        if bars:
            if k % 4 == 1 and k + 3 < 16:
                A("  s_barrier")
                for kk in range(k + 3, k + 5): rd_o(kk)
            elif k % 4 == 2 and k + 4 < 16:
                for kk in range(k + 4, k + 6): rd_o(kk)
        elif k + 4 < 16: rd_o(k + 4)
        A(ms[2]); A(ms[3])
        if k < 8: rd_w(k + 8)
A(f"  v_add_u32 v2, s{S_CH+2}, v6\n  v_add_u32 v3, s{S_CH+3}, v6")
for i in range(4): A(f"  v_add_u32 v{8+i}, s{S_Q+i}, v5")
A(f"  s_cmp_lg_u32 s{S_BR}, 0\n  s_cbranch_scc1 L_p2B")
gemm_all(True)
A("  s_branch L_fin")
A("L_p2B:")
PQ = lambda i, rg: 40 + (i * 2 + rg) * 4
A(f"""  s_lshr_b32 s{S_A0}, s{S_WV}, 1
  s_lshl_b32 s{S_A0}, s{S_A0}, 10
  s_and_b32 s{S_T0}, s{S_WV}, 1
  s_lshl_b32 s{S_T0}, s{S_T0}, 9
  s_add_u32 s{S_A0}, s{S_A0}, s{S_T0}""")
for i in range(4):
    A(f"  s_add_u32 s{S_T2}, s{S_A0}, {i*4096}\n  s_add_u32 s{S_T2}, s{S_T2}, s{S_C1}\n  s_add_u32 s{S_T3}, s{S_T2}, 32768")
    for rg in range(2):
        d = PQ(i, rg)
        A(f"  buffer_load_dwordx4 v[{d}:{d+3}], v7, s[{SRD_WS}:{SRD_WS+3}], s{S_T2 if rg == 0 else S_T3} offen {args.cl}")
for i in range(4):
    A(f"""  s_add_u32 s{S_T0}, s{S_WV}, {8*i}
  s_mul_i32 s{S_T1}, s{S_T0}, {KVS}
  s_cmp_lt_u32 s{S_T0}, 11
  s_cselect_b32 s{S_T0}, 0, {KV1-KV0}
  s_add_u32 s{S_T1}, s{S_T1}, s{S_T0}
  s_add_u32 s{S_T1}, s{S_T1}, {KV0}
  v_add_u32 v{12+i}, s{S_T1}, v4""")
A(f"  v_add_u32 v32, s{S_A0}, v7\n  v_add_u32 v33, {ORH}, v32\n  s_waitcnt vmcnt(0)")
if 'cyc' not in args.dbg: stamp(12)
A("  s_barrier")
if 'cyc' not in args.dbg: stamp(13)
for i in range(4): A(f"  ds_read_b128 v[{16+4*i}:{19+4*i}], v{12+i}")
def pm(u):
    i, rg = u >> 1, u & 1; d = 72 + 16 * rg
    A(f"  v_mfma_f32_32x32x16_bf16 v[{d}:{d+15}], v[{16+4*i}:{19+4*i}], v[{PQ(i,rg)}:{PQ(i,rg)+3}], 0")
def pv(u):
    i, rg = u >> 1, u & 1; d = 72 + 16 * rg
    A(f"  v_add_f32 v{d+8}, s{S_C0}, v{d+8}\n  v_rcp_f32 v{d+8}, v{d+8}\n  s_nop 0")
    for r in range(0, 8, 2):
        A(f"  v_pk_mul_f32 v[{d+r}:{d+r+1}], v[{d+r}:{d+r+1}], v[{d+8}:{d+9}] op_sel_hi:[1,0]")
    o_ = PQ(i, rg)
    cvt(o_, d); cvt(o_ + 2, d + 4)
    A(f"  ds_write_b128 v{32+rg}, v[{o_}:{o_+3}] offset:{i*4096}")
A("  s_waitcnt lgkmcnt(0)")
pm(0); pm(1)
A("  s_nop 10")
for u in range(8):
    pv(u)
    if u + 2 < 8: pm(u + 2)
    if u == 6: A("  s_nop 0")
A("  s_waitcnt lgkmcnt(0)")
stamp(14)
A("  s_barrier")
stamp(9)
gemm_all(False)
A("L_fin:\n  s_nop 7")
for b in range(2):
    d = 32 + 4 * b
    cvt(d, OA(b, 0)); cvt(d + 2, OA(b, 1))
    A(f"  s_add_u32 s{S_T0}, s{S_C2}, {b * 2048}")
    A(f"  buffer_store_dwordx4 v[{d}:{d+3}], v1, s[{SRD_OUT}:{SRD_OUT+3}], s{S_T0} offen {args.ost.replace('_', ' ')}")
stamp(10)
if NSTAMP:
    A("  s_waitcnt vmcnt(0)")
    stamp(11)
    A(f"  s_cmp_lg_u32 s{S_WV}, 0\n  s_cbranch_scc1 L_end")
    stamp_flush([0, 1, 2, 3, 4, 5, 9, 10, 11, 12, 13, 14], 8)
if args.diag:
    A(f"""  s_or_b32 s{S_T0}, s{S_J}, s{S_WV}
  s_cmp_lg_u32 s{S_T0}, 0
  s_cbranch_scc1 L_end
  s_waitcnt vmcnt(0)
  s_memrealtime s[96:97]
  s_waitcnt lgkmcnt(0)
  s_not_b32 s98, s98
  v_mov_b32 v8, s96
  v_mov_b32 v9, s98
  v_mov_b32 v10, 32
  s_mov_b64 exec, 1
  global_atomic_umax v10, v8, s[{S_DBG}:{S_DBG+1}]
  global_atomic_umax v10, v9, s[{S_DBG}:{S_DBG+1}] offset:4""")
A("L_end:\n  s_endpgm\nL_codeend:")
A(f""".section .rodata,"a"
.p2align 6
.amdhsa_kernel {NAME}
  .amdhsa_next_free_vgpr 168
  .amdhsa_next_free_sgpr 102
  .amdhsa_accum_offset 168
  .amdhsa_group_segment_fixed_size 0
  .amdhsa_kernarg_size 72
  .amdhsa_user_sgpr_count 2
  .amdhsa_user_sgpr_kernarg_segment_ptr 1
  .amdhsa_system_sgpr_workgroup_id_x 1
.end_amdhsa_kernel""")
print("\n".join(out))
```

```python
import sys, argparse, struct
ap = argparse.ArgumentParser()
ap.add_argument("--stamps", type=int, default=0)
ap.add_argument("--order", type=str, default="g4c")
ap.add_argument("--dbg", type=str, default="")
ap.add_argument("--touch", type=int, default=4)
ap.add_argument("--psleep", type=int, default=2)
ap.add_argument("--maxfl", type=int, default=20)
ap.add_argument("--codepf", type=int, default=0)
ap.add_argument("--D", type=int, default=5)
ap.add_argument("--D0", type=int, default=2)
ap.add_argument("--ramp", type=int, default=4)
ap.add_argument("--bpos", type=int, default=3)
ap.add_argument("--ldf", type=str, default="")
ap.add_argument("--ldn", type=int, default=6)
ap.add_argument("--atouch", type=int, default=0)
ap.add_argument("--kprio", type=int, default=1)
ap.add_argument("--ost", type=str, default="sc1")
ap.add_argument("--diag", type=int, default=0)
ap.add_argument("--tlb", type=int, default=1)
ap.add_argument("--pqw", type=int, default=9)
ap.add_argument("--kvown", type=int, default=0)
ap.add_argument("--kvrot", type=int, default=1)
ap.add_argument("--flip", type=int, default=1)
ap.add_argument("--cl", type=str, default="")
args = ap.parse_args()
NAME = "concat_heads__sliding_local_dilated__linear_attn_block__prompt_kernel"
out = []
def A(s): out.append(s)
def f2u(x): return struct.unpack("<I", struct.pack("<f", x))[0]
SPINMAX = "0x40000"
XSLOT = 18432; NXS = 4
WBASE = XSLOT * NXS
WSLOT = 12288; NWS = 7
LDS_TOTAL = WBASE + WSLOT * NWS
ORH = 98304
KVS = 544
KV0 = 32768; KV1 = 147456 - 11 * KVS
WS_KV = 4 << 20
KVH = 1152
WS_FLG = (4 << 20) + 65536
WS_CNT = WS_FLG + 256 * 128
STAMP_OFF = 128 << 20
NSTAMP = args.stamps
S_PTR = 4; S_WS = 20; S_FLG = 22; S_SEQ = 23
SRD_X = 24; SRD_W = 28; SRD_WO = 32; SRD_OUT = 36; SRD_WS = 40
S_DBG = 44
S_BR = 46; S_RB = 47; S_HG = 48; S_RB2 = 49; S_CB = 50; S_WV = 51; S_J = 52; S_XQ = 53
S_XB = 54; S_XH = 55; S_WB = 56
S_T0 = 57; S_T1 = 58; S_T2 = 59; S_T3 = 60; S_IT = 61
S_M0 = 62; S_M1 = 64
S_XO = 66; S_WO = 67
S_C0 = 68; S_C1 = 69; S_C2 = 70; S_C3 = 71
S_OB = 72; S_SPIN = 73; S_STB = 74
S_ST = 76
S_CH = 12
S_A0 = 16; S_A1 = 17; S_A2 = 18; S_A3 = 19
S_Q = 4
S_HH = 54; S_RH = 55; S_XH2 = 56

def sreg(i): return S_ST + 2 * (i if i < 12 else i - 6)
def stamp(i):
    if i < NSTAMP: A(f"  s_memrealtime s[{sreg(i)}:{sreg(i)+1}]")
def stamp_flush(idxs, vtmp):
    if not NSTAMP: return
    A(f"  s_waitcnt lgkmcnt(0)\n  s_mov_b64 exec, 1\n  v_mov_b32 v{vtmp+2}, 0")
    for i in idxs:
        if i < NSTAMP:
            A(f"  v_mov_b32 v{vtmp}, s{sreg(i)}\n  v_mov_b32 v{vtmp+1}, s{sreg(i)+1}")
            A(f"  global_store_dwordx2 v{vtmp+2}, v[{vtmp}:{vtmp+1}], s[{S_STB}:{S_STB+1}] offset:{8*i}\n  s_nop 1")
    A("  s_mov_b64 exec, -1")
def spin(lbl_out):
    return f"  s_add_u32 s{S_SPIN}, s{S_SPIN}, 1\n  s_cmp_gt_u32 s{S_SPIN}, {SPINMAX}\n  s_cbranch_scc1 {lbl_out}"
def cvt(d, a):
    A(f"  v_cvt_pk_bf16_f32 v{d}, v{a}, v{a+1}\n  v_cvt_pk_bf16_f32 v{d+1}, v{a+2}, v{a+3}")
def quarters():
    for i in range(4):
        A(f"  s_add_u32 s{S_T0}, s{S_CB}, {i}\n  s_and_b32 s{S_T0}, s{S_T0}, 3\n  s_lshl_b32 s{S_Q+i}, s{S_T0}, 12")

A(f"; @launch grid=(256,1,1) block=(768,1,1) lds={LDS_TOTAL}")
A('.amdgcn_target "amdgcn-amd-amdhsa--gfx950"\n.text\n.globl %s\n.p2align 8\n.type %s,@function\n%s:' % (NAME, NAME, NAME))
A("  s_cmp_ge_u32 s2, 256\n  s_cbranch_scc1 L_end")
A(f"  s_load_dwordx16 s[{S_PTR}:{S_PTR+15}], s[0:1], 0\n  s_load_dwordx2 s[{S_WS}:{S_WS+1}], s[0:1], 64")
stamp(0)
if args.diag: A("  s_memrealtime s[98:99]")
A(f"""  v_lshrrev_b32 v1, 6, v0
  v_and_b32 v0, 63, v0
  v_readfirstlane_b32 s{S_WV}, v1
  s_and_b32 s{S_T0}, s2, 7
  s_lshr_b32 s{S_J}, s2, 3
  s_lshr_b32 s{S_BR}, s{S_T0}, 2
  s_xor_b32 s{S_BR}, s{S_BR}, {args.flip}
  s_and_b32 s{S_XQ}, s{S_T0}, 3
  s_lshr_b32 s{S_T1}, s{S_XQ}, 1
  s_lshl_b32 s{S_T1}, s{S_T1}, 3
  s_lshr_b32 s{S_T2}, s{S_J}, 2
  s_add_u32 s{S_RB}, s{S_T1}, s{S_T2}
  s_and_b32 s{S_T1}, s{S_XQ}, 1
  s_lshl_b32 s{S_T1}, s{S_T1}, 2
  s_and_b32 s{S_CB}, s{S_J}, 3
  s_add_u32 s{S_HG}, s{S_T1}, s{S_CB}
  s_lshl_b32 s{S_T1}, s{S_XQ}, 3
  s_add_u32 s{S_RB2}, s{S_T1}, s{S_T2}
  s_mov_b32 s{S_SPIN}, 0
  s_cmp_lt_u32 s{S_WV}, 8
  s_cbranch_scc1 L_comp""")

VX0 = 1; VX1 = 2; VW = 3; VXH = 4; VWO = 5; VTW = 9; VZ = 10
L_HL = S_C3; L_XL = S_C2; L_WL = S_C1
def seq_pack(l): return sum(x << (4 * i) for i, x in enumerate(l))
o = args.order
A(f"""  s_sub_u32 s{S_WV}, s{S_WV}, 8
  v_lshrrev_b32 v11, 3, v0
  v_and_b32 v12, 7, v0
  v_lshrrev_b32 v13, 4, v0
  v_xor_b32 v14, v12, v13
  v_lshlrev_b32 v14, 4, v14
  v_lshl_add_u32 v{VX0}, v11, 11, v14
  v_xor_b32 v{VX1}, 64, v{VX0}
  v_and_b32 v13, 1, v13
  v_lshlrev_b32 v13, 1, v13
  v_xor_b32 v14, v12, v13
  v_lshlrev_b32 v14, 4, v14
  v_mul_u32_u24 v{VW}, 3072, v11
  v_add_u32 v{VW}, v{VW}, v14
  s_and_b32 s{S_T0}, s{S_WV}, 1
  s_lshl_b32 s{S_T1}, s{S_T0}, 6
  v_xor_b32 v{VW}, s{S_T1}, v{VW}
  v_xor_b32 v{VXH}, s{S_T1}, v{VX0}
  s_lshl_b32 s{S_XB}, s{S_RB}, 17
  s_sub_u32 s{S_XH}, s{S_XB}, 16384
  s_max_i32 s{S_XH}, s{S_XH}, 0
  s_lshl_b32 s{L_HL}, s{S_T0}, 10
  s_add_u32 s{S_XH}, s{S_XH}, s{L_HL}
  s_lshl_b32 s{S_T1}, s{S_WV}, 15
  s_add_u32 s{S_XB}, s{S_XB}, s{S_T1}
  s_lshl_b32 s{L_XL}, s{S_WV}, 12
  s_add_u32 s{L_XL}, s{L_XL}, 2048
  s_lshl_b32 s{S_WB}, s{S_HG}, 7
  s_mul_i32 s{S_T1}, s{S_WV}, 24576
  s_add_u32 s{S_WB}, s{S_WB}, s{S_T1}
  s_lshl_b32 s{L_WL}, s{S_WV}, 10
  s_add_u32 s{L_WL}, s{L_WL}, {WBASE}""")
def order_code(o, reg):
    if o == "plain":
        A(f"  s_mov_b32 s{reg}, {hex(seq_pack(range(8)))}")
    elif o == "rot8":
        A(f"""  s_lshl_b32 s{S_T1}, s{S_CB}, 1
  s_add_u32 s{S_T1}, s{S_T1}, s{S_T2}
  s_and_b32 s{S_T1}, s{S_T1}, 7
  s_mul_i32 s{S_T1}, s{S_T1}, 0x11111111
  s_add_u32 s{reg}, s{S_T1}, {hex(seq_pack(range(8)))}
  s_and_b32 s{reg}, s{reg}, 0x77777777""")
    elif o.startswith("g2"):
        seqs = {"g2a": "a0 a1 b0 a2 b1 a3 b2 b3", "g2b": "a0 a1 a2 a3 b0 b1 b2 b3", "g2c": "a0 b0 a1 b1 a2 b2 a3 b3", "g2d": "a0 a1 a2 b0 b1 a3 b2 b3"}
        l = [2 * int(x[1]) + (x[0] == 'b') for x in seqs[o].split()]
        A(f"  s_add_u32 s{S_T1}, s{S_T2}, s{S_CB}\n  s_and_b32 s{S_T1}, s{S_T1}, 1\n  s_mul_i32 s{S_T1}, s{S_T1}, 0x11111111\n  s_xor_b32 s{reg}, s{S_T1}, {hex(seq_pack(l))}")
    elif o.startswith("g4"):
        seqs = {"g4a": "00 01 02 10 03 11 12 13", "g4b": "00 10 01 02 03 11 12 13", "g4c": "00 01 10 02 03 11 12 13", "g4d": "00 01 02 03 10 11 12 13"}
        l = [4 * int(x[0]) + int(x[1]) for x in seqs[o].split()]
        A(f"  s_add_u32 s{S_T1}, s{S_T2}, s{S_CB}\n  s_and_b32 s{S_T1}, s{S_T1}, 3\n  s_mul_i32 s{S_T1}, s{S_T1}, 0x11111111\n  s_xor_b32 s{reg}, s{S_T1}, {hex(seq_pack(l))}")
oa, ob = (o.split(",") + [o])[:2]
order_code(oa, S_SEQ)
if ob != oa:
    order_code(ob, S_IT)
    A(f"  s_cmp_eq_u32 s{S_BR}, 0\n  s_cselect_b32 s{S_SEQ}, s{S_SEQ}, s{S_IT}")
def build_srds():
    A(f"""  s_waitcnt lgkmcnt(0)
  s_cmp_eq_u32 s{S_BR}, 0
  s_cselect_b32 s{SRD_X}, s{S_PTR+0}, s{S_PTR+6}
  s_cselect_b32 s{SRD_X+1}, s{S_PTR+1}, s{S_PTR+7}
  s_cselect_b32 s{SRD_W}, s{S_PTR+2}, s{S_PTR+8}
  s_cselect_b32 s{SRD_W+1}, s{S_PTR+3}, s{S_PTR+9}
  s_mov_b32 s{SRD_X+2}, 0x200000
  s_mov_b32 s{SRD_X+3}, 0x20000
  s_mov_b32 s{SRD_W+2}, 0x180000
  s_mov_b32 s{SRD_W+3}, 0x20000""")
def build_srds2():
    A(f"""  s_cmp_eq_u32 s{S_BR}, 0
  s_cselect_b32 s{SRD_WO}, s{S_PTR+4}, s{S_PTR+10}
  s_cselect_b32 s{SRD_WO+1}, s{S_PTR+5}, s{S_PTR+11}
  s_mov_b32 s{SRD_WO+2}, 0x80000
  s_mov_b32 s{SRD_WO+3}, 0x20000
  s_mov_b32 s{SRD_OUT}, s{S_PTR+12}
  s_mov_b32 s{SRD_OUT+1}, s{S_PTR+13}
  s_mov_b32 s{SRD_OUT+2}, 0x400000
  s_mov_b32 s{SRD_OUT+3}, 0x20000
  s_mov_b32 s{SRD_WS}, s{S_WS}
  s_mov_b32 s{SRD_WS+1}, s{S_WS+1}
  s_mov_b32 s{SRD_WS+2}, 0x500000
  s_mov_b32 s{SRD_WS+3}, 0x20000
  s_mov_b32 s{S_DBG}, s{S_PTR+14}
  s_mov_b32 s{S_DBG+1}, s{S_PTR+15}""")
    if NSTAMP:
        A(f"""  s_add_u32 s{S_STB}, s{S_WS}, {STAMP_OFF}
  s_addc_u32 s{S_STB+1}, s{S_WS+1}, 0
  s_mul_i32 s{S_T1}, s2, {8*NSTAMP}
  s_add_u32 s{S_STB}, s{S_STB}, s{S_T1}
  s_addc_u32 s{S_STB+1}, s{S_STB+1}, 0""")
build_srds()
curg = [0]
def dma(vo, srd, sreg, imm, lreg, limm, extra=""):
    if "noload" in args.dbg and srd in (SRD_X, SRD_W): return
    if srd in (SRD_X, SRD_W) and args.ldf and curg[0] < args.ldn: extra = " " + args.ldf.replace("_", " ")
    A(f"  s_add_u32 s{S_T1}, s{sreg}, {imm}\n  s_add_u32 m0, s{lreg}, {limm}\n  s_waitcnt vmcnt({args.maxfl-1})\n  buffer_load_dwordx4 v{vo}, s[{srd}:{srd+3}], s{S_T1} offen{extra} lds")
D = args.D
def gsize(g): return 8 if g == 0 else (3 if g == 15 else (6 if g & 1 else 5))
def xops(t, which):
    xl = (t % NXS) * XSLOT
    A(f"  s_lshr_b32 s{S_T0}, s{S_SEQ}, {4*t}\n  s_and_b32 s{S_T0}, s{S_T0}, 7\n  s_lshl_b32 s{S_T0}, s{S_T0}, 7\n  s_add_u32 s{S_T3}, s{S_T0}, s{S_XB}")
    lst = [(p, m) for p in range(2) for m in range(2)]
    for i in which:
        if i < 4:
            p, m = lst[i]
            dma(VX0 if m == 0 else VX1, SRD_X, S_T3, (p + 16 * m) * 1024, L_XL, xl + p * 2048 + m * 1024)
        else:
            A(f"  s_add_u32 s{S_C0}, s{S_T0}, s{S_XH}")
            dma(VXH, SRD_X, S_C0, 0, L_HL, xl)
def issue_group(g):
    curg[0] = g
    t = g >> 1
    if g > 0 and g & 1 == 0: xops(t, [3, 4])
    A(f"""  s_lshr_b32 s{S_T0}, s{S_SEQ}, {4*t}
  s_and_b32 s{S_T0}, s{S_T0}, 7
  s_mul_i32 s{S_T2}, s{S_T0}, 196608
  s_add_u32 s{S_T2}, s{S_T2}, s{S_WB}""")
    wl = (g % NWS) * WSLOT
    for seg in range(3): dma(VW, SRD_W, S_T2, (g & 1) * 32 * 3072 + seg * 1024, L_WL, wl + seg * 4096)
    if g == 0: xops(0, [0, 1, 2, 3, 4])
    elif g & 1 and g < 15: xops(t + 1, [0, 1, 2])
    if g == 2 * args.touch + 1:
        A(f"""  v_lshlrev_b32 v{VTW}, 7, v0
  s_lshl_b32 s{S_T1}, s{S_J}, 14
  s_lshl_b32 s{S_T0}, s{S_WV}, 12
  s_add_u32 s{S_T1}, s{S_T1}, s{S_T0}
  s_mov_b32 exec_hi, 0
  buffer_load_dword v11, v{VTW}, s[{SRD_WO}:{SRD_WO+3}], s{S_T1} offen
  s_mov_b64 exec, -1""")
        return 1
    return 0
XC = lambda i: i * XSLOT + 2048
chunks = [[XC(0), 98304], [114688, XC(1)], [131072, XC(2)], [XC(3), WBASE]]
freeat = [11, 12, 14, 16]
def chunk_sel(bitreg):
    A(f"  s_cmp_eq_u32 s{bitreg}, 0")
    for i in range(4): A(f"  s_mov_b32 s{S_CH+i}, {chunks[i][1]}\n  s_cselect_b32 s{S_CH+i}, {chunks[i][0]}, s{S_CH+i}")
def lsetup():
    build_srds2()
    A(f"  s_and_b32 s{S_T2}, s{S_WV}, 1")
    chunk_sel(S_T2)
    quarters()
    A(f"""  v_lshrrev_b32 v11, 3, v0
  v_and_b32 v12, 7, v0
  v_bfe_u32 v13, v0, 4, 1
  v_lshlrev_b32 v13, 2, v13
  v_xor_b32 v12, v12, v13
  v_lshlrev_b32 v12, 4, v12
  v_lshl_add_u32 v{VWO}, v11, 10, v12
  s_lshl_b32 s{S_A0}, s{S_CB}, 8
  s_lshl_b32 s{S_T0}, s{S_T2}, 7
  s_add_u32 s{S_A0}, s{S_A0}, s{S_T0}
  s_lshr_b32 s{S_T0}, s{S_WV}, 1
  s_lshl_b32 s{S_T1}, s{S_T0}, 16
  s_add_u32 s{S_A0}, s{S_A0}, s{S_T1}
  s_lshl_b32 s{S_T0}, s{S_T0}, 13
  s_add_u32 s{S_CH}, s{S_CH}, s{S_T0}
  s_add_u32 s{S_CH+1}, s{S_CH+1}, s{S_T0}
  s_add_u32 s{S_CH+2}, s{S_CH+2}, s{S_T0}
  s_add_u32 s{S_CH+3}, s{S_CH+3}, s{S_T0}
  s_lshl_b32 s{S_FLG}, s{S_BR}, 7
  s_lshl_b32 s{S_T1}, s{S_RB}, 3
  s_add_u32 s{S_FLG}, s{S_FLG}, s{S_T1}
  s_add_u32 s{S_FLG}, s{S_FLG}, s{S_HG}
  s_lshl_b32 s{S_FLG}, s{S_FLG}, 7
  s_add_u32 s{S_FLG}, s{S_FLG}, {WS_FLG}
  v_mov_b32 v8, 1
  v_mov_b32 v15, 0
  v_and_b32 v{VZ}, 7, v0
  v_lshlrev_b32 v{VZ}, 2, v{VZ}
  v_lshlrev_b32 v6, 7, v0
  v_lshlrev_b32 v7, 4, v0""")
def wo_group(i):
    A(f"  s_lshl_b32 s{S_T0}, s{S_Q+i}, 5\n  s_add_u32 s{S_T2}, s{S_T0}, s{S_A0}")
    for k in range(8): dma(VWO, SRD_WO, S_T2, k * 8192, S_CH + i, k * 1024)
sizes = []
def outstanding_after(kid):
    idx = [i for i, x in enumerate(sizes) if (x[0], x[1]) == kid][0]
    return sum(x[2] for x in sizes[idx + 1:])
def do_group(g):
    e = issue_group(g); sizes.append(("g", g, gsize(g))); sizes.append(("t", g, e))
if args.atouch:
    A(f"""  s_cmp_lg_u32 s{S_BR}, 0
  s_cbranch_scc1 L_notch
  v_and_b32 v11, 31, v0
  v_lshlrev_b32 v11, 10, v11
  v_lshrrev_b32 v12, 5, v0
  v_lshl_add_u32 v11, v12, 7, v11
  s_lshr_b32 s{S_T0}, s{S_XQ}, 1
  s_lshl_b32 s{S_T0}, s{S_T0}, 20
  s_lshl_b32 s{S_T1}, s{S_J}, 15
  s_add_u32 s{S_T0}, s{S_T0}, s{S_T1}
  s_lshl_b32 s{S_T1}, s{S_WV}, 8
  s_add_u32 s{S_T0}, s{S_T0}, s{S_T1}
  v_lshrrev_b32 v12, 2, v0
  v_mul_u32_u24 v12, 3072, v12
  v_and_b32 v13, 3, v0
  v_lshl_add_u32 v12, v13, 7, v12
  s_mul_i32 s{S_T1}, s{S_J}, {16*3072}
  s_and_b32 s{S_T2}, s{S_XQ}, 1
  s_lshl_b32 s{S_T2}, s{S_T2}, 9
  s_add_u32 s{S_T1}, s{S_T1}, s{S_T2}
  s_min_u32 s{S_T2}, s{S_WV}, 2
  s_lshl_b32 s{S_T2}, s{S_T2}, 10
  s_add_u32 s{S_T1}, s{S_T1}, s{S_T2}""")
    R = args.atouch
    masks = {1: [(-1, -1)], 2: [(-1, 0), (0, -1)], 3: [(0xffff, 0), (0xffff0000, 0), (0, -1)], 4: [(0xffff, 0), (0xffff0000, 0), (0, 0xffff), (0, 0xffff0000)]}[R]
    for lo, hi in masks:
        A(f"""  s_mov_b32 exec_lo, {hex(lo & 0xffffffff)}
  s_mov_b32 exec_hi, {hex(hi & 0xffffffff)}
  buffer_load_dword v13, v11, s[{SRD_X}:{SRD_X+3}], s{S_T0} offen
  buffer_load_dword v14, v12, s[{SRD_W}:{SRD_W+3}], s{S_T1} offen
  s_waitcnt vmcnt(0)""")
    A("  s_mov_b64 exec, -1\nL_notch:")
for g in range(args.D0): do_group(g)
lsetup()
nxt = args.D0
for bq in range(17):
    if bq < 16: A(f"  s_waitcnt vmcnt({min(63, outstanding_after(('g', bq)))})")
    A("  s_barrier")
    while nxt < 16 and nxt <= bq + D - 1 and nxt <= bq + 5 and (nxt <= bq + args.D0 or bq >= args.ramp):
        do_group(nxt); nxt += 1
    for i in range(4):
        if freeat[i] == bq: wo_group(i); sizes.append(("w", i, 8))
stamp(6)
def init_check(tag, v, vz):
    A(f"""  s_mov_b32 s{S_T1}, 0x01010101
L_ic{tag}:
  s_waitcnt vmcnt(0)
  v_cmp_ne_u32 vcc, s{S_T1}, v{v}
  s_nop 3
  s_cmp_eq_u64 vcc, 0
  s_cbranch_scc1 L_id{tag}
{spin(f"L_id{tag}")}
  s_sleep 4
  global_load_dword v{v}, v{vz}, s[{S_DBG}:{S_DBG+1}] sc1
  s_branch L_ic{tag}
L_id{tag}:""")
def poll(tag, voff, sreg, val=1):
    A(f"""L_pl{tag}:
  buffer_load_dword v16, v{voff}, s[{SRD_WS}:{SRD_WS+3}], s{sreg} offen sc1
  s_waitcnt vmcnt(0)
  v_cmp_ne_u32 vcc, {val}, v16
  s_and_b64 exec, exec, vcc
  s_cbranch_execz L_po{tag}
{spin(f"L_po{tag}")}
  s_sleep {args.psleep}
  s_branch L_pl{tag}
L_po{tag}:
  s_mov_b64 exec, -1""")
A("  s_barrier")
A(f"""  s_cmp_lg_u32 s{S_WV}, 0
  s_cbranch_scc1 L_nofl
  s_mov_b64 exec, 1
  buffer_store_dword v8, v15, s[{SRD_WS}:{SRD_WS+3}], s{S_FLG} offen sc1
  s_mov_b64 exec, -1
  s_waitcnt vmcnt({outstanding_after(('w', 1)) + 1})
  s_branch L_fl2
L_nofl:
  s_waitcnt vmcnt({outstanding_after(('w', 1))})
L_fl2:
  s_barrier""")
stamp(7)
A(f"""  v_lshrrev_b32 v11, 2, v0
  v_lshlrev_b32 v11, 4, v11
  v_bfe_u32 v12, v0, 1, 1
  v_lshl_add_u32 v11, v12, 8, v11
  v_and_b32 v12, 1, v0
  v_lshl_add_u32 v11, v12, 3, v11
  s_lshl_b32 s{S_A0}, s{S_WV}, 3
  s_mul_i32 s{S_A1}, s{S_A0}, {KVH}
  s_add_u32 s{S_A1}, s{S_A1}, {WS_KV}
  v_bfe_u32 v12, v0, 2, 3
  v_mul_u32_u24 v13, {KVH}, v12
  v_and_b32 v14, 3, v0
  v_lshl_add_u32 v13, v14, 4, v13
  v_add_u32 v13, 1024, v13
  v_add_u32 v12, s{S_A0}, v12              ; head
  v_mul_u32_u24 v20, {KVS}, v12
  v_lshl_add_u32 v20, v14, 3, v20
  v_add_u32 v20, {KV0 + 512}, v20
  v_add_u32 v21, {KV1 - KV0}, v20
  v_cmp_lt_u32 vcc, 10, v12
  s_nop 1
  v_cndmask_b32 v20, v20, v21, vcc""")
A(f"  s_lshl_b32 s{S_A2}, s{S_WV}, 10\n  s_add_u32 s{S_A2}, s{S_A2}, {WS_CNT}")
for h in range(8):
    A(f"""  s_add_u32 s{S_T0}, s{S_J}, {h}
  s_and_b32 s{S_T0}, s{S_T0}, {7 if args.kvrot else 0}
  s_add_u32 s{S_T0}, s{S_T0}, {0 if args.kvrot else h}
  s_mul_i32 s{78+h}, s{S_T0}, {KVH}
  s_add_u32 s{78+h}, s{78+h}, s{S_A1}
  s_add_u32 s{S_T0}, s{S_T0}, s{S_A0}
  s_mul_i32 s{S_T1}, s{S_T0}, {KVS}
  s_cmp_lt_u32 s{S_T0}, 11
  s_cselect_b32 s{S_T0}, 0, {KV1-KV0}
  s_add_u32 s{S_T1}, s{S_T1}, s{S_T0}
  s_add_u32 s{S_T1}, s{S_T1}, {KV0}
  v_add_u32 v{60+h}, s{S_T1}, v11""")
A(f"""  s_cmp_lg_u32 s{S_WV}, 0
  s_cbranch_scc1 L_await
  s_lshr_b32 s{S_T1}, s{S_RB2}, 1
  s_lshl_b32 s{S_T1}, s{S_T1}, 10
  s_lshl_b32 s{S_T0}, s{S_BR}, 14
  s_add_u32 s{S_T1}, s{S_T1}, s{S_T0}
  s_add_u32 s{S_T1}, s{S_T1}, {WS_FLG}
  s_mov_b64 exec, 0xff""")
poll("R", 6, S_T1)
A(f"""L_await:
  s_lshl_b32 s{S_T3}, s{S_RB2}, 16
  s_lshl_b32 s{S_T0}, s{S_WV}, 14
  s_add_u32 s{S_T3}, s{S_T3}, s{S_T0}
  s_and_b32 s{S_T2}, s{S_WV}, 1
  s_lshl_b32 s{S_T2}, s{S_T2}, 14
  s_lshr_b32 s{S_T0}, s{S_WV}, 1
  s_mul_i32 s{S_T0}, s{S_T0}, {ORH}
  s_add_u32 s{S_T2}, s{S_T2}, s{S_T0}
  s_waitcnt vmcnt(0)
  s_barrier""")
def lfin():
    if NSTAMP:
        A(f"  s_cmp_lg_u32 s{S_WV}, 0\n  s_cbranch_scc1 L_end")
        stamp_flush([6, 7, 8], 12)
    A("  s_endpgm")
A(f"  s_cmp_eq_u32 s{S_BR}, 0\n  s_cbranch_scc1 L_oload")
A("  s_mov_b64 exec, 0xff")
poll("K", 6, S_A2, 16)
stamp(8)
if args.kvown:
    A(f"""  s_mul_i32 s{S_T1}, s{S_J}, {KVH}
  s_add_u32 s{S_T1}, s{S_T1}, {WS_KV}
  s_mov_b64 exec, 0x1ff
  buffer_load_dword v16, v6, s[{SRD_WS}:{SRD_WS+3}], s{S_T1} offen
  s_mov_b64 exec, -1
  s_waitcnt vmcnt(0)""")
for h in range(8):
    r = 24 + h * 4
    A(f"  buffer_load_dwordx4 v[{r}:{r+3}], v7, s[{SRD_WS}:{SRD_WS+3}], s{78+h} offen {args.cl}")
A(f"  buffer_load_dwordx4 v[56:59], v13, s[{SRD_WS}:{SRD_WS+3}], s{S_A1} offen {args.cl}")
for h in range(8):
    r = 24 + h * 4
    A(f"  s_waitcnt vmcnt({8-h})")
    cvt(r, r)
    A(f"  ds_write_b64 v{60+h}, v[{r}:{r+1}]")
A("  s_waitcnt vmcnt(0)")
if "lst" in args.dbg: stamp(6)
cvt(56, 56)
A("  ds_write_b64 v20, v[56:57]\n  s_waitcnt lgkmcnt(0)")
if "lst" in args.dbg: stamp(7)
A("  s_barrier")
if NSTAMP: A("  s_barrier")
lfin()
A("L_oload:")
stamp(8)
def oloads(i):
    A(f"  s_add_u32 s{S_A0}, s{S_T3}, s{S_Q+i}\n  s_add_u32 s{S_A1}, s{S_T2}, s{S_Q+i}")
    for h in range(4):
        A(f"  s_add_u32 s{S_T1}, s{S_A0}, {h*1024}\n  s_add_u32 m0, s{S_A1}, {h*1024}\n  s_nop 0\n  buffer_load_dwordx4 v7, s[{SRD_WS}:{SRD_WS+3}], s{S_T1} offen {args.cl} lds")
oloads(0)
A("  s_waitcnt vmcnt(0)")
oloads(1)
A("  s_barrier")
oloads(2); oloads(3)
for i in (1, 2, 3): A(f"  s_waitcnt vmcnt({4*(3-i)})\n  s_barrier")
lfin()

V_XA = 1; V_WA = 2; V_XA1 = 3; V_ONE = 4; V_OA = 5; V_X0C = 6; V_X1C = 13; V_WC = 14; V_IFA = 15
V_IF = 160; V_DUM = 161; V_NC = 162; V_ONESB = 164
A("L_comp:")
A(f"  s_and_b32 s{S_HH}, s{S_WV}, 3\n  s_lshr_b32 s{S_RH}, s{S_WV}, 2")
if args.codepf:
    A(f"""  s_getpc_b64 s[{S_M0}:{S_M0+1}]
L_pcref:
  s_sub_u32 s{S_M0}, s{S_M0}, L_pcref-{NAME}
  s_subb_u32 s{S_M0+1}, s{S_M0+1}, 0
  s_lshl_b32 s{S_T0}, s{S_J}, 3
  s_add_u32 s{S_T0}, s{S_T0}, s{S_WV}
  s_lshl_b32 s{S_T0}, s{S_T0}, 7
  s_min_u32 s{S_T0}, s{S_T0}, (L_codeend-{NAME}-4)&0xfffffffc
  v_mov_b32 v7, s{S_T0}
  s_mov_b64 exec, 1
  global_load_dword v{V_DUM}, v7, s[{S_M0}:{S_M0+1}]
  s_mov_b64 exec, -1""")
A(f"""  v_and_b32 v7, 15, v0
  v_lshrrev_b32 v8, 4, v0
  v_lshrrev_b32 v9, 1, v7
  v_xor_b32 v9, v9, v8
  v_lshlrev_b32 v9, 4, v9
  v_lshl_add_u32 v{V_XA}, v7, 7, v9
  v_lshrrev_b32 v9, 2, v7
  v_lshl_add_u32 v9, v8, 3, v9
  v_lshrrev_b32 v10, 1, v9
  v_and_b32 v10, 1, v10
  v_and_b32 v11, 1, v8
  v_lshl_or_b32 v10, v11, 1, v10
  v_xor_b32 v10, s{S_HH}, v10
  v_lshlrev_b32 v10, 5, v10
  v_lshl_add_u32 v10, v9, 7, v10
  v_and_b32 v11, 3, v7
  v_lshl_add_u32 v{V_WA}, v11, 3, v10
  v_add_u32 v{V_WA}, {WBASE}, v{V_WA}
  v_mov_b32 v{V_ONE}, 1
  s_lshl_b32 s{S_T0}, s{S_HG}, 2
  s_add_u32 s{S_T0}, s{S_T0}, s{S_HH}
  s_lshl_b32 s{S_OB}, s{S_T0}, 9
  s_lshl_b32 s{S_T1}, s{S_RB}, 17
  s_add_u32 s{S_OB}, s{S_OB}, s{S_T1}
  s_lshl_b32 s{S_T1}, s{S_BR}, 21
  s_add_u32 s{S_OB}, s{S_OB}, s{S_T1}
  s_mul_i32 s{S_C3}, s{S_T0}, {KVH}
  s_add_u32 s{S_C3}, s{S_C3}, {WS_KV}
  s_lshl_b32 s{S_XH2}, s{S_T0}, 7
  s_add_u32 s{S_XH2}, s{S_XH2}, {WS_CNT}
  s_lshl_b32 s{S_FLG}, s{S_BR}, 7
  s_lshl_b32 s{S_T1}, s{S_RB}, 3
  s_add_u32 s{S_FLG}, s{S_FLG}, s{S_T1}
  s_add_u32 s{S_FLG}, s{S_FLG}, s{S_HG}
  s_lshl_b32 s{S_FLG}, s{S_FLG}, 7
  s_add_u32 s{S_FLG}, s{S_FLG}, {WS_FLG}
  s_lshl_b32 s{S_T1}, s{S_WV}, 2
  s_add_u32 s{S_FLG}, s{S_FLG}, s{S_T1}
  v_and_b32 v9, 1, v8
  v_lshlrev_b32 v9, 14, v9
  v_lshrrev_b32 v10, 1, v8
  v_lshl_add_u32 v9, v10, 8, v9
  v_lshl_add_u32 v{V_OA}, v7, 4, v9
  v_and_b32 v{V_IFA}, 7, v0
  v_lshlrev_b32 v{V_IFA}, 2, v{V_IFA}
  s_mov_b32 s{S_IT}, 0
  s_mov_b32 s{S_XO}, 0
  s_mov_b32 s{S_WO}, 0
  v_mov_b32 v{V_WC}, v{V_WA}
  s_waitcnt lgkmcnt(0)""")
build_srds2()
if args.tlb:
    A(f"""  s_cmp_lg_u32 s{S_WV}, 7
  s_cbranch_scc1 L_notlb
  v_mov_b32 v9, 0
  s_lshl_b32 s{S_T0}, s{S_RB2}, 17
  s_lshl_b32 s{S_T1}, s{S_RB2}, 16
  s_lshl_b32 s{S_T2}, s{S_BR}, 21
  s_add_u32 s{S_T1}, s{S_T1}, s{S_T2}
  s_mov_b64 exec, 1
  buffer_load_dword v{V_DUM}, v9, s[{SRD_WS}:{SRD_WS+3}], s{S_OB} offen sc1
  buffer_load_dword v{V_DUM}, v9, s[{SRD_WS}:{SRD_WS+3}], s{S_FLG} offen sc1
  buffer_load_dword v{V_DUM}, v9, s[{SRD_OUT}:{SRD_OUT+3}], s{S_T0} offen sc1
  buffer_load_dword v{V_DUM}, v9, s[{SRD_WO}:{SRD_WO+3}], 0 offen
  s_mov_b64 exec, -1
L_notlb:""")
A(f"  s_cmp_eq_u32 s{S_BR}, 0\n  s_cbranch_scc0 L_compB")

wadv_c = [f"  s_add_u32 s{S_WO}, s{S_WO}, {WSLOT}", f"  s_cmp_eq_u32 s{S_WO}, {WSLOT*NWS}", f"  s_cselect_b32 s{S_WO}, 0, s{S_WO}", f"  v_add_u32 v{V_WC}, s{S_WO}, v{V_WA}"]
xadv_c = [f"  s_add_u32 s{S_XO}, s{S_XO}, {XSLOT}", f"  s_cmp_eq_u32 s{S_XO}, {XSLOT*NXS}", f"  s_cselect_b32 s{S_XO}, 0, s{S_XO}",
          f"  v_add_u32 v{V_X0C}, s{S_XO}, v{V_XA}", f"  v_add_u32 v{V_X1C}, s{S_XO}, v{V_XA1}"]
def mainloop(tag, reads, mfmas, extra_adv, tail, bpos):
    A("  s_barrier")
    stamp(1)
    if "cyc" in args.dbg: A(f"  s_memtime s[{sreg(12)}:{sreg(12)+1}]")
    for x in reads(0, 0): A(x)
    for kk in range(2):
        A(f"L_s{kk}{tag}:\n  s_waitcnt lgkmcnt(0)")
        m = mfmas(kk)
        adv = list(wadv_c) + (xadv_c + extra_adv if kk == 1 else [])
        r = reads(1 - kk, 1 - kk)
        if "noreads" in args.dbg: r = []
        ai = 0
        for i in range(bpos):
            A(m[i])
            want = min(len(adv), ((i + 1) * len(adv) + bpos - 2) // max(1, bpos - 1))
            while ai < want: A(adv[ai]); ai += 1
        A("  s_barrier")
        ri = 0; nm = len(m) - bpos
        for i, x in enumerate(m[bpos:]):
            want = min(len(r), ((i + 1) * len(r) + nm - 3) // max(1, nm - 2))
            while ri < want: A(r[ri]); ri += 1
            A(x)
        while ri < len(r): A(r[ri]); ri += 1
    tail()
    A(f"  s_add_u32 s{S_IT}, s{S_IT}, 1\n  s_cmp_lt_u32 s{S_IT}, 8\n  s_cbranch_scc1 L_s0{tag}")
    A(f"  global_load_dword v{V_IF}, v{V_IFA}, s[{S_DBG}:{S_DBG+1}] sc1")
    stamp(2)
    if "cyc" in args.dbg: A(f"  s_memtime s[{sreg(13)}:{sreg(13)+1}]")
    A("  s_waitcnt lgkmcnt(0)")
def trr(d, seg): return [f"  ds_read_b64_tr_b16 v[{d}:{d+1}], v{V_WC} offset:{seg*4096}", f"  ds_read_b64_tr_b16 v[{d+2}:{d+3}], v{V_WC} offset:{seg*4096 + 512}"]
def mm(acc, a, b): return f"  v_mfma_f32_16x16x32_bf16 v[{acc}:{acc+3}], v[{a}:{a+3}], v[{b}:{b+3}], v[{acc}:{acc+3}]"
def store_frags(src, nt, dst):
    for t in range(nt):
        d = dst + 4 * t
        cvt(d, src(2 * t)); cvt(d + 2, src(2 * t + 1))
    A("  s_nop 1")
    for t in range(nt):
        d = dst + 4 * t
        A(f"  v_permlane16_swap_b32 v{d}, v{d+2}\n  v_permlane16_swap_b32 v{d+1}, v{d+3}")
    for t in range(nt):
        d = dst + 4 * t
        A(f"  s_add_u32 s{S_T0}, s{S_OB}, {t*32768}")
        A(f"  buffer_store_dwordx4 v[{d}:{d+3}], v{V_OA}, s[{SRD_WS}:{SRD_WS+3}], s{S_T0} offen sc1")

ACC = 16
AQ = lambda b: ACC + 4 * b
AK = lambda b: ACC + 16 + 4 * b
AV = lambda b: ACC + 36 + 4 * b
FX = lambda buf, b: 72 + 32 * buf + 4 * b
FW = lambda buf, seg: 72 + 32 * buf + 20 + 4 * seg
V_HA = 136; V_H0C = 137; V_H1C = 138
MK = 140; MK0 = 144; V_HI = 148; V_PV = 149; V_ONES = 150
A(f"""  v_mov_b32 v{V_HA}, v{V_XA}
  s_cmp_eq_u32 s{S_RH}, 0
  s_cbranch_scc1 L_h0ok
  v_or_b32 v10, 8, v7
  v_lshrrev_b32 v9, 1, v10
  v_xor_b32 v9, v9, v8
  v_lshlrev_b32 v9, 4, v9
  v_lshl_add_u32 v9, v10, 7, v9
  v_lshrrev_b32 v10, 3, v7
  v_lshlrev_b32 v10, 11, v10
  v_add_u32 v9, v9, v10
  v_add_u32 v{V_HA}, {2048*3}, v9
L_h0ok:
  s_lshl_b32 s{S_T0}, s{S_RH}, 13
  s_add_u32 s{S_T0}, s{S_T0}, 2048
  v_add_u32 v{V_XA}, s{S_T0}, v{V_XA}
  v_xor_b32 v{V_XA1}, 64, v{V_XA}
  v_mov_b32 v{V_X0C}, v{V_XA}
  v_mov_b32 v{V_X1C}, v{V_XA1}
  v_mov_b32 v{V_H0C}, v{V_HA}
  v_xor_b32 v{V_H1C}, 64, v{V_HA}
  s_lshl_b32 s{S_T1}, s{S_RH}, 16
  s_add_u32 s{S_OB}, s{S_OB}, s{S_T1}""")
for r in range(ACC, ACC + 56): A(f"  v_mov_b32 v{r}, 0")
A(f"""  v_lshlrev_b32 v9, 2, v8
  v_sub_u32 v9, v7, v9
  s_mov_b32 s{S_C0}, 0xf149f2ca
  v_mov_b32 v10, s{S_C0}""")
for r in range(4):
    A(f"""  v_subrev_u32 v11, {r}, v9
  v_and_b32 v12, 15, v11
  v_cmp_gt_u32 vcc, 8, v12
  s_nop 1
  v_cndmask_b32 v{MK+r}, v10, 0, vcc
  v_cmp_gt_u32 vcc, 8, v11
  s_nop 1
  v_cndmask_b32 v{MK0+r}, v10, 0, vcc""")
A(f"""  s_or_b32 s{S_T0}, s{S_RB}, s{S_RH}
  s_cmp_eq_u32 s{S_T0}, 0
  s_cbranch_scc1 L_m0
  v_mov_b32 v{MK0}, v{MK}
  v_mov_b32 v{MK0+1}, v{MK+1}
  v_mov_b32 v{MK0+2}, v{MK+2}
  v_mov_b32 v{MK0+3}, v{MK+3}
L_m0:
  v_cmp_lt_u32 s[{S_M0}:{S_M0+1}], 7, v7
  v_cmp_lt_u32 vcc, 1, v8
  s_nop 1
  v_cndmask_b32 v{V_HI}, 0, -1, s[{S_M0}:{S_M0+1}]
  s_andn2_b64 s[{S_M1}:{S_M1+1}], vcc, s[{S_M0}:{S_M0+1}]
  v_mov_b32 v{V_ONES}, 0x3f803f80
  v_mov_b32 v{V_ONES+1}, 0x3f803f80
  v_cndmask_b32 v{V_PV}, 0, -1, s[{S_M1}:{S_M1+1}]
  v_mov_b32 v{V_ONES+2}, 0x3f803f80
  v_mov_b32 v{V_ONES+3}, 0x3f803f80
  s_mov_b32 s{S_C0}, 0x3eb8aa3b""")
def readsA(buf, kk):
    va = V_X0C if kk == 0 else V_X1C
    r = trr(FW(buf, 1), 1) + trr(FW(buf, 2), 2) + trr(FW(buf, 0), 0)
    for b in range(4): r.append(f"  ds_read_b128 v[{FX(buf,b)}:{FX(buf,b)+3}], v{va} offset:{b*2048}")
    r.append(f"  ds_read_b128 v[{FX(buf,4)}:{FX(buf,4)+3}], v{V_H0C if kk == 0 else V_H1C}")
    return r
def mfmasA(buf):
    m = []
    for b in range(4):
        x = FX(buf, b)
        m += [mm(AK(b), FW(buf, 1), x), mm(AV(b), x, FW(buf, 2)), mm(AQ(b), FW(buf, 0), x)]
    x = FX(buf, 4)
    return m + [mm(AK(4), FW(buf, 1), x), mm(AV(4), x, FW(buf, 2))]
mainloop("A", readsA, mfmasA, [f"  v_add_u32 v{V_H0C}, s{S_XO}, v{V_HA}", f"  v_xor_b32 v{V_H1C}, 64, v{V_H0C}"], lambda: None, args.bpos)
K4 = lambda b: 72 + 4 * b
Q4 = lambda b: 88 + 4 * b
VP = lambda p, i: 104 + 6 * p + 2 * i
KH = 116; KH2 = 118; TT = 120
for b in range(4):
    cvt(K4(b), AK(b))
    cvt(VP(b & 1, (b >> 1) + 1), AV(b))
    tt = TT + 2 * (b & 1)
    cvt(tt, AQ(b))
    A(f"  v_and_b32 v{Q4(b)}, v{tt}, v{V_HI}\n  v_and_b32 v{Q4(b)+1}, v{tt+1}, v{V_HI}")
    A(f"  v_xor_b32 v{Q4(b)+2}, v{tt}, v{Q4(b)}\n  v_xor_b32 v{Q4(b)+3}, v{tt+1}, v{Q4(b)+1}")
cvt(KH, AK(4))
cvt(VP(1, 0), AV(4))
A(f"""  s_nop 1
  v_mov_b32_dpp v{KH2}, v{KH} row_ror:8 row_mask:0xf bank_mask:0xf
  v_mov_b32_dpp v{KH2+1}, v{KH+1} row_ror:8 row_mask:0xf bank_mask:0xf
  v_mov_b32 v{VP(0,0)}, v{VP(1,0)}
  v_mov_b32 v{VP(0,0)+1}, v{VP(1,0)+1}
  v_mov_b32 v{TT}, v{VP(1,0)}
  v_mov_b32 v{TT+1}, v{VP(1,0)+1}
  s_nop 1
  v_permlane32_swap_b32 v{VP(0,0)}, v{TT}
  v_permlane32_swap_b32 v{VP(0,0)+1}, v{TT+1}""")
for b in range(4):
    t, p = b >> 1, b & 1
    prev = (KH2 if p == 0 else KH) if t == 0 else K4(p)
    A(f"  v_cndmask_b32 v{K4(b)+2}, v{K4(b)}, v{prev}, s[{S_M0}:{S_M0+1}]\n  v_cndmask_b32 v{K4(b)+3}, v{K4(b)+1}, v{prev+1}, s[{S_M0}:{S_M0+1}]")
A("  s_nop 1")
SS = lambda b: ACC + 4 * b
for b in range(4):
    mk = MK0 if b < 2 else MK
    A(f"  v_mfma_f32_16x16x32_bf16 v[{SS(b)}:{SS(b)+3}], v[{K4(b)}:{K4(b)+3}], v[{Q4(b)}:{Q4(b)+3}], v[{mk}:{mk+3}]")
MX = lambda b: 32 + b
MT = 36
A("  s_nop 7")
for b in range(4): A(f"  v_max3_f32 v{MX(b)}, v{SS(b)}, v{SS(b)+1}, v{SS(b)+2}")
for b in range(4): A(f"  v_max_f32 v{MX(b)}, v{MX(b)}, v{SS(b)+3}")
a, b_, c, d = [MX(i) for i in range(4)]
A(f"""  s_nop 0
  v_permlane32_swap_b32 v{a}, v{b_}
  v_permlane32_swap_b32 v{c}, v{d}
  v_max_f32 v{a}, v{a}, v{b_}
  v_max_f32 v{c}, v{c}, v{d}
  s_nop 1
  v_permlane16_swap_b32 v{a}, v{c}
  v_max_f32 v{a}, v{a}, v{c}
  v_mul_f32 v{a}, s{S_C0}, v{a}
  v_mov_b32 v{c}, v{a}
  s_nop 1
  v_permlane16_swap_b32 v{a}, v{c}
  v_mov_b32 v{b_}, v{a}
  v_mov_b32 v{d}, v{c}
  s_nop 0
  v_permlane32_swap_b32 v{a}, v{b_}
  v_permlane32_swap_b32 v{c}, v{d}""")
for b in range(4):
    for r in range(4): A(f"  v_fma_f32 v{SS(b)+r}, v{SS(b)+r}, s{S_C0}, -v{MX(b)}")
for b in range(4):
    for r in range(4): A(f"  v_exp_f32 v{SS(b)+r}, v{SS(b)+r}")
P4 = lambda b: 40 + 4 * b
for b in range(4):
    tt = MT + 2 * (b & 1)
    cvt(tt, SS(b))
    A(f"  v_and_b32 v{P4(b)}, v{tt}, v{V_PV}\n  v_and_b32 v{P4(b)+1}, v{tt+1}, v{V_PV}")
    A(f"  v_xor_b32 v{P4(b)+2}, v{tt}, v{P4(b)}\n  v_xor_b32 v{P4(b)+3}, v{tt+1}, v{P4(b)+1}")
A("  s_nop 1")
OO = lambda b: 72 + 4 * b
SM = lambda b: 88 + 4 * b
for b in range(4):
    t, p = b >> 1, b & 1
    A(f"  v_mfma_f32_16x16x32_bf16 v[{SM(b)}:{SM(b)+3}], v[{V_ONES}:{V_ONES+3}], v[{P4(b)}:{P4(b)+3}], 0")
    A(f"  v_mfma_f32_16x16x32_bf16 v[{OO(b)}:{OO(b)+3}], v[{VP(p,t)}:{VP(p,t)+3}], v[{P4(b)}:{P4(b)+3}], 0")
A("  s_nop 4")
for b in range(4): A(f"  v_rcp_f32 v{SM(b)}, v{SM(b)}")
for b in range(4):
    for r in (0, 2): A(f"  v_pk_mul_f32 v[{OO(b)+r}:{OO(b)+r+1}], v[{OO(b)+r}:{OO(b)+r+1}], v[{SM(b)}:{SM(b)+1}] op_sel_hi:[1,0]")
store_frags(OO, 2, ACC)
A("  s_branch L_phase2")

A("L_compB:")
A(f"""  s_mov_b32 s{S_C0}, 0x358637bd
  s_mov_b32 s{S_C1}, 0x3fb8aa3b
  s_mov_b32 s{S_C2}, {hex(f2u(-1e-6 * 1.4426950408889634))}
  v_mov_b32 v{V_NC}, s{S_C2}
  v_mov_b32 v{V_NC+1}, s{S_C1}
  v_add_u32 v{V_XA}, 2048, v{V_XA}
  v_xor_b32 v{V_XA1}, 64, v{V_XA}
  v_mov_b32 v{V_X0C}, v{V_XA}
  v_mov_b32 v{V_X1C}, v{V_XA1}""")
for r in range(16, 48): A(f"  v_mov_b32 v{r}, s{S_C0}")
A(f"  s_cmp_lg_u32 s{S_RH}, 0\n  s_cbranch_scc1 L_compQ")
A(f"""  s_cmp_lg_u32 s{S_RB}, 0
  s_cbranch_scc1 L_nozero
  v_mov_b32 v8, 0
  v_mov_b32 v9, 0
  v_mov_b32 v10, 0
  v_mov_b32 v11, 0
  v_lshlrev_b32 v7, 4, v0
  buffer_store_dwordx4 v[8:11], v7, s[{SRD_WS}:{SRD_WS+3}], s{S_C3} offen sc1
  s_mov_b64 exec, 0xff
  buffer_store_dwordx4 v[8:11], v7, s[{SRD_WS}:{SRD_WS+3}], s{S_C3} offen offset:1024 sc1
  s_mov_b64 exec, -1
  s_lshl_b32 s{S_T0}, s{S_HG}, 2
  s_add_u32 s{S_T0}, s{S_T0}, s{S_HH}
  s_mul_i32 s{S_T0}, s{S_T0}, {9*128}
  s_add_u32 s{S_T0}, s{S_T0}, {WS_FLG}
  v_lshlrev_b32 v7, 7, v0
  s_mov_b64 exec, 0x1ff
  buffer_store_dword v8, v7, s[{SRD_WS}:{SRD_WS+3}], s{S_T0} offen sc1
  s_mov_b64 exec, -1
L_nozero:""")
BK = lambda b: 16 + 4 * b
BV = lambda b: 48 + 4 * b
GX = lambda buf, b: 80 + 40 * buf + 4 * b
GW = lambda buf, i: 80 + 40 * buf + 32 + 4 * i
for r in range(48, 80): A(f"  v_mov_b32 v{r}, 0")
for r in range(4): A(f"  v_mov_b32 v{V_ONESB+r}, 0x3f803f80")
def xreads(buf, kk):
    va = V_X0C if kk == 0 else V_X1C
    return [f"  ds_read_b128 v[{GX(buf,b)}:{GX(buf,b)+3}], v{va} offset:{b*2048}" for b in range(8)]
def readsKV(buf, kk): return trr(GW(buf, 0), 1) + trr(GW(buf, 1), 2) + xreads(buf, kk)
def mfmasKV(buf):
    m = []
    for b in range(8): m += [mm(BK(b), GX(buf, b), GW(buf, 0)), mm(BV(b), GX(buf, b), GW(buf, 1))]
    return m
def ack():
    A(f"""  s_or_b32 s{S_T0}, s{S_IT}, s{S_RB}
  s_cmp_lg_u32 s{S_T0}, 0
  s_cbranch_scc1 L_noack
  s_waitcnt vmcnt(0)
  s_lshl_b32 s{S_T0}, s{S_HG}, 2
  s_add_u32 s{S_T0}, s{S_T0}, s{S_HH}
  v_mov_b32 v11, s{S_T0}
  s_mov_b64 exec, 1
  global_store_byte v11, v{V_ONE}, s[{S_DBG}:{S_DBG+1}] sc1
  s_mov_b64 exec, -1
L_noack:""")
mainloop("K", readsKV, mfmasKV, [], ack, args.bpos)
if args.kprio: A("  s_setprio 2")
PK = lambda b: 80 + 2 * b
VV = lambda b: 96 + 2 * b
ET = 112
def phi(acc, n, et):
    for i in range(0, n, 2): A(f"  v_pk_fma_f32 v[{et+i}:{et+i+1}], v[{acc+i}:{acc+i+1}], v[{V_NC}:{V_NC+1}], v[{V_NC}:{V_NC+1}] op_sel:[0,1,0] op_sel_hi:[1,1,0]")
    for i in range(n): A(f"  v_exp_f32 v{et+i}, v{et+i} clamp")
    for i in range(n): A(f"  v_max_f32 v{acc+i}, s{S_C0}, v{acc+i}")
    for i in range(0, n, 2): A(f"  v_pk_add_f32 v[{acc+i}:{acc+i+1}], v[{acc+i}:{acc+i+1}], v[{et+i}:{et+i+1}]")
for b in range(8): cvt(VV(b), BV(b))
phi(BK(0), 32, ET)
for b in range(8): cvt(PK(b), BK(b))
KVA = 144; ZA = 148
A("  s_nop 1")
for i in range(4):
    c = "0" if i == 0 else f"v[{KVA}:{KVA+3}]"
    A(f"  v_mfma_f32_16x16x32_bf16 v[{KVA}:{KVA+3}], v[{VV(2*i)}:{VV(2*i)+3}], v[{PK(2*i)}:{PK(2*i)+3}], {c}")
    c = "0" if i == 0 else f"v[{ZA}:{ZA+3}]"
    A(f"  v_mfma_f32_16x16x32_bf16 v[{ZA}:{ZA+3}], v[{V_ONESB}:{V_ONESB+3}], v[{PK(2*i)}:{PK(2*i)+3}], {c}")
A("""  v_and_b32 v7, 15, v0
  v_lshlrev_b32 v7, 2, v7
  v_lshrrev_b32 v8, 5, v0
  v_lshl_add_u32 v7, v8, 8, v7
  v_bfe_u32 v8, v0, 4, 1
  v_lshl_add_u32 v7, v8, 9, v7""")
init_check("B", V_IF, V_IFA)
A("  s_nop 2")
for r in range(4):
    A(f"  buffer_atomic_add_f32 v{KVA+r}, v7, s[{SRD_WS}:{SRD_WS+3}], s{S_C3} offen offset:{64*r}")
A(f"  s_mov_b64 exec, 0xffff\n  buffer_atomic_add_f32 v{ZA}, v7, s[{SRD_WS}:{SRD_WS+3}], s{S_C3} offen offset:1024\n  s_mov_b64 exec, -1")
A(f"  v_mov_b32 v8, 0\n  s_waitcnt vmcnt(0)\n  s_mov_b64 exec, 1\n  buffer_atomic_add v{V_ONE}, v8, s[{SRD_WS}:{SRD_WS+3}], s{S_XH2} offen\n  s_mov_b64 exec, -1\n  s_mov_b32 s{S_IT}, 99\n  s_setprio 0")
A("  s_branch L_phase2")
A("L_compQ:")
def readsQ(buf, kk): return trr(GW(buf, 0), 0) + xreads(buf, kk)
def mfmasQ(buf): return [mm(BK(b), GW(buf, 0), GX(buf, b)) for b in range(8)]
mainloop("Q", readsQ, mfmasQ, [], lambda: None, min(args.bpos, 2))
A("  s_nop 4")
phi(BK(0), 32, ET)
store_frags(BK, 4, 16)

A("L_phase2:")
stamp(3)
A(f"  s_lshr_b32 s{S_T2}, s{S_HH}, 1")
chunk_sel(S_T2)
quarters()
A(f"""  v_and_b32 v11, 15, v0
  v_lshrrev_b32 v12, 4, v0
  v_lshrrev_b32 v13, 2, v11
  v_lshl_add_u32 v13, v12, 3, v13
  v_and_b32 v14, 3, v11
  v_lshlrev_b32 v14, 4, v14
  v_lshl_add_u32 v14, v13, 7, v14
  v_bfe_u32 v10, v13, 1, 1
  s_and_b32 s{S_T0}, s{S_HH}, 1
  v_xor_b32 v10, s{S_T0}, v10
  v_lshl_add_u32 v6, v10, 6, v14
  v_add_u32 v2, s{S_CH}, v6
  v_add_u32 v3, s{S_CH+1}, v6
  v_lshlrev_b32 v11, 12, v11
  v_lshl_add_u32 v1, v12, 4, v11
  s_lshl_b32 s{S_C2}, s{S_RB2}, 17
  s_lshl_b32 s{S_T0}, s{S_RH}, 16
  s_add_u32 s{S_C2}, s{S_C2}, s{S_T0}
  s_lshl_b32 s{S_T0}, s{S_BR}, 10
  s_add_u32 s{S_C2}, s{S_C2}, s{S_T0}
  s_lshl_b32 s{S_T0}, s{S_CB}, 8
  s_add_u32 s{S_C2}, s{S_C2}, s{S_T0}
  s_lshl_b32 s{S_T0}, s{S_HH}, 6
  s_add_u32 s{S_C2}, s{S_C2}, s{S_T0}
  s_mul_i32 s{S_C3}, s{S_RH}, {ORH}""")
A(f"  s_cmp_eq_u32 s{S_IT}, 99\n  s_cbranch_scc1 L_idP")
init_check("P", V_IF, V_IFA)
stamp(4)
A("  s_barrier\n  s_barrier")
WF = lambda ks, c: 104 + (ks % 8) * 8 + c * 4
def wo_reads(i, va):
    for k in range(4):
        for c in range(2):
            d = WF(4 * i + k, c)
            A(f"  ds_read_b64_tr_b16 v[{d}:{d+1}], v{va} offset:{k*4096 + 8*c}\n  ds_read_b64_tr_b16 v[{d+2}:{d+3}], v{va} offset:{k*4096 + 8*c + 512}")
wo_reads(0, 2); wo_reads(1, 3)
A(f"""  v_lshlrev_b32 v5, 4, v0
  v_add_u32 v5, s{S_C3}, v5
  v_and_b32 v11, 31, v0
  v_lshrrev_b32 v12, 5, v0
  v_lshrrev_b32 v13, 4, v11
  v_lshlrev_b32 v13, 14, v13
  v_lshl_add_u32 v13, v12, 8, v13
  v_and_b32 v14, 15, v11
  v_lshl_add_u32 v7, v14, 4, v13
  v_lshlrev_b32 v13, 4, v14
  v_lshl_add_u32 v13, v12, 8, v13
  v_lshlrev_b32 v10, 4, v12
  v_add_u32 v10, 512, v10
  v_cmp_lt_u32 vcc, 15, v11
  s_nop 1
  v_cndmask_b32 v4, v13, v10, vcc
  s_lshl_b32 s{S_C1}, s{S_RB2}, 16
  s_add_u32 s{S_C1}, s{S_C1}, 0x200000
  s_mov_b32 s{S_C0}, 0x358637bd
  s_waitcnt lgkmcnt(0)""")
stamp(5)
A("  s_barrier")
OA = lambda b, c: 16 + (b * 2 + c) * 4
OF = lambda k, b: 40 + (k % 8) * 8 + 4 * b
def gemm_all(bars):
    q = []
    def rd_o(k):
        i, h = k >> 2, k & 3
        for b in range(2):
            A(f"  ds_read_b128 v[{OF(k,b)}:{OF(k,b)+3}], v{8+i} offset:{b*16384 + h*1024}"); q.append(("o", k))
    def rd_w(k):
        i, h = k >> 2, k & 3
        for c in range(2):
            d = WF(k, c)
            A(f"  ds_read_b64_tr_b16 v[{d}:{d+1}], v{i} offset:{h*4096 + 8*c}"); q.append(("w", k))
            A(f"  ds_read_b64_tr_b16 v[{d+2}:{d+3}], v{i} offset:{h*4096 + 8*c + 512}"); q.append(("w", k))
    if bars: A("  s_barrier"); stamp(9)
    for k in range(4): rd_o(k)
    for k in range(16):
        need = [j for j, t in enumerate(q) if t[1] <= k]
        if need:
            n = len(q) - 1 - need[-1]
            A(f"  s_waitcnt lgkmcnt({min(n, 15)})")
            del q[:need[-1] + 1]
        ms = []
        for b in range(2):
            for c in range(2):
                acc = OA(b, c); wf = WF(k, c); d = OF(k, b)
                cin = "0" if k == 0 else f"v[{acc}:{acc+3}]"
                ms.append(f"  v_mfma_f32_16x16x32_bf16 v[{acc}:{acc+3}], v[{wf}:{wf+3}], v[{d}:{d+3}], {cin}")
        A(ms[0]); A(ms[1])
        kn = k + 4 if not bars else None
        if bars:
            if k % 4 == 1 and k + 3 < 16:
                A("  s_barrier")
                for kk in range(k + 3, k + 5): rd_o(kk)
            elif k % 4 == 2 and k + 4 < 16:
                for kk in range(k + 4, k + 6): rd_o(kk)
        elif k + 4 < 16: rd_o(k + 4)
        A(ms[2]); A(ms[3])
        if k < 8: rd_w(k + 8)
A(f"  v_add_u32 v2, s{S_CH+2}, v6\n  v_add_u32 v3, s{S_CH+3}, v6")
for i in range(4): A(f"  v_add_u32 v{8+i}, s{S_Q+i}, v5")
A(f"  s_cmp_lg_u32 s{S_BR}, 0\n  s_cbranch_scc1 L_p2B")
gemm_all(True)
A("  s_branch L_fin")
A("L_p2B:")
PQ = lambda i, rg: 40 + (i * 2 + rg) * 4
A(f"""  s_lshr_b32 s{S_A0}, s{S_WV}, 1
  s_lshl_b32 s{S_A0}, s{S_A0}, 10
  s_and_b32 s{S_T0}, s{S_WV}, 1
  s_lshl_b32 s{S_T0}, s{S_T0}, 9
  s_add_u32 s{S_A0}, s{S_A0}, s{S_T0}""")
for i in range(4):
    A(f"""  s_lshr_b32 s{S_T0}, s{S_Q+i}, 9
  s_add_u32 s{S_T0}, s{S_T0}, s{S_WV}
  s_mul_i32 s{S_T1}, s{S_T0}, {KVS}
  s_cmp_lt_u32 s{S_T0}, 11
  s_cselect_b32 s{S_T0}, 0, {KV1-KV0}
  s_add_u32 s{S_T1}, s{S_T1}, s{S_T0}
  s_add_u32 s{S_T1}, s{S_T1}, {KV0}
  v_add_u32 v{12+i}, s{S_T1}, v4""")
for i in range(4):
    A(f"  s_add_u32 s{S_T2}, s{S_A0}, s{S_Q+i}\n  s_add_u32 s{S_T2}, s{S_T2}, s{S_C1}\n  s_add_u32 s{S_T3}, s{S_T2}, 32768")
    for rg in range(2):
        d = PQ(i, rg)
        A(f"  buffer_load_dwordx4 v[{d}:{d+3}], v7, s[{SRD_WS}:{SRD_WS+3}], s{S_T2 if rg == 0 else S_T3} offen {args.cl}")
    if i == args.pqw: A("  s_waitcnt vmcnt(0)")
A(f"  v_add_u32 v32, s{S_A0}, v7\n  v_add_u32 v33, {ORH}, v32\n  s_waitcnt vmcnt(0)")
if 'cyc' not in args.dbg: stamp(12)
A("  s_barrier")
if 'cyc' not in args.dbg: stamp(13)
for i in range(4): A(f"  ds_read_b128 v[{16+4*i}:{19+4*i}], v{12+i}")
def pm(u):
    i, rg = u >> 1, u & 1; d = 72 + 16 * rg
    A(f"  v_mfma_f32_32x32x16_bf16 v[{d}:{d+15}], v[{16+4*i}:{19+4*i}], v[{PQ(i,rg)}:{PQ(i,rg)+3}], 0")
def pv(u):
    i, rg = u >> 1, u & 1; d = 72 + 16 * rg
    A(f"  v_add_f32 v{d+8}, s{S_C0}, v{d+8}\n  v_rcp_f32 v{d+8}, v{d+8}\n  v_add_u32 v{34+rg}, s{S_Q+i}, v{32+rg}")
    for r in range(0, 8, 2):
        A(f"  v_pk_mul_f32 v[{d+r}:{d+r+1}], v[{d+r}:{d+r+1}], v[{d+8}:{d+9}] op_sel_hi:[1,0]")
    o_ = PQ(i, rg)
    cvt(o_, d); cvt(o_ + 2, d + 4)
    A(f"  ds_write_b128 v{34+rg}, v[{o_}:{o_+3}]")
A("  s_waitcnt lgkmcnt(0)")
pm(0); pm(1)
A("  s_nop 10")
for u in range(8):
    pv(u)
    if u + 2 < 8: pm(u + 2)
    if u == 6: A("  s_nop 0")
A("  s_waitcnt lgkmcnt(0)")
stamp(14)
A("  s_barrier")
stamp(9)
gemm_all(False)
A("L_fin:\n  s_nop 7")
for b in range(2):
    d = 32 + 4 * b
    cvt(d, OA(b, 0)); cvt(d + 2, OA(b, 1))
    A(f"  s_add_u32 s{S_T0}, s{S_C2}, {b * 2048}")
    A(f"  buffer_store_dwordx4 v[{d}:{d+3}], v1, s[{SRD_OUT}:{SRD_OUT+3}], s{S_T0} offen {args.ost.replace('_', ' ')}")
stamp(10)
if NSTAMP:
    A("  s_waitcnt vmcnt(0)")
    stamp(11)
    A(f"  s_cmp_lg_u32 s{S_WV}, 0\n  s_cbranch_scc1 L_end")
    stamp_flush([0, 1, 2, 3, 4, 5, 9, 10, 11, 12, 13, 14], 8)
if args.diag:
    A(f"""  s_or_b32 s{S_T0}, s{S_J}, s{S_WV}
  s_cmp_lg_u32 s{S_T0}, 0
  s_cbranch_scc1 L_end
  s_waitcnt vmcnt(0)
  s_memrealtime s[96:97]
  s_waitcnt lgkmcnt(0)
  s_not_b32 s98, s98
  v_mov_b32 v8, s96
  v_mov_b32 v9, s98
  v_mov_b32 v10, 32
  s_mov_b64 exec, 1
  global_atomic_umax v10, v8, s[{S_DBG}:{S_DBG+1}]
  global_atomic_umax v10, v9, s[{S_DBG}:{S_DBG+1}] offset:4""")
A("L_end:\n  s_endpgm\nL_codeend:")
A(f""".section .rodata,"a"
.p2align 6
.amdhsa_kernel {NAME}
  .amdhsa_next_free_vgpr 168
  .amdhsa_next_free_sgpr 102
  .amdhsa_accum_offset 168
  .amdhsa_group_segment_fixed_size 0
  .amdhsa_kernarg_size 72
  .amdhsa_user_sgpr_count 2
  .amdhsa_user_sgpr_kernarg_segment_ptr 1
  .amdhsa_system_sgpr_workgroup_id_x 1
.end_amdhsa_kernel""")
print("\n".join(out))
```

```python
import sys, argparse, struct
ap = argparse.ArgumentParser()
ap.add_argument("--stamps", type=int, default=0)
ap.add_argument("--order", type=str, default="g4c")
ap.add_argument("--dbg", type=str, default="")
ap.add_argument("--touch", type=int, default=4)
ap.add_argument("--psleep", type=int, default=2)
ap.add_argument("--maxfl", type=int, default=20)
ap.add_argument("--codepf", type=int, default=1)
ap.add_argument("--D", type=int, default=5)
ap.add_argument("--D0", type=int, default=2)
ap.add_argument("--ramp", type=int, default=2)
ap.add_argument("--bpos", type=int, default=3)
ap.add_argument("--ldf", type=str, default="")
ap.add_argument("--ldn", type=int, default=6)
ap.add_argument("--atouch", type=int, default=0)
ap.add_argument("--kprio", type=int, default=1)
ap.add_argument("--ost", type=str, default="sc1")
ap.add_argument("--diag", type=int, default=0)
ap.add_argument("--tlb", type=int, default=1)
ap.add_argument("--x2", type=int, default=0)
ap.add_argument("--adyn", type=int, default=0)
ap.add_argument("--pqw", type=int, default=9)
ap.add_argument("--kvown", type=int, default=0)
ap.add_argument("--kvrot", type=int, default=1)
ap.add_argument("--flip", type=int, default=1)
ap.add_argument("--cl", type=str, default="")
args = ap.parse_args()
NAME = "concat_heads__sliding_local_dilated__linear_attn_block__prompt_kernel"
out = []
def A(s): out.append(s)
def f2u(x): return struct.unpack("<I", struct.pack("<f", x))[0]
SPINMAX = "0x40000"
XSLOT = 18432; NXS = 4
WBASE = XSLOT * NXS
WSLOT = 12288; NWS = 7
LDS_TOTAL = WBASE + WSLOT * NWS
ORH = 98304
KVS = 544
KV0 = 32768; KV1 = 147456 - 11 * KVS
WS_KV = 4 << 20
KVH = 1152
WS_FLG = (4 << 20) + 65536
WS_CNT = WS_FLG + 256 * 128
STAMP_OFF = 128 << 20
NSTAMP = args.stamps
S_PTR = 4; S_WS = 20; S_FLG = 22; S_SEQ = 23
SRD_X = 24; SRD_W = 28; SRD_WO = 32; SRD_OUT = 36; SRD_WS = 40
S_DBG = 44
S_BR = 46; S_RB = 47; S_HG = 48; S_RB2 = 49; S_CB = 50; S_WV = 51; S_J = 52; S_XQ = 53
S_XB = 54; S_XH = 55; S_WB = 56
S_T0 = 57; S_T1 = 58; S_T2 = 59; S_T3 = 60; S_IT = 61
S_M0 = 62; S_M1 = 64
S_XO = 66; S_WO = 67
S_C0 = 68; S_C1 = 69; S_C2 = 70; S_C3 = 71
S_OB = 72; S_SPIN = 73; S_STB = 74
S_ST = 76
S_CH = 12
S_A0 = 16; S_A1 = 17; S_A2 = 18; S_A3 = 19
S_Q = 4
S_HH = 54; S_RH = 55; S_XH2 = 56

def sreg(i): return S_ST + 2 * (i if i < 12 else i - 6)
def stamp(i):
    if i < NSTAMP: A(f"  s_memrealtime s[{sreg(i)}:{sreg(i)+1}]")
def stamp_flush(idxs, vtmp):
    if not NSTAMP: return
    A(f"  s_waitcnt lgkmcnt(0)\n  s_mov_b64 exec, 1\n  v_mov_b32 v{vtmp+2}, 0")
    for i in idxs:
        if i < NSTAMP:
            A(f"  v_mov_b32 v{vtmp}, s{sreg(i)}\n  v_mov_b32 v{vtmp+1}, s{sreg(i)+1}")
            A(f"  global_store_dwordx2 v{vtmp+2}, v[{vtmp}:{vtmp+1}], s[{S_STB}:{S_STB+1}] offset:{8*i}\n  s_nop 1")
    A("  s_mov_b64 exec, -1")
def spin(lbl_out):
    return f"  s_add_u32 s{S_SPIN}, s{S_SPIN}, 1\n  s_cmp_gt_u32 s{S_SPIN}, {SPINMAX}\n  s_cbranch_scc1 {lbl_out}"
def cvt(d, a):
    A(f"  v_cvt_pk_bf16_f32 v{d}, v{a}, v{a+1}\n  v_cvt_pk_bf16_f32 v{d+1}, v{a+2}, v{a+3}")
def quarters():
    for i in range(4):
        A(f"  s_add_u32 s{S_T0}, s{S_CB}, {i}\n  s_and_b32 s{S_T0}, s{S_T0}, 3\n  s_lshl_b32 s{S_Q+i}, s{S_T0}, 12")

A(f"; @launch grid=(256,1,1) block=(768,1,1) lds={LDS_TOTAL}")
A('.amdgcn_target "amdgcn-amd-amdhsa--gfx950"\n.text\n.globl %s\n.p2align 8\n.type %s,@function\n%s:' % (NAME, NAME, NAME))
A("  s_cmp_ge_u32 s2, 256\n  s_cbranch_scc1 L_end")
A(f"  s_load_dwordx16 s[{S_PTR}:{S_PTR+15}], s[0:1], 0\n  s_load_dwordx2 s[{S_WS}:{S_WS+1}], s[0:1], 64")
stamp(0)
if args.diag: A("  s_memrealtime s[98:99]")
A(f"""  v_lshrrev_b32 v1, 6, v0
  v_and_b32 v0, 63, v0
  v_readfirstlane_b32 s{S_WV}, v1
  s_and_b32 s{S_T0}, s2, 7
  s_lshr_b32 s{S_J}, s2, 3
  s_lshr_b32 s{S_BR}, s{S_T0}, 2
  s_xor_b32 s{S_BR}, s{S_BR}, {args.flip}
  s_and_b32 s{S_XQ}, s{S_T0}, 3
  s_lshr_b32 s{S_T1}, s{S_XQ}, 1
  s_lshl_b32 s{S_T1}, s{S_T1}, 3
  s_lshr_b32 s{S_T2}, s{S_J}, 2
  s_add_u32 s{S_RB}, s{S_T1}, s{S_T2}
  s_and_b32 s{S_T1}, s{S_XQ}, 1
  s_lshl_b32 s{S_T1}, s{S_T1}, 2
  s_and_b32 s{S_CB}, s{S_J}, 3
  s_add_u32 s{S_HG}, s{S_T1}, s{S_CB}
  s_lshl_b32 s{S_T1}, s{S_XQ}, 3
  s_add_u32 s{S_RB2}, s{S_T1}, s{S_T2}
  s_mov_b32 s{S_SPIN}, 0
  s_cmp_lt_u32 s{S_WV}, 8
  s_cbranch_scc1 L_comp""")

VX0 = 1; VX1 = 2; VW = 3; VXH = 4; VWO = 5; VTW = 9; VZ = 10
L_HL = S_C3; L_XL = S_C2; L_WL = S_C1
def seq_pack(l): return sum(x << (4 * i) for i, x in enumerate(l))
o = args.order
A(f"""  s_sub_u32 s{S_WV}, s{S_WV}, 8
  v_lshrrev_b32 v11, 3, v0
  v_and_b32 v12, 7, v0
  v_lshrrev_b32 v13, 4, v0
  v_xor_b32 v14, v12, v13
  v_lshlrev_b32 v14, 4, v14
  v_lshl_add_u32 v{VX0}, v11, 11, v14
  v_xor_b32 v{VX1}, 64, v{VX0}
  v_and_b32 v13, 1, v13
  v_lshlrev_b32 v13, 1, v13
  v_xor_b32 v14, v12, v13
  v_lshlrev_b32 v14, 4, v14
  v_mul_u32_u24 v{VW}, 3072, v11
  v_add_u32 v{VW}, v{VW}, v14
  s_and_b32 s{S_T0}, s{S_WV}, 1
  s_lshl_b32 s{S_T1}, s{S_T0}, 6
  v_xor_b32 v{VW}, s{S_T1}, v{VW}
  v_xor_b32 v{VXH}, s{S_T1}, v{VX0}
  s_lshl_b32 s{S_XB}, s{S_RB}, 17
  s_sub_u32 s{S_XH}, s{S_XB}, 16384
  s_max_i32 s{S_XH}, s{S_XH}, 0
  s_lshl_b32 s{L_HL}, s{S_T0}, 10
  s_add_u32 s{S_XH}, s{S_XH}, s{L_HL}
  s_lshl_b32 s{S_T1}, s{S_WV}, 15
  s_add_u32 s{S_XB}, s{S_XB}, s{S_T1}
  s_lshl_b32 s{L_XL}, s{S_WV}, 12
  s_add_u32 s{L_XL}, s{L_XL}, 2048
  s_lshl_b32 s{S_WB}, s{S_HG}, 7
  s_mul_i32 s{S_T1}, s{S_WV}, 24576
  s_add_u32 s{S_WB}, s{S_WB}, s{S_T1}
  s_lshl_b32 s{L_WL}, s{S_WV}, 10
  s_add_u32 s{L_WL}, s{L_WL}, {WBASE}""")
def order_code(o, reg):
    if o == "plain":
        A(f"  s_mov_b32 s{reg}, {hex(seq_pack(range(8)))}")
    elif o == "rot8":
        A(f"""  s_lshl_b32 s{S_T1}, s{S_CB}, 1
  s_add_u32 s{S_T1}, s{S_T1}, s{S_T2}
  s_and_b32 s{S_T1}, s{S_T1}, 7
  s_mul_i32 s{S_T1}, s{S_T1}, 0x11111111
  s_add_u32 s{reg}, s{S_T1}, {hex(seq_pack(range(8)))}
  s_and_b32 s{reg}, s{reg}, 0x77777777""")
    elif o.startswith("g2"):
        seqs = {"g2a": "a0 a1 b0 a2 b1 a3 b2 b3", "g2b": "a0 a1 a2 a3 b0 b1 b2 b3", "g2c": "a0 b0 a1 b1 a2 b2 a3 b3", "g2d": "a0 a1 a2 b0 b1 a3 b2 b3"}
        l = [2 * int(x[1]) + (x[0] == 'b') for x in seqs[o].split()]
        A(f"  s_add_u32 s{S_T1}, s{S_T2}, s{S_CB}\n  s_and_b32 s{S_T1}, s{S_T1}, 1\n  s_mul_i32 s{S_T1}, s{S_T1}, 0x11111111\n  s_xor_b32 s{reg}, s{S_T1}, {hex(seq_pack(l))}")
    elif o.startswith("g4"):
        seqs = {"g4a": "00 01 02 10 03 11 12 13", "g4b": "00 10 01 02 03 11 12 13", "g4c": "00 01 10 02 03 11 12 13", "g4d": "00 01 02 03 10 11 12 13"}
        l = [4 * int(x[0]) + int(x[1]) for x in seqs[o].split()]
        A(f"  s_add_u32 s{S_T1}, s{S_T2}, s{S_CB}\n  s_and_b32 s{S_T1}, s{S_T1}, 3\n  s_mul_i32 s{S_T1}, s{S_T1}, 0x11111111\n  s_xor_b32 s{reg}, s{S_T1}, {hex(seq_pack(l))}")
oa, ob = (o.split(",") + [o])[:2]
order_code(oa, S_SEQ)
if ob != oa:
    order_code(ob, S_IT)
    A(f"  s_cmp_eq_u32 s{S_BR}, 0\n  s_cselect_b32 s{S_SEQ}, s{S_SEQ}, s{S_IT}")
def build_srds():
    A(f"""  s_waitcnt lgkmcnt(0)
  s_cmp_eq_u32 s{S_BR}, 0
  s_cselect_b32 s{SRD_X}, s{S_PTR+0}, s{S_PTR+6}
  s_cselect_b32 s{SRD_X+1}, s{S_PTR+1}, s{S_PTR+7}
  s_cselect_b32 s{SRD_W}, s{S_PTR+2}, s{S_PTR+8}
  s_cselect_b32 s{SRD_W+1}, s{S_PTR+3}, s{S_PTR+9}
  s_mov_b32 s{SRD_X+2}, 0x200000
  s_mov_b32 s{SRD_X+3}, 0x20000
  s_mov_b32 s{SRD_W+2}, 0x180000
  s_mov_b32 s{SRD_W+3}, 0x20000""")
def build_srds2():
    A(f"""  s_cmp_eq_u32 s{S_BR}, 0
  s_cselect_b32 s{SRD_WO}, s{S_PTR+4}, s{S_PTR+10}
  s_cselect_b32 s{SRD_WO+1}, s{S_PTR+5}, s{S_PTR+11}
  s_mov_b32 s{SRD_WO+2}, 0x80000
  s_mov_b32 s{SRD_WO+3}, 0x20000
  s_mov_b32 s{SRD_OUT}, s{S_PTR+12}
  s_mov_b32 s{SRD_OUT+1}, s{S_PTR+13}
  s_mov_b32 s{SRD_OUT+2}, 0x400000
  s_mov_b32 s{SRD_OUT+3}, 0x20000
  s_mov_b32 s{SRD_WS}, s{S_WS}
  s_mov_b32 s{SRD_WS+1}, s{S_WS+1}
  s_mov_b32 s{SRD_WS+2}, 0x500000
  s_mov_b32 s{SRD_WS+3}, 0x20000
  s_mov_b32 s{S_DBG}, s{S_PTR+14}
  s_mov_b32 s{S_DBG+1}, s{S_PTR+15}""")
    if NSTAMP:
        A(f"""  s_add_u32 s{S_STB}, s{S_WS}, {STAMP_OFF}
  s_addc_u32 s{S_STB+1}, s{S_WS+1}, 0
  s_mul_i32 s{S_T1}, s2, {8*NSTAMP}
  s_add_u32 s{S_STB}, s{S_STB}, s{S_T1}
  s_addc_u32 s{S_STB+1}, s{S_STB+1}, 0""")
build_srds()
curg = [0]
def dma(vo, srd, sreg, imm, lreg, limm, extra=""):
    if "noload" in args.dbg and srd in (SRD_X, SRD_W): return
    if srd in (SRD_X, SRD_W) and args.ldf and curg[0] < args.ldn: extra = " " + args.ldf.replace("_", " ")
    A(f"  s_add_u32 s{S_T1}, s{sreg}, {imm}\n  s_add_u32 m0, s{lreg}, {limm}\n  s_waitcnt vmcnt({args.maxfl-1})\n  buffer_load_dwordx4 v{vo}, s[{srd}:{srd+3}], s{S_T1} offen{extra} lds")
D = args.D
def gsize(g): return 8 if g == 0 else (3 if g == 15 else (6 if g & 1 else 5))
def xops(t, which):
    xl = (t % NXS) * XSLOT
    A(f"  s_lshr_b32 s{S_T0}, s{S_SEQ}, {4*t}\n  s_and_b32 s{S_T0}, s{S_T0}, 7\n  s_lshl_b32 s{S_T0}, s{S_T0}, 7\n  s_add_u32 s{S_T3}, s{S_T0}, s{S_XB}")
    lst = [(p, m) for p in range(2) for m in range(2)]
    for i in which:
        if i < 4:
            p, m = lst[i]
            dma(VX0 if m == 0 else VX1, SRD_X, S_T3, (p + 16 * m) * 1024, L_XL, xl + p * 2048 + m * 1024)
        else:
            A(f"  s_add_u32 s{S_C0}, s{S_T0}, s{S_XH}")
            dma(VXH, SRD_X, S_C0, 0, L_HL, xl)
def issue_group(g):
    curg[0] = g
    t = g >> 1
    if g > 0 and g & 1 == 0: xops(t, [3, 4])
    A(f"""  s_lshr_b32 s{S_T0}, s{S_SEQ}, {4*t}
  s_and_b32 s{S_T0}, s{S_T0}, 7
  s_mul_i32 s{S_T2}, s{S_T0}, 196608
  s_add_u32 s{S_T2}, s{S_T2}, s{S_WB}""")
    wl = (g % NWS) * WSLOT
    for seg in range(3): dma(VW, SRD_W, S_T2, (g & 1) * 32 * 3072 + seg * 1024, L_WL, wl + seg * 4096)
    if g == 0: xops(0, [0, 1, 2, 3, 4])
    elif g & 1 and g < 15: xops(t + 1, [0, 1, 2])
    if g == 2 * args.touch + 1:
        A(f"""  v_lshlrev_b32 v{VTW}, 7, v0
  s_lshl_b32 s{S_T1}, s{S_J}, 14
  s_lshl_b32 s{S_T0}, s{S_WV}, 12
  s_add_u32 s{S_T1}, s{S_T1}, s{S_T0}
  s_mov_b32 exec_hi, 0
  buffer_load_dword v11, v{VTW}, s[{SRD_WO}:{SRD_WO+3}], s{S_T1} offen
  s_mov_b64 exec, -1""")
        return 1
    return 0
XC = lambda i: i * XSLOT + 2048
chunks = [[XC(0), 98304], [114688, XC(1)], [131072, XC(2)], [XC(3), WBASE]]
freeat = [11, 12, 14, 16]
def chunk_sel(bitreg):
    A(f"  s_cmp_eq_u32 s{bitreg}, 0")
    for i in range(4): A(f"  s_mov_b32 s{S_CH+i}, {chunks[i][1]}\n  s_cselect_b32 s{S_CH+i}, {chunks[i][0]}, s{S_CH+i}")
def lsetup():
    build_srds2()
    A(f"  s_and_b32 s{S_T2}, s{S_WV}, 1")
    chunk_sel(S_T2)
    quarters()
    A(f"""  v_lshrrev_b32 v11, 3, v0
  v_and_b32 v12, 7, v0
  v_bfe_u32 v13, v0, 4, 1
  v_lshlrev_b32 v13, 2, v13
  v_xor_b32 v12, v12, v13
  v_lshlrev_b32 v12, 4, v12
  v_lshl_add_u32 v{VWO}, v11, 10, v12
  s_lshl_b32 s{S_A0}, s{S_CB}, 8
  s_lshl_b32 s{S_T0}, s{S_T2}, 7
  s_add_u32 s{S_A0}, s{S_A0}, s{S_T0}
  s_lshr_b32 s{S_T0}, s{S_WV}, 1
  s_lshl_b32 s{S_T1}, s{S_T0}, 16
  s_add_u32 s{S_A0}, s{S_A0}, s{S_T1}
  s_lshl_b32 s{S_T0}, s{S_T0}, 13
  s_add_u32 s{S_CH}, s{S_CH}, s{S_T0}
  s_add_u32 s{S_CH+1}, s{S_CH+1}, s{S_T0}
  s_add_u32 s{S_CH+2}, s{S_CH+2}, s{S_T0}
  s_add_u32 s{S_CH+3}, s{S_CH+3}, s{S_T0}
  s_lshl_b32 s{S_FLG}, s{S_BR}, 7
  s_lshl_b32 s{S_T1}, s{S_RB}, 3
  s_add_u32 s{S_FLG}, s{S_FLG}, s{S_T1}
  s_add_u32 s{S_FLG}, s{S_FLG}, s{S_HG}
  s_lshl_b32 s{S_FLG}, s{S_FLG}, 7
  s_add_u32 s{S_FLG}, s{S_FLG}, {WS_FLG}
  v_mov_b32 v8, 1
  v_mov_b32 v15, 0
  v_and_b32 v{VZ}, 7, v0
  v_lshlrev_b32 v{VZ}, 2, v{VZ}
  v_lshlrev_b32 v6, 7, v0
  v_lshlrev_b32 v7, 4, v0""")
def wo_group(i):
    A(f"  s_lshl_b32 s{S_T0}, s{S_Q+i}, 5\n  s_add_u32 s{S_T2}, s{S_T0}, s{S_A0}")
    for k in range(8): dma(VWO, SRD_WO, S_T2, k * 8192, S_CH + i, k * 1024)
sizes = []
def outstanding_after(kid):
    idx = [i for i, x in enumerate(sizes) if (x[0], x[1]) == kid][0]
    return sum(x[2] for x in sizes[idx + 1:])
def do_group(g):
    e = issue_group(g); sizes.append(("g", g, gsize(g))); sizes.append(("t", g, e))
if args.atouch:
    A(f"""  s_cmp_lg_u32 s{S_BR}, 0
  s_cbranch_scc1 L_notch
  v_and_b32 v11, 31, v0
  v_lshlrev_b32 v11, 10, v11
  v_lshrrev_b32 v12, 5, v0
  v_lshl_add_u32 v11, v12, 7, v11
  s_lshr_b32 s{S_T0}, s{S_XQ}, 1
  s_lshl_b32 s{S_T0}, s{S_T0}, 20
  s_lshl_b32 s{S_T1}, s{S_J}, 15
  s_add_u32 s{S_T0}, s{S_T0}, s{S_T1}
  s_lshl_b32 s{S_T1}, s{S_WV}, 8
  s_add_u32 s{S_T0}, s{S_T0}, s{S_T1}
  v_lshrrev_b32 v12, 2, v0
  v_mul_u32_u24 v12, 3072, v12
  v_and_b32 v13, 3, v0
  v_lshl_add_u32 v12, v13, 7, v12
  s_mul_i32 s{S_T1}, s{S_J}, {16*3072}
  s_and_b32 s{S_T2}, s{S_XQ}, 1
  s_lshl_b32 s{S_T2}, s{S_T2}, 9
  s_add_u32 s{S_T1}, s{S_T1}, s{S_T2}
  s_min_u32 s{S_T2}, s{S_WV}, 2
  s_lshl_b32 s{S_T2}, s{S_T2}, 10
  s_add_u32 s{S_T1}, s{S_T1}, s{S_T2}""")
    R = args.atouch
    masks = {1: [(-1, -1)], 2: [(-1, 0), (0, -1)], 3: [(0xffff, 0), (0xffff0000, 0), (0, -1)], 4: [(0xffff, 0), (0xffff0000, 0), (0, 0xffff), (0, 0xffff0000)]}[R]
    for lo, hi in masks:
        A(f"""  s_mov_b32 exec_lo, {hex(lo & 0xffffffff)}
  s_mov_b32 exec_hi, {hex(hi & 0xffffffff)}
  buffer_load_dword v13, v11, s[{SRD_X}:{SRD_X+3}], s{S_T0} offen
  buffer_load_dword v14, v12, s[{SRD_W}:{SRD_W+3}], s{S_T1} offen
  s_waitcnt vmcnt(0)""")
    A("  s_mov_b64 exec, -1\nL_notch:")
for g in range(args.D0): do_group(g)
lsetup()
nxt = args.D0
for bq in range(17):
    if bq < 16: A(f"  s_waitcnt vmcnt({min(63, outstanding_after(('g', bq)))})")
    A("  s_barrier")
    while nxt < 16 and nxt <= bq + D - 1 and nxt <= bq + 5 and (nxt <= bq + args.D0 or bq >= args.ramp):
        do_group(nxt); nxt += 1
    for i in range(4):
        if freeat[i] == bq: wo_group(i); sizes.append(("w", i, 8))
stamp(6)
def init_check(tag, v, vz):
    A(f"""  s_mov_b32 s{S_T1}, 0x01010101
L_ic{tag}:
  s_waitcnt vmcnt(0)
  v_cmp_ne_u32 vcc, s{S_T1}, v{v}
  s_nop 3
  s_cmp_eq_u64 vcc, 0
  s_cbranch_scc1 L_id{tag}
{spin(f"L_id{tag}")}
  s_sleep 4
  global_load_dword v{v}, v{vz}, s[{S_DBG}:{S_DBG+1}] sc1
  s_branch L_ic{tag}
L_id{tag}:""")
def poll(tag, voff, sreg, val=1):
    A(f"""L_pl{tag}:
  buffer_load_dword v16, v{voff}, s[{SRD_WS}:{SRD_WS+3}], s{sreg} offen sc1
  s_waitcnt vmcnt(0)
  v_cmp_ne_u32 vcc, {val}, v16
  s_and_b64 exec, exec, vcc
  s_cbranch_execz L_po{tag}
{spin(f"L_po{tag}")}
  s_sleep {args.psleep}
  s_branch L_pl{tag}
L_po{tag}:
  s_mov_b64 exec, -1""")
A("  s_barrier")
A(f"""  s_cmp_lg_u32 s{S_WV}, 0
  s_cbranch_scc1 L_nofl
  s_mov_b64 exec, 1
  buffer_store_dword v8, v15, s[{SRD_WS}:{SRD_WS+3}], s{S_FLG} offen sc1
  s_mov_b64 exec, -1
  s_waitcnt vmcnt({outstanding_after(('w', 1)) + 1})
  s_branch L_fl2
L_nofl:
  s_waitcnt vmcnt({outstanding_after(('w', 1))})
L_fl2:
  s_barrier""")
stamp(7)
if args.adyn: A(f"  s_cmp_eq_u32 s{S_BR}, 0\n  s_cbranch_scc1 L_adyn")
A(f"""  v_lshrrev_b32 v11, 2, v0
  v_lshlrev_b32 v11, 4, v11
  v_bfe_u32 v12, v0, 1, 1
  v_lshl_add_u32 v11, v12, 8, v11
  v_and_b32 v12, 1, v0
  v_lshl_add_u32 v11, v12, 3, v11
  s_lshl_b32 s{S_A0}, s{S_WV}, 3
  s_mul_i32 s{S_A1}, s{S_A0}, {KVH}
  s_add_u32 s{S_A1}, s{S_A1}, {WS_KV}
  v_bfe_u32 v12, v0, 2, 3
  v_mul_u32_u24 v13, {KVH}, v12
  v_and_b32 v14, 3, v0
  v_lshl_add_u32 v13, v14, 4, v13
  v_add_u32 v13, 1024, v13
  v_add_u32 v12, s{S_A0}, v12              ; head
  v_mul_u32_u24 v20, {KVS}, v12
  v_lshl_add_u32 v20, v14, 3, v20
  v_add_u32 v20, {KV0 + 512}, v20
  v_add_u32 v21, {KV1 - KV0}, v20
  v_cmp_lt_u32 vcc, 10, v12
  s_nop 1
  v_cndmask_b32 v20, v20, v21, vcc""")
A(f"  s_lshl_b32 s{S_A2}, s{S_WV}, 10\n  s_add_u32 s{S_A2}, s{S_A2}, {WS_CNT}")
for h in range(8):
    A(f"""  s_add_u32 s{S_T0}, s{S_J}, {h}
  s_and_b32 s{S_T0}, s{S_T0}, {7 if args.kvrot else 0}
  s_add_u32 s{S_T0}, s{S_T0}, {0 if args.kvrot else h}
  s_mul_i32 s{78+h}, s{S_T0}, {KVH}
  s_add_u32 s{78+h}, s{78+h}, s{S_A1}
  s_add_u32 s{S_T0}, s{S_T0}, s{S_A0}
  s_mul_i32 s{S_T1}, s{S_T0}, {KVS}
  s_cmp_lt_u32 s{S_T0}, 11
  s_cselect_b32 s{S_T0}, 0, {KV1-KV0}
  s_add_u32 s{S_T1}, s{S_T1}, s{S_T0}
  s_add_u32 s{S_T1}, s{S_T1}, {KV0}
  v_add_u32 v{60+h}, s{S_T1}, v11""")
A(f"""  s_cmp_lg_u32 s{S_WV}, 0
  s_cbranch_scc1 L_await
  s_lshr_b32 s{S_T1}, s{S_RB2}, 1
  s_lshl_b32 s{S_T1}, s{S_T1}, 10
  s_lshl_b32 s{S_T0}, s{S_BR}, 14
  s_add_u32 s{S_T1}, s{S_T1}, s{S_T0}
  s_add_u32 s{S_T1}, s{S_T1}, {WS_FLG}
  s_mov_b64 exec, 0xff""")
poll("R", 6, S_T1)
A(f"""L_await:
  s_lshl_b32 s{S_T3}, s{S_RB2}, 16
  s_lshl_b32 s{S_T0}, s{S_WV}, 14
  s_add_u32 s{S_T3}, s{S_T3}, s{S_T0}
  s_and_b32 s{S_T2}, s{S_WV}, 1
  s_lshl_b32 s{S_T2}, s{S_T2}, 14
  s_lshr_b32 s{S_T0}, s{S_WV}, 1
  s_mul_i32 s{S_T0}, s{S_T0}, {ORH}
  s_add_u32 s{S_T2}, s{S_T2}, s{S_T0}
  s_waitcnt vmcnt(0)
  s_barrier""")
def lfin():
    if NSTAMP:
        A(f"  s_cmp_lg_u32 s{S_WV}, 0\n  s_cbranch_scc1 L_end")
        stamp_flush([6, 7, 8], 12)
    A("  s_endpgm")
A(f"  s_cmp_eq_u32 s{S_BR}, 0\n  s_cbranch_scc1 L_oload")
A("  s_mov_b64 exec, 0xff")
poll("K", 6, S_A2, 16)
stamp(8)
if args.kvown:
    A(f"""  s_mul_i32 s{S_T1}, s{S_J}, {KVH}
  s_add_u32 s{S_T1}, s{S_T1}, {WS_KV}
  s_mov_b64 exec, 0x1ff
  buffer_load_dword v16, v6, s[{SRD_WS}:{SRD_WS+3}], s{S_T1} offen
  s_mov_b64 exec, -1
  s_waitcnt vmcnt(0)""")
for h in range(8):
    r = 24 + h * 4
    A(f"  buffer_load_dwordx4 v[{r}:{r+3}], v7, s[{SRD_WS}:{SRD_WS+3}], s{78+h} offen {args.cl}")
A(f"  buffer_load_dwordx4 v[56:59], v13, s[{SRD_WS}:{SRD_WS+3}], s{S_A1} offen {args.cl}")
if args.x2 < 4: A("  s_barrier")
for h in range(8):
    r = 24 + h * 4
    A(f"  s_waitcnt vmcnt({8-h})")
    cvt(r, r)
    A(f"  ds_write_b64 v{60+h}, v[{r}:{r+1}]")
A("  s_waitcnt vmcnt(0)")
if "lst" in args.dbg: stamp(6)
cvt(56, 56)
A("  ds_write_b64 v20, v[56:57]\n  s_waitcnt lgkmcnt(0)")
if "lst" in args.dbg: stamp(7)
A("  s_barrier")
if NSTAMP: A("  s_barrier")
lfin()
if args.adyn:
    A(f"""L_adyn:
  s_lshr_b32 s{S_A2}, s{S_RB2}, 1
  s_lshl_b32 s{S_A2}, s{S_A2}, 10
  s_lshl_b32 s{S_T0}, s{S_WV}, 8
  s_add_u32 s{S_A2}, s{S_A2}, s{S_T0}
  s_add_u32 s{S_A2}, s{S_A2}, {WS_FLG}
  s_lshl_b32 s{S_A1}, s{S_WV}, 12
  s_lshl_b32 s{S_A0}, s{S_RB2}, 16
  s_add_u32 s{S_A0}, s{S_A0}, s{S_A1}
  s_barrier""")
    for g in range(2):
        A("  s_mov_b64 exec, 1")
        poll(f"A{g}", 15, S_A2)
        if g == 1: stamp(8)
        for b in range(4):
            for h in range(2):
                lb = (b >> 1) * ORH + (b & 1) * 16384 + g * 2048 + h * 1024
                A(f"  s_add_u32 s{S_T1}, s{S_A0}, {b*16384 + g*2048 + h*1024}\n  s_add_u32 m0, s{S_A1}, {lb}\n  s_nop 0\n  buffer_load_dwordx4 v7, s[{SRD_WS}:{SRD_WS+3}], s{S_T1} offen {args.cl} lds")
        if g == 0: A(f"  s_add_u32 s{S_A2}, s{S_A2}, 128")
    A("  s_waitcnt vmcnt(0)\n  s_barrier")
    lfin()
A("L_oload:")
stamp(8)
def oloads(i):
    A(f"  s_add_u32 s{S_A0}, s{S_T3}, s{S_Q+i}\n  s_add_u32 s{S_A1}, s{S_T2}, s{S_Q+i}")
    for h in range(4):
        A(f"  s_add_u32 s{S_T1}, s{S_A0}, {h*1024}\n  s_add_u32 m0, s{S_A1}, {h*1024}\n  s_nop 0\n  buffer_load_dwordx4 v7, s[{SRD_WS}:{SRD_WS+3}], s{S_T1} offen {args.cl} lds")
oloads(0)
A("  s_waitcnt vmcnt(0)")
oloads(1)
A("  s_barrier")
oloads(2); oloads(3)
for i in (1, 2, 3): A(f"  s_waitcnt vmcnt({4*(3-i)})\n  s_barrier")
lfin()

V_XA = 1; V_WA = 2; V_XA1 = 3; V_ONE = 4; V_OA = 5; V_X0C = 6; V_X1C = 13; V_WC = 14; V_IFA = 15
V_IF = 160; V_DUM = 161; V_NC = 162; V_ONESB = 164
A("L_comp:")
A(f"  s_and_b32 s{S_HH}, s{S_WV}, 3\n  s_lshr_b32 s{S_RH}, s{S_WV}, 2")
if args.codepf:
    A(f"""  s_getpc_b64 s[{S_M0}:{S_M0+1}]
L_pcref:
  s_sub_u32 s{S_M0}, s{S_M0}, L_pcref-{NAME}
  s_subb_u32 s{S_M0+1}, s{S_M0+1}, 0
  s_lshl_b32 s{S_T0}, s{S_J}, 3
  s_add_u32 s{S_T0}, s{S_T0}, s{S_WV}
  s_lshl_b32 s{S_T0}, s{S_T0}, 7
  s_min_u32 s{S_T0}, s{S_T0}, (L_codeend-{NAME}-4)&0xfffffffc
  v_mov_b32 v7, s{S_T0}
  s_mov_b64 exec, 1
  global_load_dword v{V_DUM}, v7, s[{S_M0}:{S_M0+1}]
  s_mov_b64 exec, -1""")
A(f"""  v_and_b32 v7, 15, v0
  v_lshrrev_b32 v8, 4, v0
  v_lshrrev_b32 v9, 1, v7
  v_xor_b32 v9, v9, v8
  v_lshlrev_b32 v9, 4, v9
  v_lshl_add_u32 v{V_XA}, v7, 7, v9
  v_lshrrev_b32 v9, 2, v7
  v_lshl_add_u32 v9, v8, 3, v9
  v_lshrrev_b32 v10, 1, v9
  v_and_b32 v10, 1, v10
  v_and_b32 v11, 1, v8
  v_lshl_or_b32 v10, v11, 1, v10
  v_xor_b32 v10, s{S_HH}, v10
  v_lshlrev_b32 v10, 5, v10
  v_lshl_add_u32 v10, v9, 7, v10
  v_and_b32 v11, 3, v7
  v_lshl_add_u32 v{V_WA}, v11, 3, v10
  v_add_u32 v{V_WA}, {WBASE}, v{V_WA}
  v_mov_b32 v{V_ONE}, 1
  s_lshl_b32 s{S_T0}, s{S_HG}, 2
  s_add_u32 s{S_T0}, s{S_T0}, s{S_HH}
  s_lshl_b32 s{S_OB}, s{S_T0}, 9
  s_lshl_b32 s{S_T1}, s{S_RB}, 17
  s_add_u32 s{S_OB}, s{S_OB}, s{S_T1}
  s_lshl_b32 s{S_T1}, s{S_BR}, 21
  s_add_u32 s{S_OB}, s{S_OB}, s{S_T1}
  s_mul_i32 s{S_C3}, s{S_T0}, {KVH}
  s_add_u32 s{S_C3}, s{S_C3}, {WS_KV}
  s_lshl_b32 s{S_XH2}, s{S_T0}, 7
  s_add_u32 s{S_XH2}, s{S_XH2}, {WS_CNT}
  s_lshl_b32 s{S_FLG}, s{S_BR}, 7
  s_lshl_b32 s{S_T1}, s{S_RB}, 3
  s_add_u32 s{S_FLG}, s{S_FLG}, s{S_T1}
  s_add_u32 s{S_FLG}, s{S_FLG}, s{S_HG}
  s_lshl_b32 s{S_FLG}, s{S_FLG}, 7
  s_add_u32 s{S_FLG}, s{S_FLG}, {WS_FLG}
  s_lshl_b32 s{S_T1}, s{S_WV}, 2
  s_add_u32 s{S_FLG}, s{S_FLG}, s{S_T1}
  v_and_b32 v9, 1, v8
  v_lshlrev_b32 v9, 14, v9
  v_lshrrev_b32 v10, 1, v8
  v_lshl_add_u32 v9, v10, 8, v9
  v_lshl_add_u32 v{V_OA}, v7, 4, v9
  v_and_b32 v{V_IFA}, 7, v0
  v_lshlrev_b32 v{V_IFA}, 2, v{V_IFA}
  s_mov_b32 s{S_IT}, 0
  s_mov_b32 s{S_XO}, 0
  s_mov_b32 s{S_WO}, 0
  v_mov_b32 v{V_WC}, v{V_WA}
  s_waitcnt lgkmcnt(0)""")
build_srds2()
if args.tlb:
    A(f"""  s_cmp_lg_u32 s{S_WV}, 7
  s_cbranch_scc1 L_notlb
  v_mov_b32 v9, 0
  s_lshl_b32 s{S_T0}, s{S_RB2}, 17
  s_lshl_b32 s{S_T1}, s{S_RB2}, 16
  s_lshl_b32 s{S_T2}, s{S_BR}, 21
  s_add_u32 s{S_T1}, s{S_T1}, s{S_T2}
  s_mov_b64 exec, 1
  buffer_load_dword v{V_DUM}, v9, s[{SRD_WS}:{SRD_WS+3}], s{S_OB} offen sc1
  buffer_load_dword v{V_DUM}, v9, s[{SRD_WS}:{SRD_WS+3}], s{S_FLG} offen sc1
  buffer_load_dword v{V_DUM}, v9, s[{SRD_OUT}:{SRD_OUT+3}], s{S_T0} offen sc1
  buffer_load_dword v{V_DUM}, v9, s[{SRD_WO}:{SRD_WO+3}], 0 offen
  s_mov_b64 exec, -1
L_notlb:""")
A(f"  s_cmp_eq_u32 s{S_BR}, 0\n  s_cbranch_scc0 L_compB")

wadv_c = [f"  s_add_u32 s{S_WO}, s{S_WO}, {WSLOT}", f"  s_cmp_eq_u32 s{S_WO}, {WSLOT*NWS}", f"  s_cselect_b32 s{S_WO}, 0, s{S_WO}", f"  v_add_u32 v{V_WC}, s{S_WO}, v{V_WA}"]
xadv_c = [f"  s_add_u32 s{S_XO}, s{S_XO}, {XSLOT}", f"  s_cmp_eq_u32 s{S_XO}, {XSLOT*NXS}", f"  s_cselect_b32 s{S_XO}, 0, s{S_XO}",
          f"  v_add_u32 v{V_X0C}, s{S_XO}, v{V_XA}", f"  v_add_u32 v{V_X1C}, s{S_XO}, v{V_XA1}"]
def mainloop(tag, reads, mfmas, extra_adv, tail, bpos):
    A("  s_barrier")
    stamp(1)
    if "cyc" in args.dbg: A(f"  s_memtime s[{sreg(12)}:{sreg(12)+1}]")
    for x in reads(0, 0): A(x)
    for kk in range(2):
        A(f"L_s{kk}{tag}:\n  s_waitcnt lgkmcnt(0)")
        m = mfmas(kk)
        adv = list(wadv_c) + (xadv_c + extra_adv if kk == 1 else [])
        r = reads(1 - kk, 1 - kk)
        if "noreads" in args.dbg: r = []
        ai = 0
        for i in range(bpos):
            A(m[i])
            want = min(len(adv), ((i + 1) * len(adv) + bpos - 2) // max(1, bpos - 1))
            while ai < want: A(adv[ai]); ai += 1
        A("  s_barrier")
        ri = 0; nm = len(m) - bpos
        for i, x in enumerate(m[bpos:]):
            want = min(len(r), ((i + 1) * len(r) + nm - 3) // max(1, nm - 2))
            while ri < want: A(r[ri]); ri += 1
            A(x)
        while ri < len(r): A(r[ri]); ri += 1
    tail()
    A(f"  s_add_u32 s{S_IT}, s{S_IT}, 1\n  s_cmp_lt_u32 s{S_IT}, 8\n  s_cbranch_scc1 L_s0{tag}")
    A(f"  global_load_dword v{V_IF}, v{V_IFA}, s[{S_DBG}:{S_DBG+1}] sc1")
    stamp(2)
    if "cyc" in args.dbg: A(f"  s_memtime s[{sreg(13)}:{sreg(13)+1}]")
    A("  s_waitcnt lgkmcnt(0)")
def trr(d, seg): return [f"  ds_read_b64_tr_b16 v[{d}:{d+1}], v{V_WC} offset:{seg*4096}", f"  ds_read_b64_tr_b16 v[{d+2}:{d+3}], v{V_WC} offset:{seg*4096 + 512}"]
def mm(acc, a, b): return f"  v_mfma_f32_16x16x32_bf16 v[{acc}:{acc+3}], v[{a}:{a+3}], v[{b}:{b+3}], v[{acc}:{acc+3}]"
def store_frags(src, nt, dst):
    for t in range(nt):
        d = dst + 4 * t
        cvt(d, src(2 * t)); cvt(d + 2, src(2 * t + 1))
    A("  s_nop 1")
    for t in range(nt):
        d = dst + 4 * t
        A(f"  v_permlane16_swap_b32 v{d}, v{d+2}\n  v_permlane16_swap_b32 v{d+1}, v{d+3}")
    for t in range(nt):
        d = dst + 4 * t
        A(f"  s_add_u32 s{S_T0}, s{S_OB}, {t*32768}")
        A(f"  buffer_store_dwordx4 v[{d}:{d+3}], v{V_OA}, s[{SRD_WS}:{SRD_WS+3}], s{S_T0} offen sc1")

ACC = 16
AQ = lambda b: ACC + 4 * b
AK = lambda b: ACC + 16 + 4 * b
AV = lambda b: ACC + 36 + 4 * b
FX = lambda buf, b: 72 + 32 * buf + 4 * b
FW = lambda buf, seg: 72 + 32 * buf + 20 + 4 * seg
V_HA = 136; V_H0C = 137; V_H1C = 138
MK = 140; MK0 = 144; V_HI = 148; V_PV = 149; V_ONES = 150
A(f"""  v_mov_b32 v{V_HA}, v{V_XA}
  s_cmp_eq_u32 s{S_RH}, 0
  s_cbranch_scc1 L_h0ok
  v_or_b32 v10, 8, v7
  v_lshrrev_b32 v9, 1, v10
  v_xor_b32 v9, v9, v8
  v_lshlrev_b32 v9, 4, v9
  v_lshl_add_u32 v9, v10, 7, v9
  v_lshrrev_b32 v10, 3, v7
  v_lshlrev_b32 v10, 11, v10
  v_add_u32 v9, v9, v10
  v_add_u32 v{V_HA}, {2048*3}, v9
L_h0ok:
  s_lshl_b32 s{S_T0}, s{S_RH}, 13
  s_add_u32 s{S_T0}, s{S_T0}, 2048
  v_add_u32 v{V_XA}, s{S_T0}, v{V_XA}
  v_xor_b32 v{V_XA1}, 64, v{V_XA}
  v_mov_b32 v{V_X0C}, v{V_XA}
  v_mov_b32 v{V_X1C}, v{V_XA1}
  v_mov_b32 v{V_H0C}, v{V_HA}
  v_xor_b32 v{V_H1C}, 64, v{V_HA}
  s_lshl_b32 s{S_T1}, s{S_RH}, 16
  s_add_u32 s{S_OB}, s{S_OB}, s{S_T1}""")
for r in range(ACC, ACC + 56): A(f"  v_mov_b32 v{r}, 0")
A(f"""  v_lshlrev_b32 v9, 2, v8
  v_sub_u32 v9, v7, v9
  s_mov_b32 s{S_C0}, 0xf149f2ca
  v_mov_b32 v10, s{S_C0}""")
for r in range(4):
    A(f"""  v_subrev_u32 v11, {r}, v9
  v_and_b32 v12, 15, v11
  v_cmp_gt_u32 vcc, 8, v12
  s_nop 1
  v_cndmask_b32 v{MK+r}, v10, 0, vcc
  v_cmp_gt_u32 vcc, 8, v11
  s_nop 1
  v_cndmask_b32 v{MK0+r}, v10, 0, vcc""")
A(f"""  s_or_b32 s{S_T0}, s{S_RB}, s{S_RH}
  s_cmp_eq_u32 s{S_T0}, 0
  s_cbranch_scc1 L_m0
  v_mov_b32 v{MK0}, v{MK}
  v_mov_b32 v{MK0+1}, v{MK+1}
  v_mov_b32 v{MK0+2}, v{MK+2}
  v_mov_b32 v{MK0+3}, v{MK+3}
L_m0:
  v_cmp_lt_u32 s[{S_M0}:{S_M0+1}], 7, v7
  v_cmp_lt_u32 vcc, 1, v8
  s_nop 1
  v_cndmask_b32 v{V_HI}, 0, -1, s[{S_M0}:{S_M0+1}]
  s_andn2_b64 s[{S_M1}:{S_M1+1}], vcc, s[{S_M0}:{S_M0+1}]
  v_mov_b32 v{V_ONES}, 0x3f803f80
  v_mov_b32 v{V_ONES+1}, 0x3f803f80
  v_cndmask_b32 v{V_PV}, 0, -1, s[{S_M1}:{S_M1+1}]
  v_mov_b32 v{V_ONES+2}, 0x3f803f80
  v_mov_b32 v{V_ONES+3}, 0x3f803f80
  s_mov_b32 s{S_C0}, 0x3eb8aa3b""")
def readsA(buf, kk):
    va = V_X0C if kk == 0 else V_X1C
    r = trr(FW(buf, 1), 1) + trr(FW(buf, 2), 2) + trr(FW(buf, 0), 0)
    for b in range(4): r.append(f"  ds_read_b128 v[{FX(buf,b)}:{FX(buf,b)+3}], v{va} offset:{b*2048}")
    r.append(f"  ds_read_b128 v[{FX(buf,4)}:{FX(buf,4)+3}], v{V_H0C if kk == 0 else V_H1C}")
    return r
def mfmasA(buf):
    m = []
    for b in range(4):
        x = FX(buf, b)
        m += [mm(AK(b), FW(buf, 1), x), mm(AV(b), x, FW(buf, 2)), mm(AQ(b), FW(buf, 0), x)]
    x = FX(buf, 4)
    return m + [mm(AK(4), FW(buf, 1), x), mm(AV(4), x, FW(buf, 2))]
mainloop("A", readsA, mfmasA, [f"  v_add_u32 v{V_H0C}, s{S_XO}, v{V_HA}", f"  v_xor_b32 v{V_H1C}, 64, v{V_H0C}"], lambda: None, args.bpos)
K4 = lambda b: 72 + 4 * b
Q4 = lambda b: 88 + 4 * b
VP = lambda p, i: 104 + 6 * p + 2 * i
KH = 116; KH2 = 118; TT = 120
for b in range(4):
    cvt(K4(b), AK(b))
    cvt(VP(b & 1, (b >> 1) + 1), AV(b))
    tt = TT + 2 * (b & 1)
    cvt(tt, AQ(b))
    A(f"  v_and_b32 v{Q4(b)}, v{tt}, v{V_HI}\n  v_and_b32 v{Q4(b)+1}, v{tt+1}, v{V_HI}")
    A(f"  v_xor_b32 v{Q4(b)+2}, v{tt}, v{Q4(b)}\n  v_xor_b32 v{Q4(b)+3}, v{tt+1}, v{Q4(b)+1}")
cvt(KH, AK(4))
cvt(VP(1, 0), AV(4))
A(f"""  s_nop 1
  v_mov_b32_dpp v{KH2}, v{KH} row_ror:8 row_mask:0xf bank_mask:0xf
  v_mov_b32_dpp v{KH2+1}, v{KH+1} row_ror:8 row_mask:0xf bank_mask:0xf
  v_mov_b32 v{VP(0,0)}, v{VP(1,0)}
  v_mov_b32 v{VP(0,0)+1}, v{VP(1,0)+1}
  v_mov_b32 v{TT}, v{VP(1,0)}
  v_mov_b32 v{TT+1}, v{VP(1,0)+1}
  s_nop 1
  v_permlane32_swap_b32 v{VP(0,0)}, v{TT}
  v_permlane32_swap_b32 v{VP(0,0)+1}, v{TT+1}""")
for b in range(4):
    t, p = b >> 1, b & 1
    prev = (KH2 if p == 0 else KH) if t == 0 else K4(p)
    A(f"  v_cndmask_b32 v{K4(b)+2}, v{K4(b)}, v{prev}, s[{S_M0}:{S_M0+1}]\n  v_cndmask_b32 v{K4(b)+3}, v{K4(b)+1}, v{prev+1}, s[{S_M0}:{S_M0+1}]")
A("  s_nop 1")
SS = lambda b: ACC + 4 * b
for b in range(4):
    mk = MK0 if b < 2 else MK
    A(f"  v_mfma_f32_16x16x32_bf16 v[{SS(b)}:{SS(b)+3}], v[{K4(b)}:{K4(b)+3}], v[{Q4(b)}:{Q4(b)+3}], v[{mk}:{mk+3}]")
MX = lambda b: 32 + b
MT = 36
A("  s_nop 7")
for b in range(4): A(f"  v_max3_f32 v{MX(b)}, v{SS(b)}, v{SS(b)+1}, v{SS(b)+2}")
for b in range(4): A(f"  v_max_f32 v{MX(b)}, v{MX(b)}, v{SS(b)+3}")
a, b_, c, d = [MX(i) for i in range(4)]
A(f"""  s_nop 0
  v_permlane32_swap_b32 v{a}, v{b_}
  v_permlane32_swap_b32 v{c}, v{d}
  v_max_f32 v{a}, v{a}, v{b_}
  v_max_f32 v{c}, v{c}, v{d}
  s_nop 1
  v_permlane16_swap_b32 v{a}, v{c}
  v_max_f32 v{a}, v{a}, v{c}
  v_mul_f32 v{a}, s{S_C0}, v{a}
  v_mov_b32 v{c}, v{a}
  s_nop 1
  v_permlane16_swap_b32 v{a}, v{c}
  v_mov_b32 v{b_}, v{a}
  v_mov_b32 v{d}, v{c}
  s_nop 0
  v_permlane32_swap_b32 v{a}, v{b_}
  v_permlane32_swap_b32 v{c}, v{d}""")
for b in range(4):
    for r in range(4): A(f"  v_fma_f32 v{SS(b)+r}, v{SS(b)+r}, s{S_C0}, -v{MX(b)}")
for b in range(4):
    for r in range(4): A(f"  v_exp_f32 v{SS(b)+r}, v{SS(b)+r}")
P4 = lambda b: 40 + 4 * b
for b in range(4):
    tt = MT + 2 * (b & 1)
    cvt(tt, SS(b))
    A(f"  v_and_b32 v{P4(b)}, v{tt}, v{V_PV}\n  v_and_b32 v{P4(b)+1}, v{tt+1}, v{V_PV}")
    A(f"  v_xor_b32 v{P4(b)+2}, v{tt}, v{P4(b)}\n  v_xor_b32 v{P4(b)+3}, v{tt+1}, v{P4(b)+1}")
A("  s_nop 1")
OO = lambda b: 72 + 4 * b
SM = lambda b: 88 + 4 * b
for b in range(4):
    t, p = b >> 1, b & 1
    A(f"  v_mfma_f32_16x16x32_bf16 v[{SM(b)}:{SM(b)+3}], v[{V_ONES}:{V_ONES+3}], v[{P4(b)}:{P4(b)+3}], 0")
    A(f"  v_mfma_f32_16x16x32_bf16 v[{OO(b)}:{OO(b)+3}], v[{VP(p,t)}:{VP(p,t)+3}], v[{P4(b)}:{P4(b)+3}], 0")
A("  s_nop 4")
for b in range(4): A(f"  v_rcp_f32 v{SM(b)}, v{SM(b)}")
for b in range(4):
    for r in (0, 2): A(f"  v_pk_mul_f32 v[{OO(b)+r}:{OO(b)+r+1}], v[{OO(b)+r}:{OO(b)+r+1}], v[{SM(b)}:{SM(b)+1}] op_sel_hi:[1,0]")
store_frags(OO, 2, ACC)
A("  s_branch L_phase2")

A("L_compB:")
A(f"""  s_mov_b32 s{S_C0}, 0x358637bd
  s_mov_b32 s{S_C1}, 0x3fb8aa3b
  s_mov_b32 s{S_C2}, {hex(f2u(-1e-6 * 1.4426950408889634))}
  v_mov_b32 v{V_NC}, s{S_C2}
  v_mov_b32 v{V_NC+1}, s{S_C1}
  v_add_u32 v{V_XA}, 2048, v{V_XA}
  v_xor_b32 v{V_XA1}, 64, v{V_XA}
  v_mov_b32 v{V_X0C}, v{V_XA}
  v_mov_b32 v{V_X1C}, v{V_XA1}""")
for r in range(16, 48): A(f"  v_mov_b32 v{r}, s{S_C0}")
A(f"  s_cmp_lg_u32 s{S_RH}, 0\n  s_cbranch_scc1 L_compQ")
A(f"""  s_cmp_lg_u32 s{S_RB}, 0
  s_cbranch_scc1 L_nozero
  v_mov_b32 v8, 0
  v_mov_b32 v9, 0
  v_mov_b32 v10, 0
  v_mov_b32 v11, 0
  v_lshlrev_b32 v7, 4, v0
  buffer_store_dwordx4 v[8:11], v7, s[{SRD_WS}:{SRD_WS+3}], s{S_C3} offen sc1
  s_mov_b64 exec, 0xff
  buffer_store_dwordx4 v[8:11], v7, s[{SRD_WS}:{SRD_WS+3}], s{S_C3} offen offset:1024 sc1
  s_mov_b64 exec, -1
  s_lshl_b32 s{S_T0}, s{S_HG}, 2
  s_add_u32 s{S_T0}, s{S_T0}, s{S_HH}
  s_mul_i32 s{S_T0}, s{S_T0}, {9*128}
  s_add_u32 s{S_T0}, s{S_T0}, {WS_FLG}
  v_lshlrev_b32 v7, 7, v0
  s_mov_b64 exec, 0x1ff
  buffer_store_dword v8, v7, s[{SRD_WS}:{SRD_WS+3}], s{S_T0} offen sc1
  s_mov_b64 exec, -1
L_nozero:""")
BK = lambda b: 16 + 4 * b
BV = lambda b: 48 + 4 * b
GX = lambda buf, b: 80 + 40 * buf + 4 * b
GW = lambda buf, i: 80 + 40 * buf + 32 + 4 * i
for r in range(48, 80): A(f"  v_mov_b32 v{r}, 0")
for r in range(4): A(f"  v_mov_b32 v{V_ONESB+r}, 0x3f803f80")
def xreads(buf, kk):
    va = V_X0C if kk == 0 else V_X1C
    return [f"  ds_read_b128 v[{GX(buf,b)}:{GX(buf,b)+3}], v{va} offset:{b*2048}" for b in range(8)]
def readsKV(buf, kk): return trr(GW(buf, 0), 1) + trr(GW(buf, 1), 2) + xreads(buf, kk)
def mfmasKV(buf):
    m = []
    for b in range(8): m += [mm(BK(b), GX(buf, b), GW(buf, 0)), mm(BV(b), GX(buf, b), GW(buf, 1))]
    return m
def ack():
    A(f"""  s_or_b32 s{S_T0}, s{S_IT}, s{S_RB}
  s_cmp_lg_u32 s{S_T0}, 0
  s_cbranch_scc1 L_noack
  s_waitcnt vmcnt(0)
  s_lshl_b32 s{S_T0}, s{S_HG}, 2
  s_add_u32 s{S_T0}, s{S_T0}, s{S_HH}
  v_mov_b32 v11, s{S_T0}
  s_mov_b64 exec, 1
  global_store_byte v11, v{V_ONE}, s[{S_DBG}:{S_DBG+1}] sc1
  s_mov_b64 exec, -1
L_noack:""")
mainloop("K", readsKV, mfmasKV, [], ack, args.bpos)
if args.kprio: A("  s_setprio 2")
PK = lambda b: 80 + 2 * b
VV = lambda b: 96 + 2 * b
ET = 112
def phi(acc, n, et):
    for i in range(0, n, 2): A(f"  v_pk_fma_f32 v[{et+i}:{et+i+1}], v[{acc+i}:{acc+i+1}], v[{V_NC}:{V_NC+1}], v[{V_NC}:{V_NC+1}] op_sel:[0,1,0] op_sel_hi:[1,1,0]")
    for i in range(n): A(f"  v_exp_f32 v{et+i}, v{et+i} clamp")
    for i in range(n): A(f"  v_max_f32 v{acc+i}, s{S_C0}, v{acc+i}")
    for i in range(0, n, 2): A(f"  v_pk_add_f32 v[{acc+i}:{acc+i+1}], v[{acc+i}:{acc+i+1}], v[{et+i}:{et+i+1}]")
for b in range(8): cvt(VV(b), BV(b))
phi(BK(0), 32, ET)
for b in range(8): cvt(PK(b), BK(b))
KVA = 144; ZA = 148
A("  s_nop 1")
for i in range(4):
    c = "0" if i == 0 else f"v[{KVA}:{KVA+3}]"
    A(f"  v_mfma_f32_16x16x32_bf16 v[{KVA}:{KVA+3}], v[{VV(2*i)}:{VV(2*i)+3}], v[{PK(2*i)}:{PK(2*i)+3}], {c}")
    c = "0" if i == 0 else f"v[{ZA}:{ZA+3}]"
    A(f"  v_mfma_f32_16x16x32_bf16 v[{ZA}:{ZA+3}], v[{V_ONESB}:{V_ONESB+3}], v[{PK(2*i)}:{PK(2*i)+3}], {c}")
A("""  v_and_b32 v7, 15, v0
  v_lshlrev_b32 v7, 2, v7
  v_lshrrev_b32 v8, 5, v0
  v_lshl_add_u32 v7, v8, 8, v7
  v_bfe_u32 v8, v0, 4, 1
  v_lshl_add_u32 v7, v8, 9, v7""")
init_check("B", V_IF, V_IFA)
A("  s_nop 2")
for r in range(4):
    A(f"  buffer_atomic_add_f32 v{KVA+r}, v7, s[{SRD_WS}:{SRD_WS+3}], s{S_C3} offen offset:{64*r}")
A(f"  s_mov_b64 exec, 0xffff\n  buffer_atomic_add_f32 v{ZA}, v7, s[{SRD_WS}:{SRD_WS+3}], s{S_C3} offen offset:1024\n  s_mov_b64 exec, -1")
A(f"  v_mov_b32 v8, 0\n  s_waitcnt vmcnt(0)\n  s_mov_b64 exec, 1\n  buffer_atomic_add v{V_ONE}, v8, s[{SRD_WS}:{SRD_WS+3}], s{S_XH2} offen\n  s_mov_b64 exec, -1\n  s_mov_b32 s{S_IT}, 99\n  s_setprio 0")
A("  s_branch L_phase2")
A("L_compQ:")
def readsQ(buf, kk): return trr(GW(buf, 0), 0) + xreads(buf, kk)
def mfmasQ(buf): return [mm(BK(b), GW(buf, 0), GX(buf, b)) for b in range(8)]
mainloop("Q", readsQ, mfmasQ, [], lambda: None, min(args.bpos, 2))
A("  s_nop 4")
phi(BK(0), 32, ET)
store_frags(BK, 4, 16)

A("L_phase2:")
stamp(3)
A(f"  s_lshr_b32 s{S_T2}, s{S_HH}, 1")
chunk_sel(S_T2)
quarters()
A(f"""  v_and_b32 v11, 15, v0
  v_lshrrev_b32 v12, 4, v0
  v_lshrrev_b32 v13, 2, v11
  v_lshl_add_u32 v13, v12, 3, v13
  v_and_b32 v14, 3, v11
  v_lshlrev_b32 v14, 4, v14
  v_lshl_add_u32 v14, v13, 7, v14
  v_bfe_u32 v10, v13, 1, 1
  s_and_b32 s{S_T0}, s{S_HH}, 1
  v_xor_b32 v10, s{S_T0}, v10
  v_lshl_add_u32 v6, v10, 6, v14
  v_add_u32 v2, s{S_CH}, v6
  v_add_u32 v3, s{S_CH+1}, v6
  v_lshlrev_b32 v11, 12, v11
  v_lshl_add_u32 v1, v12, 4, v11
  s_lshl_b32 s{S_C2}, s{S_RB2}, 17
  s_lshl_b32 s{S_T0}, s{S_RH}, 16
  s_add_u32 s{S_C2}, s{S_C2}, s{S_T0}
  s_lshl_b32 s{S_T0}, s{S_BR}, 10
  s_add_u32 s{S_C2}, s{S_C2}, s{S_T0}
  s_lshl_b32 s{S_T0}, s{S_CB}, 8
  s_add_u32 s{S_C2}, s{S_C2}, s{S_T0}
  s_lshl_b32 s{S_T0}, s{S_HH}, 6
  s_add_u32 s{S_C2}, s{S_C2}, s{S_T0}
  s_mul_i32 s{S_C3}, s{S_RH}, {ORH}""")
A(f"  s_cmp_eq_u32 s{S_IT}, 99\n  s_cbranch_scc1 L_idP")
init_check("P", V_IF, V_IFA)
stamp(4)
A("  s_barrier\n  s_barrier")
WF = lambda ks, c: 104 + (ks % 8) * 8 + c * 4
def wo_reads(i, va):
    for k in range(4):
        for c in range(2):
            d = WF(4 * i + k, c)
            A(f"  ds_read_b64_tr_b16 v[{d}:{d+1}], v{va} offset:{k*4096 + 8*c}\n  ds_read_b64_tr_b16 v[{d+2}:{d+3}], v{va} offset:{k*4096 + 8*c + 512}")
wo_reads(0, 2); wo_reads(1, 3)
A(f"""  v_lshlrev_b32 v5, 4, v0
  v_add_u32 v5, s{S_C3}, v5
  v_and_b32 v11, 31, v0
  v_lshrrev_b32 v12, 5, v0
  v_lshrrev_b32 v13, 4, v11
  v_lshlrev_b32 v13, 14, v13
  v_lshl_add_u32 v13, v12, 8, v13
  v_and_b32 v14, 15, v11
  v_lshl_add_u32 v7, v14, 4, v13
  v_lshlrev_b32 v13, 4, v14
  v_lshl_add_u32 v13, v12, 8, v13
  v_lshlrev_b32 v10, 4, v12
  v_add_u32 v10, 512, v10
  v_cmp_lt_u32 vcc, 15, v11
  s_nop 1
  v_cndmask_b32 v4, v13, v10, vcc
  s_lshl_b32 s{S_C1}, s{S_RB2}, 16
  s_add_u32 s{S_C1}, s{S_C1}, 0x200000
  s_mov_b32 s{S_C0}, 0x358637bd
  s_waitcnt lgkmcnt(0)""")
stamp(5)
A("  s_barrier")
OA = lambda b, c: 16 + (b * 2 + c) * 4
OF = lambda k, b: 40 + (k % 8) * 8 + 4 * b
def gemm_all(bars):
    q = []
    def rd_o(k):
        i, h = k >> 2, k & 3
        for b in range(2):
            A(f"  ds_read_b128 v[{OF(k,b)}:{OF(k,b)+3}], v{8+i} offset:{b*16384 + h*1024}"); q.append(("o", k))
    def rd_w(k):
        i, h = k >> 2, k & 3
        for c in range(2):
            d = WF(k, c)
            A(f"  ds_read_b64_tr_b16 v[{d}:{d+1}], v{i} offset:{h*4096 + 8*c}"); q.append(("w", k))
            A(f"  ds_read_b64_tr_b16 v[{d+2}:{d+3}], v{i} offset:{h*4096 + 8*c + 512}"); q.append(("w", k))
    if bars: A("  s_barrier"); stamp(9)
    for k in range(4): rd_o(k)
    for k in range(16):
        need = [j for j, t in enumerate(q) if t[1] <= k]
        if need:
            n = len(q) - 1 - need[-1]
            A(f"  s_waitcnt lgkmcnt({min(n, 15)})")
            del q[:need[-1] + 1]
        ms = []
        for b in range(2):
            for c in range(2):
                acc = OA(b, c); wf = WF(k, c); d = OF(k, b)
                cin = "0" if k == 0 else f"v[{acc}:{acc+3}]"
                ms.append(f"  v_mfma_f32_16x16x32_bf16 v[{acc}:{acc+3}], v[{wf}:{wf+3}], v[{d}:{d+3}], {cin}")
        A(ms[0]); A(ms[1])
        kn = k + 4 if not bars else None
        if bars:
            if k % 4 == 1 and k + 3 < 16:
                A("  s_barrier")
                for kk in range(k + 3, k + 5): rd_o(kk)
            elif k % 4 == 2 and k + 4 < 16:
                for kk in range(k + 4, k + 6): rd_o(kk)
        elif k + 4 < 16: rd_o(k + 4)
        A(ms[2]); A(ms[3])
        if k < 8: rd_w(k + 8)
A(f"  v_add_u32 v2, s{S_CH+2}, v6\n  v_add_u32 v3, s{S_CH+3}, v6")
for i in range(4): A(f"  v_add_u32 v{8+i}, s{S_Q+i}, v5")
A(f"  s_cmp_lg_u32 s{S_BR}, 0\n  s_cbranch_scc1 L_p2B")
if args.adyn:
    A("  s_barrier")
    stamp(9)
    gemm_all(False)
else: gemm_all(True)
A("  s_branch L_fin")
A("L_p2B:")
PQ = lambda i, rg: 40 + (i * 2 + rg) * 4
A(f"""  s_lshr_b32 s{S_A0}, s{S_WV}, 1
  s_lshl_b32 s{S_A0}, s{S_A0}, 10
  s_and_b32 s{S_T0}, s{S_WV}, 1
  s_lshl_b32 s{S_T0}, s{S_T0}, 9
  s_add_u32 s{S_A0}, s{S_A0}, s{S_T0}""")
for i in range(4):
    A(f"""  s_lshr_b32 s{S_T0}, s{S_Q+i}, 9
  s_add_u32 s{S_T0}, s{S_T0}, s{S_WV}
  s_mul_i32 s{S_T1}, s{S_T0}, {KVS}
  s_cmp_lt_u32 s{S_T0}, 11
  s_cselect_b32 s{S_T0}, 0, {KV1-KV0}
  s_add_u32 s{S_T1}, s{S_T1}, s{S_T0}
  s_add_u32 s{S_T1}, s{S_T1}, {KV0}
  v_add_u32 v{12+i}, s{S_T1}, v4""")
for i in range(4):
    if i == args.x2: A("  s_barrier")
    A(f"  s_add_u32 s{S_T2}, s{S_A0}, s{S_Q+i}\n  s_add_u32 s{S_T2}, s{S_T2}, s{S_C1}\n  s_add_u32 s{S_T3}, s{S_T2}, 32768")
    for rg in range(2):
        d = PQ(i, rg)
        A(f"  buffer_load_dwordx4 v[{d}:{d+3}], v7, s[{SRD_WS}:{SRD_WS+3}], s{S_T2 if rg == 0 else S_T3} offen {args.cl}")
    if i == args.pqw: A("  s_waitcnt vmcnt(0)")
A(f"  v_add_u32 v32, s{S_A0}, v7\n  v_add_u32 v33, {ORH}, v32")
if 'cyc' not in args.dbg: stamp(12)
A("  s_barrier")
if 'cyc' not in args.dbg: stamp(13)
for i in range(4): A(f"  ds_read_b128 v[{16+4*i}:{19+4*i}], v{12+i}")
def pm(u):
    i, rg = u >> 1, u & 1; d = 72 + 16 * rg
    A(f"  s_waitcnt vmcnt({7-u})")
    A(f"  v_mfma_f32_32x32x16_bf16 v[{d}:{d+15}], v[{16+4*i}:{19+4*i}], v[{PQ(i,rg)}:{PQ(i,rg)+3}], 0")
def pv(u):
    i, rg = u >> 1, u & 1; d = 72 + 16 * rg
    A(f"  v_add_f32 v{d+8}, s{S_C0}, v{d+8}\n  v_rcp_f32 v{d+8}, v{d+8}\n  v_add_u32 v{34+rg}, s{S_Q+i}, v{32+rg}")
    for r in range(0, 8, 2):
        A(f"  v_pk_mul_f32 v[{d+r}:{d+r+1}], v[{d+r}:{d+r+1}], v[{d+8}:{d+9}] op_sel_hi:[1,0]")
    o_ = PQ(i, rg)
    cvt(o_, d); cvt(o_ + 2, d + 4)
    A(f"  ds_write_b128 v{34+rg}, v[{o_}:{o_+3}]")
A("  s_waitcnt lgkmcnt(0)")
pm(0); pm(1)
A("  s_nop 10")
for u in range(8):
    pv(u)
    if u + 2 < 8: pm(u + 2)
    if u == 6: A("  s_nop 0")
A("  s_waitcnt lgkmcnt(0)")
stamp(14)
A("  s_barrier")
stamp(9)
gemm_all(False)
A("L_fin:\n  s_nop 7")
for b in range(2):
    d = 32 + 4 * b
    cvt(d, OA(b, 0)); cvt(d + 2, OA(b, 1))
    A(f"  s_add_u32 s{S_T0}, s{S_C2}, {b * 2048}")
    A(f"  buffer_store_dwordx4 v[{d}:{d+3}], v1, s[{SRD_OUT}:{SRD_OUT+3}], s{S_T0} offen {args.ost.replace('_', ' ')}")
stamp(10)
if NSTAMP:
    A("  s_waitcnt vmcnt(0)")
    stamp(11)
    A(f"  s_cmp_lg_u32 s{S_WV}, 0\n  s_cbranch_scc1 L_end")
    stamp_flush([0, 1, 2, 3, 4, 5, 9, 10, 11, 12, 13, 14], 8)
if args.diag:
    A(f"""  s_or_b32 s{S_T0}, s{S_J}, s{S_WV}
  s_cmp_lg_u32 s{S_T0}, 0
  s_cbranch_scc1 L_end
  s_waitcnt vmcnt(0)
  s_memrealtime s[96:97]
  s_waitcnt lgkmcnt(0)
  s_not_b32 s98, s98
  v_mov_b32 v8, s96
  v_mov_b32 v9, s98
  v_mov_b32 v10, 32
  s_mov_b64 exec, 1
  global_atomic_umax v10, v8, s[{S_DBG}:{S_DBG+1}]
  global_atomic_umax v10, v9, s[{S_DBG}:{S_DBG+1}] offset:4""")
A("L_end:\n  s_endpgm\nL_codeend:")
A(f""".section .rodata,"a"
.p2align 6
.amdhsa_kernel {NAME}
  .amdhsa_next_free_vgpr 168
  .amdhsa_next_free_sgpr 102
  .amdhsa_accum_offset 168
  .amdhsa_group_segment_fixed_size 0
  .amdhsa_kernarg_size 72
  .amdhsa_user_sgpr_count 2
  .amdhsa_user_sgpr_kernarg_segment_ptr 1
  .amdhsa_system_sgpr_workgroup_id_x 1
.end_amdhsa_kernel""")
print("\n".join(out))
```

```python
import sys, argparse, struct
ap = argparse.ArgumentParser()
ap.add_argument("--stamps", type=int, default=0)
ap.add_argument("--order", type=str, default="g4c")
ap.add_argument("--dbg", type=str, default="")
ap.add_argument("--touch", type=int, default=4)
ap.add_argument("--psleep", type=int, default=2)
ap.add_argument("--maxfl", type=int, default=20)
ap.add_argument("--codepf", type=int, default=1)
ap.add_argument("--D", type=int, default=5)
ap.add_argument("--D0", type=int, default=2)
ap.add_argument("--ramp", type=int, default=2)
ap.add_argument("--bpos", type=int, default=3)
ap.add_argument("--ldf", type=str, default="")
ap.add_argument("--ldn", type=int, default=6)
ap.add_argument("--atouch", type=int, default=0)
ap.add_argument("--kprio", type=int, default=1)
ap.add_argument("--ost", type=str, default="sc1")
ap.add_argument("--diag", type=int, default=0)
ap.add_argument("--tlb", type=int, default=1)
ap.add_argument("--ksleep", type=int, default=10)
ap.add_argument("--x2", type=int, default=0)
ap.add_argument("--adyn", type=int, default=0)
ap.add_argument("--pqw", type=int, default=9)
ap.add_argument("--kvown", type=int, default=0)
ap.add_argument("--kvrot", type=int, default=1)
ap.add_argument("--flip", type=int, default=1)
ap.add_argument("--cl", type=str, default="")
args = ap.parse_args()
NAME = "concat_heads__sliding_local_dilated__linear_attn_block__prompt_kernel"
out = []
def A(s): out.append(s)
def f2u(x): return struct.unpack("<I", struct.pack("<f", x))[0]
SPINMAX = "0x40000"
XSLOT = 18432; NXS = 4
WBASE = XSLOT * NXS
WSLOT = 12288; NWS = 7
LDS_TOTAL = WBASE + WSLOT * NWS
ORH = 98304
KVS = 544
KV0 = 32768; KV1 = 147456 - 11 * KVS
WS_KV = 4 << 20
KVH = 1152
WS_FLG = (4 << 20) + 65536
WS_CNT = WS_FLG + 256 * 128
STAMP_OFF = 128 << 20
NSTAMP = args.stamps
S_PTR = 4; S_WS = 20; S_FLG = 22; S_SEQ = 23
SRD_X = 24; SRD_W = 28; SRD_WO = 32; SRD_OUT = 36; SRD_WS = 40
S_DBG = 44
S_BR = 46; S_RB = 47; S_HG = 48; S_RB2 = 49; S_CB = 50; S_WV = 51; S_J = 52; S_XQ = 53
S_XB = 54; S_XH = 55; S_WB = 56
S_T0 = 57; S_T1 = 58; S_T2 = 59; S_T3 = 60; S_IT = 61
S_M0 = 62; S_M1 = 64
S_XO = 66; S_WO = 67
S_C0 = 68; S_C1 = 69; S_C2 = 70; S_C3 = 71
S_OB = 72; S_SPIN = 73; S_STB = 74
S_ST = 76
S_CH = 12
S_A0 = 16; S_A1 = 17; S_A2 = 18; S_A3 = 19
S_Q = 4
S_HH = 54; S_RH = 55; S_XH2 = 56

def sreg(i): return S_ST + 2 * (i if i < 12 else i - 6)
def stamp(i):
    if i < NSTAMP: A(f"  s_memrealtime s[{sreg(i)}:{sreg(i)+1}]")
def stamp_flush(idxs, vtmp):
    if not NSTAMP: return
    A(f"  s_waitcnt lgkmcnt(0)\n  s_mov_b64 exec, 1\n  v_mov_b32 v{vtmp+2}, 0")
    for i in idxs:
        if i < NSTAMP:
            A(f"  v_mov_b32 v{vtmp}, s{sreg(i)}\n  v_mov_b32 v{vtmp+1}, s{sreg(i)+1}")
            A(f"  global_store_dwordx2 v{vtmp+2}, v[{vtmp}:{vtmp+1}], s[{S_STB}:{S_STB+1}] offset:{8*i}\n  s_nop 1")
    A("  s_mov_b64 exec, -1")
def spin(lbl_out):
    return f"  s_add_u32 s{S_SPIN}, s{S_SPIN}, 1\n  s_cmp_gt_u32 s{S_SPIN}, {SPINMAX}\n  s_cbranch_scc1 {lbl_out}"
def cvt(d, a):
    A(f"  v_cvt_pk_bf16_f32 v{d}, v{a}, v{a+1}\n  v_cvt_pk_bf16_f32 v{d+1}, v{a+2}, v{a+3}")
def quarters():
    for i in range(4):
        A(f"  s_add_u32 s{S_T0}, s{S_CB}, {i}\n  s_and_b32 s{S_T0}, s{S_T0}, 3\n  s_lshl_b32 s{S_Q+i}, s{S_T0}, 12")

HDR = """; Fused kernel: out[:, :512] = sliding-window dilated attention block (A), out[:, 512:] = linear attention block (B).
; Generated by a hand-written generator script (work/gen14.py)."""
A(HDR)
A(f"; @launch grid=(256,1,1) block=(768,1,1) lds={LDS_TOTAL}")
A('.amdgcn_target "amdgcn-amd-amdhsa--gfx950"\n.text\n.globl %s\n.p2align 8\n.type %s,@function\n%s:' % (NAME, NAME, NAME))
A("  s_cmp_ge_u32 s2, 256\n  s_cbranch_scc1 L_end")
A(f"  s_load_dwordx16 s[{S_PTR}:{S_PTR+15}], s[0:1], 0\n  s_load_dwordx2 s[{S_WS}:{S_WS+1}], s[0:1], 64")
stamp(0)
if args.diag: A("  s_memrealtime s[98:99]")
A(f"""  v_lshrrev_b32 v1, 6, v0
  v_and_b32 v0, 63, v0
  v_readfirstlane_b32 s{S_WV}, v1
  s_and_b32 s{S_T0}, s2, 7
  s_lshr_b32 s{S_J}, s2, 3
  s_lshr_b32 s{S_BR}, s{S_T0}, 2
  s_xor_b32 s{S_BR}, s{S_BR}, {args.flip}
  s_and_b32 s{S_XQ}, s{S_T0}, 3
  s_lshr_b32 s{S_T1}, s{S_XQ}, 1
  s_lshl_b32 s{S_T1}, s{S_T1}, 3
  s_lshr_b32 s{S_T2}, s{S_J}, 2
  s_add_u32 s{S_RB}, s{S_T1}, s{S_T2}
  s_and_b32 s{S_T1}, s{S_XQ}, 1
  s_lshl_b32 s{S_T1}, s{S_T1}, 2
  s_and_b32 s{S_CB}, s{S_J}, 3
  s_add_u32 s{S_HG}, s{S_T1}, s{S_CB}
  s_lshl_b32 s{S_T1}, s{S_XQ}, 3
  s_add_u32 s{S_RB2}, s{S_T1}, s{S_T2}
  s_mov_b32 s{S_SPIN}, 0
  s_cmp_lt_u32 s{S_WV}, 8
  s_cbranch_scc1 L_comp""")

VX0 = 1; VX1 = 2; VW = 3; VXH = 4; VWO = 5; VTW = 9; VZ = 10
L_HL = S_C3; L_XL = S_C2; L_WL = S_C1
def seq_pack(l): return sum(x << (4 * i) for i, x in enumerate(l))
o = args.order
A(f"""  s_sub_u32 s{S_WV}, s{S_WV}, 8
  v_lshrrev_b32 v11, 3, v0
  v_and_b32 v12, 7, v0
  v_lshrrev_b32 v13, 4, v0
  v_xor_b32 v14, v12, v13
  v_lshlrev_b32 v14, 4, v14
  v_lshl_add_u32 v{VX0}, v11, 11, v14
  v_xor_b32 v{VX1}, 64, v{VX0}
  v_and_b32 v13, 1, v13
  v_lshlrev_b32 v13, 1, v13
  v_xor_b32 v14, v12, v13
  v_lshlrev_b32 v14, 4, v14
  v_mul_u32_u24 v{VW}, 3072, v11
  v_add_u32 v{VW}, v{VW}, v14
  s_and_b32 s{S_T0}, s{S_WV}, 1
  s_lshl_b32 s{S_T1}, s{S_T0}, 6
  v_xor_b32 v{VW}, s{S_T1}, v{VW}
  v_xor_b32 v{VXH}, s{S_T1}, v{VX0}
  s_lshl_b32 s{S_XB}, s{S_RB}, 17
  s_sub_u32 s{S_XH}, s{S_XB}, 16384
  s_max_i32 s{S_XH}, s{S_XH}, 0
  s_lshl_b32 s{L_HL}, s{S_T0}, 10
  s_add_u32 s{S_XH}, s{S_XH}, s{L_HL}
  s_lshl_b32 s{S_T1}, s{S_WV}, 15
  s_add_u32 s{S_XB}, s{S_XB}, s{S_T1}
  s_lshl_b32 s{L_XL}, s{S_WV}, 12
  s_add_u32 s{L_XL}, s{L_XL}, 2048
  s_lshl_b32 s{S_WB}, s{S_HG}, 7
  s_mul_i32 s{S_T1}, s{S_WV}, 24576
  s_add_u32 s{S_WB}, s{S_WB}, s{S_T1}
  s_lshl_b32 s{L_WL}, s{S_WV}, 10
  s_add_u32 s{L_WL}, s{L_WL}, {WBASE}""")
def order_code(o, reg):
    if o == "plain":
        A(f"  s_mov_b32 s{reg}, {hex(seq_pack(range(8)))}")
    elif o == "rot8":
        A(f"""  s_lshl_b32 s{S_T1}, s{S_CB}, 1
  s_add_u32 s{S_T1}, s{S_T1}, s{S_T2}
  s_and_b32 s{S_T1}, s{S_T1}, 7
  s_mul_i32 s{S_T1}, s{S_T1}, 0x11111111
  s_add_u32 s{reg}, s{S_T1}, {hex(seq_pack(range(8)))}
  s_and_b32 s{reg}, s{reg}, 0x77777777""")
    elif o.startswith("g2"):
        seqs = {"g2a": "a0 a1 b0 a2 b1 a3 b2 b3", "g2b": "a0 a1 a2 a3 b0 b1 b2 b3", "g2c": "a0 b0 a1 b1 a2 b2 a3 b3", "g2d": "a0 a1 a2 b0 b1 a3 b2 b3"}
        l = [2 * int(x[1]) + (x[0] == 'b') for x in seqs[o].split()]
        A(f"  s_add_u32 s{S_T1}, s{S_T2}, s{S_CB}\n  s_and_b32 s{S_T1}, s{S_T1}, 1\n  s_mul_i32 s{S_T1}, s{S_T1}, 0x11111111\n  s_xor_b32 s{reg}, s{S_T1}, {hex(seq_pack(l))}")
    elif o.startswith("g4"):
        seqs = {"g4a": "00 01 02 10 03 11 12 13", "g4b": "00 10 01 02 03 11 12 13", "g4c": "00 01 10 02 03 11 12 13", "g4d": "00 01 02 03 10 11 12 13"}
        l = [4 * int(x[0]) + int(x[1]) for x in seqs[o].split()]
        A(f"  s_add_u32 s{S_T1}, s{S_T2}, s{S_CB}\n  s_and_b32 s{S_T1}, s{S_T1}, 3\n  s_mul_i32 s{S_T1}, s{S_T1}, 0x11111111\n  s_xor_b32 s{reg}, s{S_T1}, {hex(seq_pack(l))}")
oa, ob = (o.split(",") + [o])[:2]
order_code(oa, S_SEQ)
if ob != oa:
    order_code(ob, S_IT)
    A(f"  s_cmp_eq_u32 s{S_BR}, 0\n  s_cselect_b32 s{S_SEQ}, s{S_SEQ}, s{S_IT}")
def build_srds():
    A(f"""  s_waitcnt lgkmcnt(0)
  s_cmp_eq_u32 s{S_BR}, 0
  s_cselect_b32 s{SRD_X}, s{S_PTR+0}, s{S_PTR+6}
  s_cselect_b32 s{SRD_X+1}, s{S_PTR+1}, s{S_PTR+7}
  s_cselect_b32 s{SRD_W}, s{S_PTR+2}, s{S_PTR+8}
  s_cselect_b32 s{SRD_W+1}, s{S_PTR+3}, s{S_PTR+9}
  s_mov_b32 s{SRD_X+2}, 0x200000
  s_mov_b32 s{SRD_X+3}, 0x20000
  s_mov_b32 s{SRD_W+2}, 0x180000
  s_mov_b32 s{SRD_W+3}, 0x20000""")
def build_srds2():
    A(f"""  s_cmp_eq_u32 s{S_BR}, 0
  s_cselect_b32 s{SRD_WO}, s{S_PTR+4}, s{S_PTR+10}
  s_cselect_b32 s{SRD_WO+1}, s{S_PTR+5}, s{S_PTR+11}
  s_mov_b32 s{SRD_WO+2}, 0x80000
  s_mov_b32 s{SRD_WO+3}, 0x20000
  s_mov_b32 s{SRD_OUT}, s{S_PTR+12}
  s_mov_b32 s{SRD_OUT+1}, s{S_PTR+13}
  s_mov_b32 s{SRD_OUT+2}, 0x400000
  s_mov_b32 s{SRD_OUT+3}, 0x20000
  s_mov_b32 s{SRD_WS}, s{S_WS}
  s_mov_b32 s{SRD_WS+1}, s{S_WS+1}
  s_mov_b32 s{SRD_WS+2}, 0x500000
  s_mov_b32 s{SRD_WS+3}, 0x20000
  s_mov_b32 s{S_DBG}, s{S_PTR+14}
  s_mov_b32 s{S_DBG+1}, s{S_PTR+15}""")
    if NSTAMP:
        A(f"""  s_add_u32 s{S_STB}, s{S_WS}, {STAMP_OFF}
  s_addc_u32 s{S_STB+1}, s{S_WS+1}, 0
  s_mul_i32 s{S_T1}, s2, {8*NSTAMP}
  s_add_u32 s{S_STB}, s{S_STB}, s{S_T1}
  s_addc_u32 s{S_STB+1}, s{S_STB+1}, 0""")
build_srds()
curg = [0]
def dma(vo, srd, sreg, imm, lreg, limm, extra=""):
    if "noload" in args.dbg and srd in (SRD_X, SRD_W): return
    if srd in (SRD_X, SRD_W) and args.ldf and curg[0] < args.ldn: extra = " " + args.ldf.replace("_", " ")
    A(f"  s_add_u32 s{S_T1}, s{sreg}, {imm}\n  s_add_u32 m0, s{lreg}, {limm}\n  s_waitcnt vmcnt({args.maxfl-1})\n  buffer_load_dwordx4 v{vo}, s[{srd}:{srd+3}], s{S_T1} offen{extra} lds")
D = args.D
def gsize(g): return 8 if g == 0 else (3 if g == 15 else (6 if g & 1 else 5))
def xops(t, which):
    xl = (t % NXS) * XSLOT
    A(f"  s_lshr_b32 s{S_T0}, s{S_SEQ}, {4*t}\n  s_and_b32 s{S_T0}, s{S_T0}, 7\n  s_lshl_b32 s{S_T0}, s{S_T0}, 7\n  s_add_u32 s{S_T3}, s{S_T0}, s{S_XB}")
    lst = [(p, m) for p in range(2) for m in range(2)]
    for i in which:
        if i < 4:
            p, m = lst[i]
            dma(VX0 if m == 0 else VX1, SRD_X, S_T3, (p + 16 * m) * 1024, L_XL, xl + p * 2048 + m * 1024)
        else:
            A(f"  s_add_u32 s{S_C0}, s{S_T0}, s{S_XH}")
            dma(VXH, SRD_X, S_C0, 0, L_HL, xl)
def issue_group(g):
    curg[0] = g
    t = g >> 1
    if g > 0 and g & 1 == 0: xops(t, [3, 4])
    A(f"""  s_lshr_b32 s{S_T0}, s{S_SEQ}, {4*t}
  s_and_b32 s{S_T0}, s{S_T0}, 7
  s_mul_i32 s{S_T2}, s{S_T0}, 196608
  s_add_u32 s{S_T2}, s{S_T2}, s{S_WB}""")
    wl = (g % NWS) * WSLOT
    for seg in range(3): dma(VW, SRD_W, S_T2, (g & 1) * 32 * 3072 + seg * 1024, L_WL, wl + seg * 4096)
    if g == 0: xops(0, [0, 1, 2, 3, 4])
    elif g & 1 and g < 15: xops(t + 1, [0, 1, 2])
    if g == 2 * args.touch + 1:
        A(f"""  v_lshlrev_b32 v{VTW}, 7, v0
  s_lshl_b32 s{S_T1}, s{S_J}, 14
  s_lshl_b32 s{S_T0}, s{S_WV}, 12
  s_add_u32 s{S_T1}, s{S_T1}, s{S_T0}
  s_mov_b32 exec_hi, 0
  buffer_load_dword v11, v{VTW}, s[{SRD_WO}:{SRD_WO+3}], s{S_T1} offen
  s_mov_b64 exec, -1""")
        return 1
    return 0
XC = lambda i: i * XSLOT + 2048
chunks = [[XC(0), 98304], [114688, XC(1)], [131072, XC(2)], [XC(3), WBASE]]
freeat = [11, 12, 14, 16]
def chunk_sel(bitreg):
    A(f"  s_cmp_eq_u32 s{bitreg}, 0")
    for i in range(4): A(f"  s_mov_b32 s{S_CH+i}, {chunks[i][1]}\n  s_cselect_b32 s{S_CH+i}, {chunks[i][0]}, s{S_CH+i}")
def lsetup():
    build_srds2()
    A(f"  s_and_b32 s{S_T2}, s{S_WV}, 1")
    chunk_sel(S_T2)
    quarters()
    A(f"""  v_lshrrev_b32 v11, 3, v0
  v_and_b32 v12, 7, v0
  v_bfe_u32 v13, v0, 4, 1
  v_lshlrev_b32 v13, 2, v13
  v_xor_b32 v12, v12, v13
  v_lshlrev_b32 v12, 4, v12
  v_lshl_add_u32 v{VWO}, v11, 10, v12
  s_lshl_b32 s{S_A0}, s{S_CB}, 8
  s_lshl_b32 s{S_T0}, s{S_T2}, 7
  s_add_u32 s{S_A0}, s{S_A0}, s{S_T0}
  s_lshr_b32 s{S_T0}, s{S_WV}, 1
  s_lshl_b32 s{S_T1}, s{S_T0}, 16
  s_add_u32 s{S_A0}, s{S_A0}, s{S_T1}
  s_lshl_b32 s{S_T0}, s{S_T0}, 13
  s_add_u32 s{S_CH}, s{S_CH}, s{S_T0}
  s_add_u32 s{S_CH+1}, s{S_CH+1}, s{S_T0}
  s_add_u32 s{S_CH+2}, s{S_CH+2}, s{S_T0}
  s_add_u32 s{S_CH+3}, s{S_CH+3}, s{S_T0}
  s_lshl_b32 s{S_FLG}, s{S_BR}, 7
  s_lshl_b32 s{S_T1}, s{S_RB}, 3
  s_add_u32 s{S_FLG}, s{S_FLG}, s{S_T1}
  s_add_u32 s{S_FLG}, s{S_FLG}, s{S_HG}
  s_lshl_b32 s{S_FLG}, s{S_FLG}, 7
  s_add_u32 s{S_FLG}, s{S_FLG}, {WS_FLG}
  v_mov_b32 v8, 1
  v_mov_b32 v15, 0
  v_and_b32 v{VZ}, 7, v0
  v_lshlrev_b32 v{VZ}, 2, v{VZ}
  v_lshlrev_b32 v6, 7, v0
  v_lshlrev_b32 v7, 4, v0""")
def wo_group(i):
    A(f"  s_lshl_b32 s{S_T0}, s{S_Q+i}, 5\n  s_add_u32 s{S_T2}, s{S_T0}, s{S_A0}")
    for k in range(8): dma(VWO, SRD_WO, S_T2, k * 8192, S_CH + i, k * 1024)
sizes = []
def outstanding_after(kid):
    idx = [i for i, x in enumerate(sizes) if (x[0], x[1]) == kid][0]
    return sum(x[2] for x in sizes[idx + 1:])
def do_group(g):
    e = issue_group(g); sizes.append(("g", g, gsize(g))); sizes.append(("t", g, e))
if args.atouch:
    A(f"""  s_cmp_lg_u32 s{S_BR}, 0
  s_cbranch_scc1 L_notch
  v_and_b32 v11, 31, v0
  v_lshlrev_b32 v11, 10, v11
  v_lshrrev_b32 v12, 5, v0
  v_lshl_add_u32 v11, v12, 7, v11
  s_lshr_b32 s{S_T0}, s{S_XQ}, 1
  s_lshl_b32 s{S_T0}, s{S_T0}, 20
  s_lshl_b32 s{S_T1}, s{S_J}, 15
  s_add_u32 s{S_T0}, s{S_T0}, s{S_T1}
  s_lshl_b32 s{S_T1}, s{S_WV}, 8
  s_add_u32 s{S_T0}, s{S_T0}, s{S_T1}
  v_lshrrev_b32 v12, 2, v0
  v_mul_u32_u24 v12, 3072, v12
  v_and_b32 v13, 3, v0
  v_lshl_add_u32 v12, v13, 7, v12
  s_mul_i32 s{S_T1}, s{S_J}, {16*3072}
  s_and_b32 s{S_T2}, s{S_XQ}, 1
  s_lshl_b32 s{S_T2}, s{S_T2}, 9
  s_add_u32 s{S_T1}, s{S_T1}, s{S_T2}
  s_min_u32 s{S_T2}, s{S_WV}, 2
  s_lshl_b32 s{S_T2}, s{S_T2}, 10
  s_add_u32 s{S_T1}, s{S_T1}, s{S_T2}""")
    R = args.atouch
    masks = {1: [(-1, -1)], 2: [(-1, 0), (0, -1)], 3: [(0xffff, 0), (0xffff0000, 0), (0, -1)], 4: [(0xffff, 0), (0xffff0000, 0), (0, 0xffff), (0, 0xffff0000)]}[R]
    for lo, hi in masks:
        A(f"""  s_mov_b32 exec_lo, {hex(lo & 0xffffffff)}
  s_mov_b32 exec_hi, {hex(hi & 0xffffffff)}
  buffer_load_dword v13, v11, s[{SRD_X}:{SRD_X+3}], s{S_T0} offen
  buffer_load_dword v14, v12, s[{SRD_W}:{SRD_W+3}], s{S_T1} offen
  s_waitcnt vmcnt(0)""")
    A("  s_mov_b64 exec, -1\nL_notch:")
for g in range(args.D0): do_group(g)
lsetup()
nxt = args.D0
for bq in range(17):
    if bq < 16: A(f"  s_waitcnt vmcnt({min(63, outstanding_after(('g', bq)))})")
    A("  s_barrier")
    while nxt < 16 and nxt <= bq + D - 1 and nxt <= bq + 5 and (nxt <= bq + args.D0 or bq >= args.ramp):
        do_group(nxt); nxt += 1
    for i in range(4):
        if freeat[i] == bq: wo_group(i); sizes.append(("w", i, 8))
stamp(6)
def init_check(tag, v, vz):
    A(f"""  s_mov_b32 s{S_T1}, 0x01010101
L_ic{tag}:
  s_waitcnt vmcnt(0)
  v_cmp_ne_u32 vcc, s{S_T1}, v{v}
  s_nop 3
  s_cmp_eq_u64 vcc, 0
  s_cbranch_scc1 L_id{tag}
{spin(f"L_id{tag}")}
  s_sleep 4
  global_load_dword v{v}, v{vz}, s[{S_DBG}:{S_DBG+1}] sc1
  s_branch L_ic{tag}
L_id{tag}:""")
def poll(tag, voff, sreg, val=1, slp=None):
    slp = args.psleep if slp is None else slp
    A(f"""L_pl{tag}:
  buffer_load_dword v16, v{voff}, s[{SRD_WS}:{SRD_WS+3}], s{sreg} offen sc1
  s_waitcnt vmcnt(0)
  v_cmp_ne_u32 vcc, {val}, v16
  s_and_b64 exec, exec, vcc
  s_cbranch_execz L_po{tag}
{spin(f"L_po{tag}")}
  s_sleep {slp}
  s_branch L_pl{tag}
L_po{tag}:
  s_mov_b64 exec, -1""")
A("  s_barrier")
A(f"""  s_cmp_lg_u32 s{S_WV}, 0
  s_cbranch_scc1 L_nofl
  s_mov_b64 exec, 1
  buffer_store_dword v8, v15, s[{SRD_WS}:{SRD_WS+3}], s{S_FLG} offen sc1
  s_mov_b64 exec, -1
  s_waitcnt vmcnt({outstanding_after(('w', 1)) + 1})
  s_branch L_fl2
L_nofl:
  s_waitcnt vmcnt({outstanding_after(('w', 1))})
L_fl2:
  s_barrier""")
stamp(7)
if args.adyn: A(f"  s_cmp_eq_u32 s{S_BR}, 0\n  s_cbranch_scc1 L_adyn")
A(f"""  v_lshrrev_b32 v11, 2, v0
  v_lshlrev_b32 v11, 4, v11
  v_bfe_u32 v12, v0, 1, 1
  v_lshl_add_u32 v11, v12, 8, v11
  v_and_b32 v12, 1, v0
  v_lshl_add_u32 v11, v12, 3, v11
  s_lshl_b32 s{S_A0}, s{S_WV}, 3
  s_mul_i32 s{S_A1}, s{S_A0}, {KVH}
  s_add_u32 s{S_A1}, s{S_A1}, {WS_KV}
  v_bfe_u32 v12, v0, 2, 3
  v_mul_u32_u24 v13, {KVH}, v12
  v_and_b32 v14, 3, v0
  v_lshl_add_u32 v13, v14, 4, v13
  v_add_u32 v13, 1024, v13
  v_add_u32 v12, s{S_A0}, v12              ; head
  v_mul_u32_u24 v20, {KVS}, v12
  v_lshl_add_u32 v20, v14, 3, v20
  v_add_u32 v20, {KV0 + 512}, v20
  v_add_u32 v21, {KV1 - KV0}, v20
  v_cmp_lt_u32 vcc, 10, v12
  s_nop 1
  v_cndmask_b32 v20, v20, v21, vcc""")
A(f"  s_lshl_b32 s{S_A2}, s{S_WV}, 10\n  s_add_u32 s{S_A2}, s{S_A2}, {WS_CNT}")
for h in range(8):
    A(f"""  s_add_u32 s{S_T0}, s{S_J}, {h}
  s_and_b32 s{S_T0}, s{S_T0}, {7 if args.kvrot else 0}
  s_add_u32 s{S_T0}, s{S_T0}, {0 if args.kvrot else h}
  s_mul_i32 s{78+h}, s{S_T0}, {KVH}
  s_add_u32 s{78+h}, s{78+h}, s{S_A1}
  s_add_u32 s{S_T0}, s{S_T0}, s{S_A0}
  s_mul_i32 s{S_T1}, s{S_T0}, {KVS}
  s_cmp_lt_u32 s{S_T0}, 11
  s_cselect_b32 s{S_T0}, 0, {KV1-KV0}
  s_add_u32 s{S_T1}, s{S_T1}, s{S_T0}
  s_add_u32 s{S_T1}, s{S_T1}, {KV0}
  v_add_u32 v{60+h}, s{S_T1}, v11""")
A(f"""  s_cmp_lg_u32 s{S_WV}, 0
  s_cbranch_scc1 L_await
  s_lshr_b32 s{S_T1}, s{S_RB2}, 1
  s_lshl_b32 s{S_T1}, s{S_T1}, 10
  s_lshl_b32 s{S_T0}, s{S_BR}, 14
  s_add_u32 s{S_T1}, s{S_T1}, s{S_T0}
  s_add_u32 s{S_T1}, s{S_T1}, {WS_FLG}
  s_mov_b64 exec, 0xff""")
poll("R", 6, S_T1)
A(f"""L_await:
  s_lshl_b32 s{S_T3}, s{S_RB2}, 16
  s_lshl_b32 s{S_T0}, s{S_WV}, 14
  s_add_u32 s{S_T3}, s{S_T3}, s{S_T0}
  s_and_b32 s{S_T2}, s{S_WV}, 1
  s_lshl_b32 s{S_T2}, s{S_T2}, 14
  s_lshr_b32 s{S_T0}, s{S_WV}, 1
  s_mul_i32 s{S_T0}, s{S_T0}, {ORH}
  s_add_u32 s{S_T2}, s{S_T2}, s{S_T0}
  s_waitcnt vmcnt(0)
  s_barrier""")
def lfin():
    if NSTAMP:
        A(f"  s_cmp_lg_u32 s{S_WV}, 0\n  s_cbranch_scc1 L_end")
        stamp_flush([6, 7, 8], 12)
    A("  s_endpgm")
A(f"  s_cmp_eq_u32 s{S_BR}, 0\n  s_cbranch_scc1 L_oload")
A("  s_mov_b64 exec, 0xff")
poll("K", 6, S_A2, 16, args.ksleep)
stamp(8)
if args.kvown:
    A(f"""  s_mul_i32 s{S_T1}, s{S_J}, {KVH}
  s_add_u32 s{S_T1}, s{S_T1}, {WS_KV}
  s_mov_b64 exec, 0x1ff
  buffer_load_dword v16, v6, s[{SRD_WS}:{SRD_WS+3}], s{S_T1} offen
  s_mov_b64 exec, -1
  s_waitcnt vmcnt(0)""")
for h in range(8):
    r = 24 + h * 4
    A(f"  buffer_load_dwordx4 v[{r}:{r+3}], v7, s[{SRD_WS}:{SRD_WS+3}], s{78+h} offen {args.cl}")
A(f"  buffer_load_dwordx4 v[56:59], v13, s[{SRD_WS}:{SRD_WS+3}], s{S_A1} offen {args.cl}")
if args.x2 < 4: A("  s_barrier")
for h in range(8):
    r = 24 + h * 4
    A(f"  s_waitcnt vmcnt({8-h})")
    cvt(r, r)
    A(f"  ds_write_b64 v{60+h}, v[{r}:{r+1}]")
A("  s_waitcnt vmcnt(0)")
if "lst" in args.dbg: stamp(6)
cvt(56, 56)
A("  ds_write_b64 v20, v[56:57]\n  s_waitcnt lgkmcnt(0)")
if "lst" in args.dbg: stamp(7)
A("  s_barrier")
if NSTAMP: A("  s_barrier")
lfin()
if args.adyn:
    A(f"""L_adyn:
  s_lshr_b32 s{S_A2}, s{S_RB2}, 1
  s_lshl_b32 s{S_A2}, s{S_A2}, 10
  s_lshl_b32 s{S_T0}, s{S_WV}, 8
  s_add_u32 s{S_A2}, s{S_A2}, s{S_T0}
  s_add_u32 s{S_A2}, s{S_A2}, {WS_FLG}
  s_lshl_b32 s{S_A1}, s{S_WV}, 12
  s_lshl_b32 s{S_A0}, s{S_RB2}, 16
  s_add_u32 s{S_A0}, s{S_A0}, s{S_A1}
  s_barrier""")
    for g in range(2):
        A("  s_mov_b64 exec, 1")
        poll(f"A{g}", 15, S_A2)
        if g == 1: stamp(8)
        for b in range(4):
            for h in range(2):
                lb = (b >> 1) * ORH + (b & 1) * 16384 + g * 2048 + h * 1024
                A(f"  s_add_u32 s{S_T1}, s{S_A0}, {b*16384 + g*2048 + h*1024}\n  s_add_u32 m0, s{S_A1}, {lb}\n  s_nop 0\n  buffer_load_dwordx4 v7, s[{SRD_WS}:{SRD_WS+3}], s{S_T1} offen {args.cl} lds")
        if g == 0: A(f"  s_add_u32 s{S_A2}, s{S_A2}, 128")
    A("  s_waitcnt vmcnt(0)\n  s_barrier")
    lfin()
A("L_oload:")
stamp(8)
def oloads(i):
    A(f"  s_add_u32 s{S_A0}, s{S_T3}, s{S_Q+i}\n  s_add_u32 s{S_A1}, s{S_T2}, s{S_Q+i}")
    for h in range(4):
        A(f"  s_add_u32 s{S_T1}, s{S_A0}, {h*1024}\n  s_add_u32 m0, s{S_A1}, {h*1024}\n  s_nop 0\n  buffer_load_dwordx4 v7, s[{SRD_WS}:{SRD_WS+3}], s{S_T1} offen {args.cl} lds")
oloads(0)
A("  s_waitcnt vmcnt(0)")
oloads(1)
A("  s_barrier")
oloads(2); oloads(3)
for i in (1, 2, 3): A(f"  s_waitcnt vmcnt({4*(3-i)})\n  s_barrier")
lfin()

V_XA = 1; V_WA = 2; V_XA1 = 3; V_ONE = 4; V_OA = 5; V_X0C = 6; V_X1C = 13; V_WC = 14; V_IFA = 15
V_IF = 160; V_DUM = 161; V_NC = 162; V_ONESB = 164
A("L_comp:")
A(f"  s_and_b32 s{S_HH}, s{S_WV}, 3\n  s_lshr_b32 s{S_RH}, s{S_WV}, 2")
if args.codepf:
    A(f"""  s_getpc_b64 s[{S_M0}:{S_M0+1}]
L_pcref:
  s_sub_u32 s{S_M0}, s{S_M0}, L_pcref-{NAME}
  s_subb_u32 s{S_M0+1}, s{S_M0+1}, 0
  s_lshl_b32 s{S_T0}, s{S_J}, 3
  s_add_u32 s{S_T0}, s{S_T0}, s{S_WV}
  s_lshl_b32 s{S_T0}, s{S_T0}, 7
  s_min_u32 s{S_T0}, s{S_T0}, (L_codeend-{NAME}-4)&0xfffffffc
  v_mov_b32 v7, s{S_T0}
  s_mov_b64 exec, 1
  global_load_dword v{V_DUM}, v7, s[{S_M0}:{S_M0+1}]
  s_mov_b64 exec, -1""")
A(f"""  v_and_b32 v7, 15, v0
  v_lshrrev_b32 v8, 4, v0
  v_lshrrev_b32 v9, 1, v7
  v_xor_b32 v9, v9, v8
  v_lshlrev_b32 v9, 4, v9
  v_lshl_add_u32 v{V_XA}, v7, 7, v9
  v_lshrrev_b32 v9, 2, v7
  v_lshl_add_u32 v9, v8, 3, v9
  v_lshrrev_b32 v10, 1, v9
  v_and_b32 v10, 1, v10
  v_and_b32 v11, 1, v8
  v_lshl_or_b32 v10, v11, 1, v10
  v_xor_b32 v10, s{S_HH}, v10
  v_lshlrev_b32 v10, 5, v10
  v_lshl_add_u32 v10, v9, 7, v10
  v_and_b32 v11, 3, v7
  v_lshl_add_u32 v{V_WA}, v11, 3, v10
  v_add_u32 v{V_WA}, {WBASE}, v{V_WA}
  v_mov_b32 v{V_ONE}, 1
  s_lshl_b32 s{S_T0}, s{S_HG}, 2
  s_add_u32 s{S_T0}, s{S_T0}, s{S_HH}
  s_lshl_b32 s{S_OB}, s{S_T0}, 9
  s_lshl_b32 s{S_T1}, s{S_RB}, 17
  s_add_u32 s{S_OB}, s{S_OB}, s{S_T1}
  s_lshl_b32 s{S_T1}, s{S_BR}, 21
  s_add_u32 s{S_OB}, s{S_OB}, s{S_T1}
  s_mul_i32 s{S_C3}, s{S_T0}, {KVH}
  s_add_u32 s{S_C3}, s{S_C3}, {WS_KV}
  s_lshl_b32 s{S_XH2}, s{S_T0}, 7
  s_add_u32 s{S_XH2}, s{S_XH2}, {WS_CNT}
  s_lshl_b32 s{S_FLG}, s{S_BR}, 7
  s_lshl_b32 s{S_T1}, s{S_RB}, 3
  s_add_u32 s{S_FLG}, s{S_FLG}, s{S_T1}
  s_add_u32 s{S_FLG}, s{S_FLG}, s{S_HG}
  s_lshl_b32 s{S_FLG}, s{S_FLG}, 7
  s_add_u32 s{S_FLG}, s{S_FLG}, {WS_FLG}
  s_lshl_b32 s{S_T1}, s{S_WV}, 2
  s_add_u32 s{S_FLG}, s{S_FLG}, s{S_T1}
  v_and_b32 v9, 1, v8
  v_lshlrev_b32 v9, 14, v9
  v_lshrrev_b32 v10, 1, v8
  v_lshl_add_u32 v9, v10, 8, v9
  v_lshl_add_u32 v{V_OA}, v7, 4, v9
  v_and_b32 v{V_IFA}, 7, v0
  v_lshlrev_b32 v{V_IFA}, 2, v{V_IFA}
  s_mov_b32 s{S_IT}, 0
  s_mov_b32 s{S_XO}, 0
  s_mov_b32 s{S_WO}, 0
  v_mov_b32 v{V_WC}, v{V_WA}
  s_waitcnt lgkmcnt(0)""")
build_srds2()
if args.tlb:
    A(f"""  s_cmp_lg_u32 s{S_WV}, 7
  s_cbranch_scc1 L_notlb
  v_mov_b32 v9, 0
  s_lshl_b32 s{S_T0}, s{S_RB2}, 17
  s_lshl_b32 s{S_T1}, s{S_RB2}, 16
  s_lshl_b32 s{S_T2}, s{S_BR}, 21
  s_add_u32 s{S_T1}, s{S_T1}, s{S_T2}
  s_mov_b64 exec, 1
  buffer_load_dword v{V_DUM}, v9, s[{SRD_WS}:{SRD_WS+3}], s{S_OB} offen sc1
  buffer_load_dword v{V_DUM}, v9, s[{SRD_WS}:{SRD_WS+3}], s{S_FLG} offen sc1
  buffer_load_dword v{V_DUM}, v9, s[{SRD_OUT}:{SRD_OUT+3}], s{S_T0} offen sc1
  buffer_load_dword v{V_DUM}, v9, s[{SRD_WO}:{SRD_WO+3}], 0 offen
  s_mov_b64 exec, -1
L_notlb:""")
A(f"  s_cmp_eq_u32 s{S_BR}, 0\n  s_cbranch_scc0 L_compB")

wadv_c = [f"  s_add_u32 s{S_WO}, s{S_WO}, {WSLOT}", f"  s_cmp_eq_u32 s{S_WO}, {WSLOT*NWS}", f"  s_cselect_b32 s{S_WO}, 0, s{S_WO}", f"  v_add_u32 v{V_WC}, s{S_WO}, v{V_WA}"]
xadv_c = [f"  s_add_u32 s{S_XO}, s{S_XO}, {XSLOT}", f"  s_cmp_eq_u32 s{S_XO}, {XSLOT*NXS}", f"  s_cselect_b32 s{S_XO}, 0, s{S_XO}",
          f"  v_add_u32 v{V_X0C}, s{S_XO}, v{V_XA}", f"  v_add_u32 v{V_X1C}, s{S_XO}, v{V_XA1}"]
def mainloop(tag, reads, mfmas, extra_adv, tail, bpos):
    A("  s_barrier")
    stamp(1)
    if "cyc" in args.dbg: A(f"  s_memtime s[{sreg(12)}:{sreg(12)+1}]")
    for x in reads(0, 0): A(x)
    for kk in range(2):
        A(f"L_s{kk}{tag}:\n  s_waitcnt lgkmcnt(0)")
        m = mfmas(kk)
        adv = list(wadv_c) + (xadv_c + extra_adv if kk == 1 else [])
        r = reads(1 - kk, 1 - kk)
        if "noreads" in args.dbg: r = []
        ai = 0
        for i in range(bpos):
            A(m[i])
            want = min(len(adv), ((i + 1) * len(adv) + bpos - 2) // max(1, bpos - 1))
            while ai < want: A(adv[ai]); ai += 1
        A("  s_barrier")
        ri = 0; nm = len(m) - bpos
        for i, x in enumerate(m[bpos:]):
            want = min(len(r), ((i + 1) * len(r) + nm - 3) // max(1, nm - 2))
            while ri < want: A(r[ri]); ri += 1
            A(x)
        while ri < len(r): A(r[ri]); ri += 1
    tail()
    A(f"  s_add_u32 s{S_IT}, s{S_IT}, 1\n  s_cmp_lt_u32 s{S_IT}, 8\n  s_cbranch_scc1 L_s0{tag}")
    A(f"  global_load_dword v{V_IF}, v{V_IFA}, s[{S_DBG}:{S_DBG+1}] sc1")
    stamp(2)
    if "cyc" in args.dbg: A(f"  s_memtime s[{sreg(13)}:{sreg(13)+1}]")
    A("  s_waitcnt lgkmcnt(0)")
def trr(d, seg): return [f"  ds_read_b64_tr_b16 v[{d}:{d+1}], v{V_WC} offset:{seg*4096}", f"  ds_read_b64_tr_b16 v[{d+2}:{d+3}], v{V_WC} offset:{seg*4096 + 512}"]
def mm(acc, a, b): return f"  v_mfma_f32_16x16x32_bf16 v[{acc}:{acc+3}], v[{a}:{a+3}], v[{b}:{b+3}], v[{acc}:{acc+3}]"
def store_frags(src, nt, dst):
    for t in range(nt):
        d = dst + 4 * t
        cvt(d, src(2 * t)); cvt(d + 2, src(2 * t + 1))
    A("  s_nop 1")
    for t in range(nt):
        d = dst + 4 * t
        A(f"  v_permlane16_swap_b32 v{d}, v{d+2}\n  v_permlane16_swap_b32 v{d+1}, v{d+3}")
    for t in range(nt):
        d = dst + 4 * t
        A(f"  s_add_u32 s{S_T0}, s{S_OB}, {t*32768}")
        A(f"  buffer_store_dwordx4 v[{d}:{d+3}], v{V_OA}, s[{SRD_WS}:{SRD_WS+3}], s{S_T0} offen sc1")

ACC = 16
AQ = lambda b: ACC + 4 * b
AK = lambda b: ACC + 16 + 4 * b
AV = lambda b: ACC + 36 + 4 * b
FX = lambda buf, b: 72 + 32 * buf + 4 * b
FW = lambda buf, seg: 72 + 32 * buf + 20 + 4 * seg
V_HA = 136; V_H0C = 137; V_H1C = 138
MK = 140; MK0 = 144; V_HI = 148; V_PV = 149; V_ONES = 150
A(f"""  v_mov_b32 v{V_HA}, v{V_XA}
  s_cmp_eq_u32 s{S_RH}, 0
  s_cbranch_scc1 L_h0ok
  v_or_b32 v10, 8, v7
  v_lshrrev_b32 v9, 1, v10
  v_xor_b32 v9, v9, v8
  v_lshlrev_b32 v9, 4, v9
  v_lshl_add_u32 v9, v10, 7, v9
  v_lshrrev_b32 v10, 3, v7
  v_lshlrev_b32 v10, 11, v10
  v_add_u32 v9, v9, v10
  v_add_u32 v{V_HA}, {2048*3}, v9
L_h0ok:
  s_lshl_b32 s{S_T0}, s{S_RH}, 13
  s_add_u32 s{S_T0}, s{S_T0}, 2048
  v_add_u32 v{V_XA}, s{S_T0}, v{V_XA}
  v_xor_b32 v{V_XA1}, 64, v{V_XA}
  v_mov_b32 v{V_X0C}, v{V_XA}
  v_mov_b32 v{V_X1C}, v{V_XA1}
  v_mov_b32 v{V_H0C}, v{V_HA}
  v_xor_b32 v{V_H1C}, 64, v{V_HA}
  s_lshl_b32 s{S_T1}, s{S_RH}, 16
  s_add_u32 s{S_OB}, s{S_OB}, s{S_T1}""")
for r in range(ACC, ACC + 56): A(f"  v_mov_b32 v{r}, 0")
A(f"""  v_lshlrev_b32 v9, 2, v8
  v_sub_u32 v9, v7, v9
  s_mov_b32 s{S_C0}, 0xf149f2ca
  v_mov_b32 v10, s{S_C0}""")
for r in range(4):
    A(f"""  v_subrev_u32 v11, {r}, v9
  v_and_b32 v12, 15, v11
  v_cmp_gt_u32 vcc, 8, v12
  s_nop 1
  v_cndmask_b32 v{MK+r}, v10, 0, vcc
  v_cmp_gt_u32 vcc, 8, v11
  s_nop 1
  v_cndmask_b32 v{MK0+r}, v10, 0, vcc""")
A(f"""  s_or_b32 s{S_T0}, s{S_RB}, s{S_RH}
  s_cmp_eq_u32 s{S_T0}, 0
  s_cbranch_scc1 L_m0
  v_mov_b32 v{MK0}, v{MK}
  v_mov_b32 v{MK0+1}, v{MK+1}
  v_mov_b32 v{MK0+2}, v{MK+2}
  v_mov_b32 v{MK0+3}, v{MK+3}
L_m0:
  v_cmp_lt_u32 s[{S_M0}:{S_M0+1}], 7, v7
  v_cmp_lt_u32 vcc, 1, v8
  s_nop 1
  v_cndmask_b32 v{V_HI}, 0, -1, s[{S_M0}:{S_M0+1}]
  s_andn2_b64 s[{S_M1}:{S_M1+1}], vcc, s[{S_M0}:{S_M0+1}]
  v_mov_b32 v{V_ONES}, 0x3f803f80
  v_mov_b32 v{V_ONES+1}, 0x3f803f80
  v_cndmask_b32 v{V_PV}, 0, -1, s[{S_M1}:{S_M1+1}]
  v_mov_b32 v{V_ONES+2}, 0x3f803f80
  v_mov_b32 v{V_ONES+3}, 0x3f803f80
  s_mov_b32 s{S_C0}, 0x3eb8aa3b""")
def readsA(buf, kk):
    va = V_X0C if kk == 0 else V_X1C
    r = trr(FW(buf, 1), 1) + trr(FW(buf, 2), 2) + trr(FW(buf, 0), 0)
    for b in range(4): r.append(f"  ds_read_b128 v[{FX(buf,b)}:{FX(buf,b)+3}], v{va} offset:{b*2048}")
    r.append(f"  ds_read_b128 v[{FX(buf,4)}:{FX(buf,4)+3}], v{V_H0C if kk == 0 else V_H1C}")
    return r
def mfmasA(buf):
    m = []
    for b in range(4):
        x = FX(buf, b)
        m += [mm(AK(b), FW(buf, 1), x), mm(AV(b), x, FW(buf, 2)), mm(AQ(b), FW(buf, 0), x)]
    x = FX(buf, 4)
    return m + [mm(AK(4), FW(buf, 1), x), mm(AV(4), x, FW(buf, 2))]
mainloop("A", readsA, mfmasA, [f"  v_add_u32 v{V_H0C}, s{S_XO}, v{V_HA}", f"  v_xor_b32 v{V_H1C}, 64, v{V_H0C}"], lambda: None, args.bpos)
K4 = lambda b: 72 + 4 * b
Q4 = lambda b: 88 + 4 * b
VP = lambda p, i: 104 + 6 * p + 2 * i
KH = 116; KH2 = 118; TT = 120
for b in range(4):
    cvt(K4(b), AK(b))
    cvt(VP(b & 1, (b >> 1) + 1), AV(b))
    tt = TT + 2 * (b & 1)
    cvt(tt, AQ(b))
    A(f"  v_and_b32 v{Q4(b)}, v{tt}, v{V_HI}\n  v_and_b32 v{Q4(b)+1}, v{tt+1}, v{V_HI}")
    A(f"  v_xor_b32 v{Q4(b)+2}, v{tt}, v{Q4(b)}\n  v_xor_b32 v{Q4(b)+3}, v{tt+1}, v{Q4(b)+1}")
cvt(KH, AK(4))
cvt(VP(1, 0), AV(4))
A(f"""  s_nop 1
  v_mov_b32_dpp v{KH2}, v{KH} row_ror:8 row_mask:0xf bank_mask:0xf
  v_mov_b32_dpp v{KH2+1}, v{KH+1} row_ror:8 row_mask:0xf bank_mask:0xf
  v_mov_b32 v{VP(0,0)}, v{VP(1,0)}
  v_mov_b32 v{VP(0,0)+1}, v{VP(1,0)+1}
  v_mov_b32 v{TT}, v{VP(1,0)}
  v_mov_b32 v{TT+1}, v{VP(1,0)+1}
  s_nop 1
  v_permlane32_swap_b32 v{VP(0,0)}, v{TT}
  v_permlane32_swap_b32 v{VP(0,0)+1}, v{TT+1}""")
for b in range(4):
    t, p = b >> 1, b & 1
    prev = (KH2 if p == 0 else KH) if t == 0 else K4(p)
    A(f"  v_cndmask_b32 v{K4(b)+2}, v{K4(b)}, v{prev}, s[{S_M0}:{S_M0+1}]\n  v_cndmask_b32 v{K4(b)+3}, v{K4(b)+1}, v{prev+1}, s[{S_M0}:{S_M0+1}]")
A("  s_nop 1")
SS = lambda b: ACC + 4 * b
for b in range(4):
    mk = MK0 if b < 2 else MK
    A(f"  v_mfma_f32_16x16x32_bf16 v[{SS(b)}:{SS(b)+3}], v[{K4(b)}:{K4(b)+3}], v[{Q4(b)}:{Q4(b)+3}], v[{mk}:{mk+3}]")
MX = lambda b: 32 + b
MT = 36
A("  s_nop 7")
for b in range(4): A(f"  v_max3_f32 v{MX(b)}, v{SS(b)}, v{SS(b)+1}, v{SS(b)+2}")
for b in range(4): A(f"  v_max_f32 v{MX(b)}, v{MX(b)}, v{SS(b)+3}")
a, b_, c, d = [MX(i) for i in range(4)]
A(f"""  s_nop 0
  v_permlane32_swap_b32 v{a}, v{b_}
  v_permlane32_swap_b32 v{c}, v{d}
  v_max_f32 v{a}, v{a}, v{b_}
  v_max_f32 v{c}, v{c}, v{d}
  s_nop 1
  v_permlane16_swap_b32 v{a}, v{c}
  v_max_f32 v{a}, v{a}, v{c}
  v_mul_f32 v{a}, s{S_C0}, v{a}
  v_mov_b32 v{c}, v{a}
  s_nop 1
  v_permlane16_swap_b32 v{a}, v{c}
  v_mov_b32 v{b_}, v{a}
  v_mov_b32 v{d}, v{c}
  s_nop 0
  v_permlane32_swap_b32 v{a}, v{b_}
  v_permlane32_swap_b32 v{c}, v{d}""")
for b in range(4):
    for r in range(4): A(f"  v_fma_f32 v{SS(b)+r}, v{SS(b)+r}, s{S_C0}, -v{MX(b)}")
for b in range(4):
    for r in range(4): A(f"  v_exp_f32 v{SS(b)+r}, v{SS(b)+r}")
P4 = lambda b: 40 + 4 * b
for b in range(4):
    tt = MT + 2 * (b & 1)
    cvt(tt, SS(b))
    A(f"  v_and_b32 v{P4(b)}, v{tt}, v{V_PV}\n  v_and_b32 v{P4(b)+1}, v{tt+1}, v{V_PV}")
    A(f"  v_xor_b32 v{P4(b)+2}, v{tt}, v{P4(b)}\n  v_xor_b32 v{P4(b)+3}, v{tt+1}, v{P4(b)+1}")
A("  s_nop 1")
OO = lambda b: 72 + 4 * b
SM = lambda b: 88 + 4 * b
for b in range(4):
    t, p = b >> 1, b & 1
    A(f"  v_mfma_f32_16x16x32_bf16 v[{SM(b)}:{SM(b)+3}], v[{V_ONES}:{V_ONES+3}], v[{P4(b)}:{P4(b)+3}], 0")
    A(f"  v_mfma_f32_16x16x32_bf16 v[{OO(b)}:{OO(b)+3}], v[{VP(p,t)}:{VP(p,t)+3}], v[{P4(b)}:{P4(b)+3}], 0")
A("  s_nop 4")
for b in range(4): A(f"  v_rcp_f32 v{SM(b)}, v{SM(b)}")
for b in range(4):
    for r in (0, 2): A(f"  v_pk_mul_f32 v[{OO(b)+r}:{OO(b)+r+1}], v[{OO(b)+r}:{OO(b)+r+1}], v[{SM(b)}:{SM(b)+1}] op_sel_hi:[1,0]")
store_frags(OO, 2, ACC)
A("  s_branch L_phase2")

A("L_compB:")
A(f"""  s_mov_b32 s{S_C0}, 0x358637bd
  s_mov_b32 s{S_C1}, 0x3fb8aa3b
  s_mov_b32 s{S_C2}, {hex(f2u(-1e-6 * 1.4426950408889634))}
  v_mov_b32 v{V_NC}, s{S_C2}
  v_mov_b32 v{V_NC+1}, s{S_C1}
  v_add_u32 v{V_XA}, 2048, v{V_XA}
  v_xor_b32 v{V_XA1}, 64, v{V_XA}
  v_mov_b32 v{V_X0C}, v{V_XA}
  v_mov_b32 v{V_X1C}, v{V_XA1}""")
for r in range(16, 48): A(f"  v_mov_b32 v{r}, s{S_C0}")
A(f"  s_cmp_lg_u32 s{S_RH}, 0\n  s_cbranch_scc1 L_compQ")
A(f"""  s_cmp_lg_u32 s{S_RB}, 0
  s_cbranch_scc1 L_nozero
  v_mov_b32 v8, 0
  v_mov_b32 v9, 0
  v_mov_b32 v10, 0
  v_mov_b32 v11, 0
  v_lshlrev_b32 v7, 4, v0
  buffer_store_dwordx4 v[8:11], v7, s[{SRD_WS}:{SRD_WS+3}], s{S_C3} offen sc1
  s_mov_b64 exec, 0xff
  buffer_store_dwordx4 v[8:11], v7, s[{SRD_WS}:{SRD_WS+3}], s{S_C3} offen offset:1024 sc1
  s_mov_b64 exec, -1
  s_lshl_b32 s{S_T0}, s{S_HG}, 2
  s_add_u32 s{S_T0}, s{S_T0}, s{S_HH}
  s_mul_i32 s{S_T0}, s{S_T0}, {9*128}
  s_add_u32 s{S_T0}, s{S_T0}, {WS_FLG}
  v_lshlrev_b32 v7, 7, v0
  s_mov_b64 exec, 0x1ff
  buffer_store_dword v8, v7, s[{SRD_WS}:{SRD_WS+3}], s{S_T0} offen sc1
  s_mov_b64 exec, -1
L_nozero:""")
BK = lambda b: 16 + 4 * b
BV = lambda b: 48 + 4 * b
GX = lambda buf, b: 80 + 40 * buf + 4 * b
GW = lambda buf, i: 80 + 40 * buf + 32 + 4 * i
for r in range(48, 80): A(f"  v_mov_b32 v{r}, 0")
for r in range(4): A(f"  v_mov_b32 v{V_ONESB+r}, 0x3f803f80")
def xreads(buf, kk):
    va = V_X0C if kk == 0 else V_X1C
    return [f"  ds_read_b128 v[{GX(buf,b)}:{GX(buf,b)+3}], v{va} offset:{b*2048}" for b in range(8)]
def readsKV(buf, kk): return trr(GW(buf, 0), 1) + trr(GW(buf, 1), 2) + xreads(buf, kk)
def mfmasKV(buf):
    m = []
    for b in range(8): m += [mm(BK(b), GX(buf, b), GW(buf, 0)), mm(BV(b), GX(buf, b), GW(buf, 1))]
    return m
def ack():
    A(f"""  s_or_b32 s{S_T0}, s{S_IT}, s{S_RB}
  s_cmp_lg_u32 s{S_T0}, 0
  s_cbranch_scc1 L_noack
  s_waitcnt vmcnt(0)
  s_lshl_b32 s{S_T0}, s{S_HG}, 2
  s_add_u32 s{S_T0}, s{S_T0}, s{S_HH}
  v_mov_b32 v11, s{S_T0}
  s_mov_b64 exec, 1
  global_store_byte v11, v{V_ONE}, s[{S_DBG}:{S_DBG+1}] sc1
  s_mov_b64 exec, -1
L_noack:""")
mainloop("K", readsKV, mfmasKV, [], ack, args.bpos)
if args.kprio: A("  s_setprio 2")
PK = lambda b: 80 + 2 * b
VV = lambda b: 96 + 2 * b
ET = 112
def phi(acc, n, et):
    for i in range(0, n, 2): A(f"  v_pk_fma_f32 v[{et+i}:{et+i+1}], v[{acc+i}:{acc+i+1}], v[{V_NC}:{V_NC+1}], v[{V_NC}:{V_NC+1}] op_sel:[0,1,0] op_sel_hi:[1,1,0]")
    for i in range(n): A(f"  v_exp_f32 v{et+i}, v{et+i} clamp")
    for i in range(n): A(f"  v_max_f32 v{acc+i}, s{S_C0}, v{acc+i}")
    for i in range(0, n, 2): A(f"  v_pk_add_f32 v[{acc+i}:{acc+i+1}], v[{acc+i}:{acc+i+1}], v[{et+i}:{et+i+1}]")
for b in range(8): cvt(VV(b), BV(b))
phi(BK(0), 32, ET)
for b in range(8): cvt(PK(b), BK(b))
KVA = 144; ZA = 148
A("  s_nop 1")
for i in range(4):
    c = "0" if i == 0 else f"v[{KVA}:{KVA+3}]"
    A(f"  v_mfma_f32_16x16x32_bf16 v[{KVA}:{KVA+3}], v[{VV(2*i)}:{VV(2*i)+3}], v[{PK(2*i)}:{PK(2*i)+3}], {c}")
    c = "0" if i == 0 else f"v[{ZA}:{ZA+3}]"
    A(f"  v_mfma_f32_16x16x32_bf16 v[{ZA}:{ZA+3}], v[{V_ONESB}:{V_ONESB+3}], v[{PK(2*i)}:{PK(2*i)+3}], {c}")
A("""  v_and_b32 v7, 15, v0
  v_lshlrev_b32 v7, 2, v7
  v_lshrrev_b32 v8, 5, v0
  v_lshl_add_u32 v7, v8, 8, v7
  v_bfe_u32 v8, v0, 4, 1
  v_lshl_add_u32 v7, v8, 9, v7""")
init_check("B", V_IF, V_IFA)
A("  s_nop 2")
for r in range(4):
    A(f"  buffer_atomic_add_f32 v{KVA+r}, v7, s[{SRD_WS}:{SRD_WS+3}], s{S_C3} offen offset:{64*r}")
A(f"  s_mov_b64 exec, 0xffff\n  buffer_atomic_add_f32 v{ZA}, v7, s[{SRD_WS}:{SRD_WS+3}], s{S_C3} offen offset:1024\n  s_mov_b64 exec, -1")
A(f"  v_mov_b32 v8, 0\n  s_waitcnt vmcnt(0)\n  s_mov_b64 exec, 1\n  buffer_atomic_add v{V_ONE}, v8, s[{SRD_WS}:{SRD_WS+3}], s{S_XH2} offen\n  s_mov_b64 exec, -1\n  s_mov_b32 s{S_IT}, 99\n  s_setprio 0")
A("  s_branch L_phase2")
A("L_compQ:")
def readsQ(buf, kk): return trr(GW(buf, 0), 0) + xreads(buf, kk)
def mfmasQ(buf): return [mm(BK(b), GW(buf, 0), GX(buf, b)) for b in range(8)]
mainloop("Q", readsQ, mfmasQ, [], lambda: None, min(args.bpos, 2))
A("  s_nop 4")
phi(BK(0), 32, ET)
store_frags(BK, 4, 16)

A("L_phase2:")
stamp(3)
A(f"  s_lshr_b32 s{S_T2}, s{S_HH}, 1")
chunk_sel(S_T2)
quarters()
A(f"""  v_and_b32 v11, 15, v0
  v_lshrrev_b32 v12, 4, v0
  v_lshrrev_b32 v13, 2, v11
  v_lshl_add_u32 v13, v12, 3, v13
  v_and_b32 v14, 3, v11
  v_lshlrev_b32 v14, 4, v14
  v_lshl_add_u32 v14, v13, 7, v14
  v_bfe_u32 v10, v13, 1, 1
  s_and_b32 s{S_T0}, s{S_HH}, 1
  v_xor_b32 v10, s{S_T0}, v10
  v_lshl_add_u32 v6, v10, 6, v14
  v_add_u32 v2, s{S_CH}, v6
  v_add_u32 v3, s{S_CH+1}, v6
  v_lshlrev_b32 v11, 12, v11
  v_lshl_add_u32 v1, v12, 4, v11
  s_lshl_b32 s{S_C2}, s{S_RB2}, 17
  s_lshl_b32 s{S_T0}, s{S_RH}, 16
  s_add_u32 s{S_C2}, s{S_C2}, s{S_T0}
  s_lshl_b32 s{S_T0}, s{S_BR}, 10
  s_add_u32 s{S_C2}, s{S_C2}, s{S_T0}
  s_lshl_b32 s{S_T0}, s{S_CB}, 8
  s_add_u32 s{S_C2}, s{S_C2}, s{S_T0}
  s_lshl_b32 s{S_T0}, s{S_HH}, 6
  s_add_u32 s{S_C2}, s{S_C2}, s{S_T0}
  s_mul_i32 s{S_C3}, s{S_RH}, {ORH}""")
A(f"  s_cmp_eq_u32 s{S_IT}, 99\n  s_cbranch_scc1 L_idP")
init_check("P", V_IF, V_IFA)
stamp(4)
A("  s_barrier\n  s_barrier")
WF = lambda ks, c: 104 + (ks % 8) * 8 + c * 4
def wo_reads(i, va):
    for k in range(4):
        for c in range(2):
            d = WF(4 * i + k, c)
            A(f"  ds_read_b64_tr_b16 v[{d}:{d+1}], v{va} offset:{k*4096 + 8*c}\n  ds_read_b64_tr_b16 v[{d+2}:{d+3}], v{va} offset:{k*4096 + 8*c + 512}")
wo_reads(0, 2); wo_reads(1, 3)
A(f"""  v_lshlrev_b32 v5, 4, v0
  v_add_u32 v5, s{S_C3}, v5
  v_and_b32 v11, 31, v0
  v_lshrrev_b32 v12, 5, v0
  v_lshrrev_b32 v13, 4, v11
  v_lshlrev_b32 v13, 14, v13
  v_lshl_add_u32 v13, v12, 8, v13
  v_and_b32 v14, 15, v11
  v_lshl_add_u32 v7, v14, 4, v13
  v_lshlrev_b32 v13, 4, v14
  v_lshl_add_u32 v13, v12, 8, v13
  v_lshlrev_b32 v10, 4, v12
  v_add_u32 v10, 512, v10
  v_cmp_lt_u32 vcc, 15, v11
  s_nop 1
  v_cndmask_b32 v4, v13, v10, vcc
  s_lshl_b32 s{S_C1}, s{S_RB2}, 16
  s_add_u32 s{S_C1}, s{S_C1}, 0x200000
  s_mov_b32 s{S_C0}, 0x358637bd
  s_waitcnt lgkmcnt(0)""")
stamp(5)
A("  s_barrier")
OA = lambda b, c: 16 + (b * 2 + c) * 4
OF = lambda k, b: 40 + (k % 8) * 8 + 4 * b
def gemm_all(bars):
    q = []
    def rd_o(k):
        i, h = k >> 2, k & 3
        for b in range(2):
            A(f"  ds_read_b128 v[{OF(k,b)}:{OF(k,b)+3}], v{8+i} offset:{b*16384 + h*1024}"); q.append(("o", k))
    def rd_w(k):
        i, h = k >> 2, k & 3
        for c in range(2):
            d = WF(k, c)
            A(f"  ds_read_b64_tr_b16 v[{d}:{d+1}], v{i} offset:{h*4096 + 8*c}"); q.append(("w", k))
            A(f"  ds_read_b64_tr_b16 v[{d+2}:{d+3}], v{i} offset:{h*4096 + 8*c + 512}"); q.append(("w", k))
    if bars: A("  s_barrier"); stamp(9)
    for k in range(4): rd_o(k)
    for k in range(16):
        need = [j for j, t in enumerate(q) if t[1] <= k]
        if need:
            n = len(q) - 1 - need[-1]
            A(f"  s_waitcnt lgkmcnt({min(n, 15)})")
            del q[:need[-1] + 1]
        ms = []
        for b in range(2):
            for c in range(2):
                acc = OA(b, c); wf = WF(k, c); d = OF(k, b)
                cin = "0" if k == 0 else f"v[{acc}:{acc+3}]"
                ms.append(f"  v_mfma_f32_16x16x32_bf16 v[{acc}:{acc+3}], v[{wf}:{wf+3}], v[{d}:{d+3}], {cin}")
        A(ms[0]); A(ms[1])
        kn = k + 4 if not bars else None
        if bars:
            if k % 4 == 1 and k + 3 < 16:
                A("  s_barrier")
                for kk in range(k + 3, k + 5): rd_o(kk)
            elif k % 4 == 2 and k + 4 < 16:
                for kk in range(k + 4, k + 6): rd_o(kk)
        elif k + 4 < 16: rd_o(k + 4)
        A(ms[2]); A(ms[3])
        if k < 8: rd_w(k + 8)
A(f"  v_add_u32 v2, s{S_CH+2}, v6\n  v_add_u32 v3, s{S_CH+3}, v6")
for i in range(4): A(f"  v_add_u32 v{8+i}, s{S_Q+i}, v5")
A(f"  s_cmp_lg_u32 s{S_BR}, 0\n  s_cbranch_scc1 L_p2B")
if args.adyn:
    A("  s_barrier")
    stamp(9)
    gemm_all(False)
else: gemm_all(True)
A("  s_branch L_fin")
A("L_p2B:")
PQ = lambda i, rg: 40 + (i * 2 + rg) * 4
A(f"""  s_lshr_b32 s{S_A0}, s{S_WV}, 1
  s_lshl_b32 s{S_A0}, s{S_A0}, 10
  s_and_b32 s{S_T0}, s{S_WV}, 1
  s_lshl_b32 s{S_T0}, s{S_T0}, 9
  s_add_u32 s{S_A0}, s{S_A0}, s{S_T0}""")
for i in range(4):
    A(f"""  s_lshr_b32 s{S_T0}, s{S_Q+i}, 9
  s_add_u32 s{S_T0}, s{S_T0}, s{S_WV}
  s_mul_i32 s{S_T1}, s{S_T0}, {KVS}
  s_cmp_lt_u32 s{S_T0}, 11
  s_cselect_b32 s{S_T0}, 0, {KV1-KV0}
  s_add_u32 s{S_T1}, s{S_T1}, s{S_T0}
  s_add_u32 s{S_T1}, s{S_T1}, {KV0}
  v_add_u32 v{12+i}, s{S_T1}, v4""")
for i in range(4):
    if i == args.x2: A("  s_barrier")
    A(f"  s_add_u32 s{S_T2}, s{S_A0}, s{S_Q+i}\n  s_add_u32 s{S_T2}, s{S_T2}, s{S_C1}\n  s_add_u32 s{S_T3}, s{S_T2}, 32768")
    for rg in range(2):
        d = PQ(i, rg)
        A(f"  buffer_load_dwordx4 v[{d}:{d+3}], v7, s[{SRD_WS}:{SRD_WS+3}], s{S_T2 if rg == 0 else S_T3} offen {args.cl}")
    if i == args.pqw: A("  s_waitcnt vmcnt(0)")
A(f"  v_add_u32 v32, s{S_A0}, v7\n  v_add_u32 v33, {ORH}, v32")
if 'cyc' not in args.dbg: stamp(12)
A("  s_barrier")
if 'cyc' not in args.dbg: stamp(13)
for i in range(4): A(f"  ds_read_b128 v[{16+4*i}:{19+4*i}], v{12+i}")
def pm(u):
    i, rg = u >> 1, u & 1; d = 72 + 16 * rg
    A(f"  s_waitcnt vmcnt({7-u})")
    A(f"  v_mfma_f32_32x32x16_bf16 v[{d}:{d+15}], v[{16+4*i}:{19+4*i}], v[{PQ(i,rg)}:{PQ(i,rg)+3}], 0")
def pv(u):
    i, rg = u >> 1, u & 1; d = 72 + 16 * rg
    A(f"  v_add_f32 v{d+8}, s{S_C0}, v{d+8}\n  v_rcp_f32 v{d+8}, v{d+8}\n  v_add_u32 v{34+rg}, s{S_Q+i}, v{32+rg}")
    for r in range(0, 8, 2):
        A(f"  v_pk_mul_f32 v[{d+r}:{d+r+1}], v[{d+r}:{d+r+1}], v[{d+8}:{d+9}] op_sel_hi:[1,0]")
    o_ = PQ(i, rg)
    cvt(o_, d); cvt(o_ + 2, d + 4)
    A(f"  ds_write_b128 v{34+rg}, v[{o_}:{o_+3}]")
A("  s_waitcnt lgkmcnt(0)")
pm(0); pm(1)
A("  s_nop 10")
for u in range(8):
    pv(u)
    if u + 2 < 8: pm(u + 2)
    if u == 6: A("  s_nop 0")
A("  s_waitcnt lgkmcnt(0)")
stamp(14)
A("  s_barrier")
stamp(9)
gemm_all(False)
A("L_fin:\n  s_nop 7")
for b in range(2):
    d = 32 + 4 * b
    cvt(d, OA(b, 0)); cvt(d + 2, OA(b, 1))
    A(f"  s_add_u32 s{S_T0}, s{S_C2}, {b * 2048}")
    A(f"  buffer_store_dwordx4 v[{d}:{d+3}], v1, s[{SRD_OUT}:{SRD_OUT+3}], s{S_T0} offen {args.ost.replace('_', ' ')}")
stamp(10)
if NSTAMP:
    A("  s_waitcnt vmcnt(0)")
    stamp(11)
    A(f"  s_cmp_lg_u32 s{S_WV}, 0\n  s_cbranch_scc1 L_end")
    stamp_flush([0, 1, 2, 3, 4, 5, 9, 10, 11, 12, 13, 14], 8)
if args.diag:
    A(f"""  s_or_b32 s{S_T0}, s{S_J}, s{S_WV}
  s_cmp_lg_u32 s{S_T0}, 0
  s_cbranch_scc1 L_end
  s_waitcnt vmcnt(0)
  s_memrealtime s[96:97]
  s_waitcnt lgkmcnt(0)
  s_not_b32 s98, s98
  v_mov_b32 v8, s96
  v_mov_b32 v9, s98
  v_mov_b32 v10, 32
  s_mov_b64 exec, 1
  global_atomic_umax v10, v8, s[{S_DBG}:{S_DBG+1}]
  global_atomic_umax v10, v9, s[{S_DBG}:{S_DBG+1}] offset:4""")
A("L_end:\n  s_endpgm\nL_codeend:")
A(f""".section .rodata,"a"
.p2align 6
.amdhsa_kernel {NAME}
  .amdhsa_next_free_vgpr 168
  .amdhsa_next_free_sgpr 102
  .amdhsa_accum_offset 168
  .amdhsa_group_segment_fixed_size 0
  .amdhsa_kernarg_size 72
  .amdhsa_user_sgpr_count 2
  .amdhsa_user_sgpr_kernarg_segment_ptr 1
  .amdhsa_system_sgpr_workgroup_id_x 1
.end_amdhsa_kernel""")
print("\n".join(out))
```
